```python
import torch

def _softmax(x, axis=-1):
    return torch.softmax(x, dim=axis)

def _gelu(x):
    return torch.nn.functional.gelu(x, approximate='tanh')

def _silu(x):
    return torch.nn.functional.silu(x)

def _sigmoid(x):
    return torch.sigmoid(x)

def _layernorm(x, axis=-1, eps=1e-05):
    m = x.mean(dim=axis, keepdim=True)
    v = x.var(dim=axis, keepdim=True, unbiased=False)
    return (x - m) / torch.sqrt(v + eps)

def _scatter_add(tgt, idx, src, axis=0):
    return tgt.clone().index_add_(axis, idx, src)

def _segment_sum(src, seg, n):
    out = torch.zeros((n,) + src.shape[1:], dtype=src.dtype)
    return out.index_add_(0, seg, src)

def _pad(x, pw):
    flat = tuple((v for pair in reversed(pw) for v in pair))
    return torch.nn.functional.pad(x, flat)
kernel_name = 'standalone__memory_aug_recurrent_mem_tr__prompt'

def setup_inputs():

    _w = lambda a: (lambda t: t.to(torch.bfloat16) if t.is_floating_point() else t)(torch.as_tensor(a))
    B, S, Dm = (1, 2048, 640)
    H, Dh = (32, 128)
    M, seg = (8, 32)
    seg = min(seg, S)
    S = S // seg * seg
    return {'x': _w((lambda *s: torch.randn(*s, dtype=torch.bfloat16) * 0.05)(B, S, Dm)), 'mem0': _w((lambda *s: torch.randn(*s, dtype=torch.bfloat16) * 0.4)(B, M, Dm)), 'Wq': _w((lambda *s: torch.randn(*s, dtype=torch.bfloat16) * 6.4)(Dm, H, Dh) * Dm ** (-0.5)), 'Wk': _w((lambda *s: torch.randn(*s, dtype=torch.bfloat16) * 6.4)(Dm, H, Dh) * Dm ** (-0.5)), 'Wv': _w((lambda *s: torch.randn(*s, dtype=torch.bfloat16) * 0.4)(Dm, H, Dh) * Dm ** (-0.5)), 'Wo': _w((lambda *s: torch.randn(*s, dtype=torch.bfloat16) * 0.4)(H, Dh, Dm) * (H * Dh) ** (-0.5)), 'seg_len': seg}

def reference(x, mem0, Wq, Wk, Wv, Wo, seg_len):
    B, S, Dm = x.shape
    H, Dh = (Wq.shape[1], Wq.shape[2])
    M = mem0.shape[1]
    scale = Dh ** (-0.5)
    n_seg = S // seg_len
    L = M + seg_len
    idx = torch.arange(L)
    mask = (idx[:, None] < M) | (idx[:, None] >= idx[None, :])
    mem = mem0
    outs = []
    for s in range(n_seg):
        xs = x[:, s * seg_len:(s + 1) * seg_len, :].clone()
        h = torch.concatenate([mem, xs], axis=1)
        q = torch.einsum('btd,dhe->bhte', h, Wq)
        k = torch.einsum('btd,dhe->bhte', h, Wk)
        v = torch.einsum('btd,dhe->bhte', h, Wv)
        scores = torch.einsum('bhqe,bhke->bhqk', q, k) * scale
        scores = torch.where(mask[None, None], scores, -1000000000.0)
        p = _softmax(scores, axis=-1)
        o = torch.einsum('bhqk,bhke->bhqe', p, v)
        o = torch.einsum('bhte,hed->btd', o, Wo)
        mem = o[:, :M, :].clone()
        outs.append(o[:, M:, :])
    return torch.concatenate(outs, axis=1)
```

```python
import re

def vr(b, n=1):
    return f"v{b}" if n == 1 else f"v[{b}:{b+n-1}]"
def ar(b, n=1):
    return f"a{b}" if n == 1 else f"a[{b}:{b+n-1}]"
def sr(b, n=1):
    return f"s{b}" if n == 1 else f"s[{b}:{b+n-1}]"

_reg_re = re.compile(r"\b([vas])(\d+)\b|\b([vas])\[(\d+):(\d+)\]")
def regs_of(opnd):
    out = []
    for m in _reg_re.finditer(opnd):
        if m.group(1):
            out.append((m.group(1), int(m.group(2))))
        else:
            for i in range(int(m.group(4)), int(m.group(5)) + 1):
                out.append((m.group(3), i))
    if re.search(r"\bvcc\b", opnd): out.append(("s", "vcc"))
    if re.search(r"\bexec\b", opnd): out.append(("s", "exec"))
    if re.search(r"\bm0\b", opnd): out.append(("s", "m0"))
    return out

def split_ops(s):
    ops, depth, cur = [], 0, ""
    for ch in s:
        if ch == "[": depth += 1
        if ch == "]": depth -= 1
        if ch == "," and depth == 0:
            ops.append(cur.strip()); cur = ""
        else:
            cur += ch
    if cur.strip(): ops.append(cur.strip())
    return ops

TRANS = ("v_exp_f32", "v_log_f32", "v_rcp_f32", "v_rsq_f32", "v_sqrt_f32", "v_sin_f32", "v_cos_f32")

class Ins:
    __slots__ = ("text", "mn", "kind", "dst", "src", "srcA", "srcB", "srcC", "passes", "dpp", "states", "wide_store", "data")
    def __init__(self, text):
        self.text = text
        t = text.split(";")[0].strip()
        parts = t.split(None, 1)
        mn = parts[0]
        self.mn = mn
        rest = parts[1] if len(parts) > 1 else ""
        ops = split_ops(rest)
        self.dst, self.src = [], []
        self.srcA = self.srcB = self.srcC = []
        self.passes = 0
        self.dpp = "dpp" in mn or "row_" in rest or "quad_perm" in rest
        self.states = 1
        self.wide_store = False
        self.data = []
        if mn == "s_nop":
            self.kind = "nop"; self.states = int(ops[0], 0) + 1
        elif mn.startswith("v_mfma") or mn.startswith("v_smfmac"):
            self.kind = "mfma"
            self.dst = regs_of(ops[0])
            self.srcA = regs_of(ops[1]); self.srcB = regs_of(ops[2])
            if mn.startswith("v_smfmac"):
                self.srcC = list(self.dst)
                self.srcB = self.srcB + regs_of(ops[3].split()[0])
            else:
                self.srcC = regs_of(ops[3].split()[0])
            self.src = self.srcA + self.srcB + self.srcC
            self.passes = 8 if "32x32" in mn else 4
        elif mn.startswith("v_"):
            self.kind = "valu"
            if mn.startswith("v_permlane") :
                self.dst = regs_of(ops[0]) + regs_of(ops[1]); self.src = list(self.dst)
            elif mn.startswith("v_cmp"):
                self.dst = regs_of(ops[0]); self.src = sum((regs_of(o) for o in ops[1:]), [])
                if mn.startswith("v_cmpx"): self.dst.append(("s", "exec"))
            elif mn.startswith(("v_add_co", "v_sub_co", "v_addc_co", "v_subb_co")):
                self.dst = regs_of(ops[0]) + regs_of(ops[1]); self.src = sum((regs_of(o) for o in ops[2:]), [])
            else:
                self.dst = regs_of(ops[0]); self.src = sum((regs_of(o.split(" row_")[0].split(" quad_")[0]) for o in ops[1:]), [])
                if mn.startswith(("v_fmac", "v_pk_fmac", "v_dot2c")) or self.dpp:
                    self.src = self.src + self.dst
        elif mn.startswith("ds_"):
            self.kind = "ds"
            if mn.startswith("ds_write"):
                self.src = sum((regs_of(o) for o in ops), [])
            else:
                self.dst = regs_of(ops[0]); self.src = sum((regs_of(o) for o in ops[1:]), [])
        elif mn.startswith(("buffer_", "global_")):
            self.kind = "vmem"
            allr = [regs_of(o) for o in ops]
            if mn in ("buffer_inv", "buffer_wbl2"):
                pass
            elif "store" in mn:
                self.src = sum(allr, [])
                self.data = allr[0] if mn.startswith("buffer_") else allr[1]
                self.wide_store = ("x3" in mn or "x4" in mn)
            elif "atomic" in mn:
                self.src = sum(allr, [])
                if " sc0" in rest:
                    self.dst = allr[0]
            elif " lds" in rest:
                self.src = sum(allr, []) + [("s", "m0")]
            else:
                self.dst = allr[0]; self.src = sum(allr[1:], [])
        elif mn.startswith("s_"):
            self.kind = "salu"
            if mn.startswith(("s_cmp", "s_cbranch", "s_branch", "s_waitcnt", "s_barrier", "s_endpgm", "s_sleep", "s_setprio", "s_bitcmp")):
                self.src = sum((regs_of(o) for o in ops), [])
            else:
                self.dst = regs_of(ops[0]) if ops else []
                self.src = sum((regs_of(o) for o in ops[1:]), [])
                if "saveexec" in mn: self.dst.append(("s", "exec"))
        else:
            self.kind = "other"

def need_states(p, c):
    n = 0
    pd = set(p.dst)
    if p.kind == "valu":
        vd = {r for r in pd if r[0] in "va"}
        sd = {r for r in pd if r[0] == "s"}
        if c.kind == "mfma" and vd & set(c.src): n = max(n, 2)
        if c.kind == "valu":
            if c.mn.startswith("v_permlane") and vd & set(c.src): n = max(n, 2)
            if c.dpp and vd & set(c.src): n = max(n, 2)
            if c.mn.startswith(("v_readlane", "v_readfirstlane")) and vd & set(c.src): n = max(n, 1)
            if p.mn.startswith(TRANS) and not c.mn.startswith(TRANS) and vd & set(c.src): n = max(n, 1)
            if sd & set(c.src): n = max(n, 4 if c.mn.startswith(("v_readlane", "v_writelane", "v_div_fmas")) else 2)
            if c.mn.startswith("v_cndmask") and ("s", "vcc") in sd and "s[" not in c.text: n = max(n, 2)
            if ("s", "exec") in sd:
                n = max(n, 5 if c.dpp else (4 if c.mn.startswith(("v_readlane", "v_readfirstlane", "v_writelane", "v_permlane")) else 0))
        if p.mn.startswith("v_dot") and c.kind in ("valu", "mfma", "vmem", "ds") and vd & (set(c.src) | set(c.dst)): n = max(n, 3)
        if c.kind == "mfma" and ("s", "exec") in sd: n = max(n, 4)
        if c.kind == "vmem" and sd & set(c.src): n = max(n, 5)
        if p.mn.startswith(TRANS) and c.kind in ("vmem", "ds") and vd & set(c.src): n = max(n, 1)
    if p.kind == "mfma":
        full = {4: 8, 8: 12}[p.passes]
        if c.kind == "mfma":
            if pd & (set(c.srcA) | set(c.srcB)): n = max(n, full)
            ov = pd & set(c.srcC)
            if ov:
                if list(c.srcC) == list(p.dst) and c.mn == p.mn: pass
                else: n = max(n, {4: 6, 8: 10}[p.passes])
            elif pd & set(c.dst):
                n = max(n, full)
        elif c.kind in ("valu", "vmem", "ds"):
            if pd & (set(c.src) | set(c.dst)): n = max(n, full)
        if c.kind == "valu" and set(p.srcC) & set(c.dst): n = max(n, {4: 3, 8: 7}[p.passes])
    if p.kind == "vmem" and p.wide_store:
        if set(p.data) & set(c.dst): n = max(n, 2 if c.kind in ("valu", "mfma") else 1)
    if p.kind == "salu" and ("s", "m0") in pd and c.kind == "vmem" and ("s", "m0") in c.src: n = max(n, 1)
    return n

class Asm:
    def __init__(self):
        self.lines = []
        self.vm = []
        self.lg = []
        self.nid = 0
    def raw(self, s):
        self.lines.append(s)
    def label(self, name):
        self.lines.append(name + ":")
    def __call__(self, text):
        ins = Ins(text)
        self.lines.append(ins)
        h = None
        if ins.kind == "vmem" and ins.mn not in ("buffer_inv", "buffer_wbl2"):
            self.nid += 1; h = ("vm", self.nid); self.vm.append(h)
        elif ins.kind == "ds":
            self.nid += 1; h = ("lg", self.nid); self.lg.append(h)
        return h
    def wait(self, *hs):
        nv = nl = None
        for h in hs:
            if h is None: continue
            if isinstance(h, list):
                self.wait(*h); continue
            q = self.vm if h[0] == "vm" else self.lg
            if h in q:
                left = len(q) - 1 - q.index(h)
                if h[0] == "vm": nv = left if nv is None else min(nv, left)
                else: nl = left if nl is None else min(nl, left)
        parts = []
        if nv is not None:
            nv = min(nv, 63)
            parts.append(f"vmcnt({nv})"); self.vm = self.vm[len(self.vm) - nv:] if nv else []
        if nl is not None:
            nl = min(nl, 15)
            parts.append(f"lgkmcnt({nl})"); self.lg = self.lg[len(self.lg) - nl:] if nl else []
        if parts:
            self.lines.append(Ins("s_waitcnt " + " ".join(parts)))
    def wait_vm0(self):
        self.lines.append(Ins("s_waitcnt vmcnt(0)")); self.vm = []
    def wait_lg0(self):
        self.lines.append(Ins("s_waitcnt lgkmcnt(0)")); self.lg = []
    def wait_all(self):
        self.lines.append(Ins("s_waitcnt vmcnt(0) lgkmcnt(0)")); self.vm = []; self.lg = []
    def finish(self, timed=True):
        out = []
        window = []
        pos = 0
        nnop = 0
        last_mfma = (-100, 0)
        for it in self.lines:
            if isinstance(it, str):
                out.append(it)
                continue
            start = pos
            if timed and it.kind == "mfma":
                start = max(pos, last_mfma[0] + last_mfma[1])
            need = 0
            for p, ppos in window:
                n = need_states(p, it)
                if n:
                    have = start - ppos - p.states
                    if n - have > 0:
                        need = max(need, n - (pos - ppos - p.states))
            while need > 0:
                k = min(need, 16)
                nop = Ins(f"s_nop {k-1}")
                out.append("  " + nop.text); pos += k; need -= k; nnop += k
            if timed and it.kind == "mfma":
                pos = max(pos, last_mfma[0] + last_mfma[1])
                last_mfma = (pos, it.passes)
            out.append("  " + it.text)
            window.append((it, pos))
            pos += it.states
            window = [(p, pp) for p, pp in window if pos - pp < 24]
        self.nnop = nnop
        return "\n".join(out) + "\n"
```

```python
from asmlib import *
from team6 import KXI, VXI, QXI, KMI, VMI, sWS, sDBG, sW, sTMP, sSPIN, SPIN_MAX, fbits
from proj import srd

EP = 0x6000000
eWO = 8; eOUT = 12
eE, eH, eSEG, eIT = 28, 29, 30, 31
eA, eB, eC2, eD = 32, 33, 34, 35
eMSK = 36
eC = 52
eEPW, eEPR = 53, 54
eJ = 55
eM32 = 56
eT = 58
D_BLK = 64
D_Q = 160
D_ENG = 184
D_KM = 208
gL16, gL4, gKM, gOW, gPS, gRD, gOUT = 0, 1, 2, 3, 4, 5, 6
gT0, gT1, gT2, gT3 = 8, 9, 10, 11
gSEL = 12
KX = 16
QF = 48
KMF = 64
VXF = 80
WOF = 96
L_OI = 0

def blk_of_seg(a, sseg, sdst):
    a(f"s_sub_u32 s{sTMP}, s{sseg}, 18")
    a(f"s_lshr_b32 s{sTMP}, s{sTMP}, 2")
    a(f"s_add_u32 s{sdst}, s{sTMP}, 12")
    a(f"s_add_u32 s{sTMP}, s{sseg}, 6")
    a(f"s_lshr_b32 s{sTMP}, s{sTMP}, 1")
    a(f"s_cmp_lt_u32 s{sseg}, 18")
    a(f"s_cselect_b32 s{sdst}, s{sTMP}, s{sdst}")
    a(f"s_cmp_lt_u32 s{sseg}, 6")
    a(f"s_cselect_b32 s{sdst}, s{sseg}, s{sdst}")

def wait_ctr(a, lab, soff, sthr, vt0, vt1, sleep=8):
    a(f"v_mov_b32 v{vt0}, s{soff}")
    a(f"s_mov_b32 s{sSPIN}, 0")
    a.label(lab)
    a(f"global_load_dword v{vt1}, v{vt0}, {sr(sDBG,2)} sc1")
    a(f"s_add_u32 s{sSPIN}, s{sSPIN}, 1")
    a(f"s_cmp_gt_u32 s{sSPIN}, {SPIN_MAX}")
    a(f"s_cbranch_scc1 L_fail")
    a.wait_vm0()
    a(f"v_readfirstlane_b32 s{sTMP}, v{vt1}")
    a(f"s_cmp_ge_u32 s{sTMP}, s{sthr}")
    a(f"s_cbranch_scc1 {lab}_ok")
    a(f"s_sleep {sleep}")
    a(f"s_branch {lab}")
    a.label(f"{lab}_ok")

def engine_setup(a):
    srd(a, eWO, 40, 5242880); srd(a, eOUT, 56, 2621440)
    L, N, G_, R, C = 16, 17, 18, 19, 20
    a(f"v_lshrrev_b32 v{L}, 4, v{gL16}")
    a(f"v_lshrrev_b32 v{gL4}, 2, v{gL16}")
    a(f"v_and_b32 v{N}, 15, v{L}")
    a(f"v_lshrrev_b32 v{G_}, 4, v{L}")
    a(f"v_lshrrev_b32 v{R}, 2, v{N}")
    a(f"v_and_b32 v{C}, 3, v{N}")
    a(f"s_mul_i32 s{eA}, s{eH}, 163840")
    a(f"s_mul_i32 s{eB}, s{sW}, 40960")
    a(f"s_add_u32 s{eA}, s{eA}, s{eB}")
    for i in range(40):
        if i % 4 == 0:
            a(f"s_add_u32 m0, s{eB}, {i*1024}")
            a(f"s_add_u32 s{eC2}, s{eA}, {i*1024}")
        a(f"buffer_load_dwordx4 v{gL16}, {sr(eWO,4)}, s{eC2} offen offset:{(i%4)*1024} lds")
    a(f"v_and_b32 v21, 1, v{R}")
    a(f"v_lshlrev_b32 v21, 2, v21")
    a(f"v_lshrrev_b32 v22, 3, v{N}")
    a(f"v_lshl_add_u32 v21, v22, 1, v21")
    a(f"v_and_b32 v22, 1, v{N}")
    a(f"v_add_u32 v21, v21, v22")
    a(f"v_lshlrev_b32 v{gKM}, 7, v{G_}")
    a(f"v_lshl_add_u32 v{gKM}, v21, 4, v{gKM}")
    a(f"v_lshrrev_b32 v21, 1, v{G_}")
    a(f"v_and_b32 v22, 1, v{G_}")
    a(f"v_lshlrev_b32 v{gOW}, 8, v21")
    a(f"v_lshl_add_u32 v{gOW}, v{N}, 4, v{gOW}")
    a(f"v_lshl_add_u32 v{gOW}, v22, 3, v{gOW}")
    a(f"s_and_b32 s{eC2}, s{sW}, 1")
    a(f"s_lshl_b32 s{eD}, s{eC2}, 10")
    a(f"s_lshr_b32 s{sTMP}, s{sW}, 1")
    a(f"s_lshl_b32 s{sTMP}, s{sTMP}, 12")
    a(f"s_add_u32 s{eD}, s{eD}, s{sTMP}")
    a(f"v_add_u32 v{gOW}, s{eD}, v{gOW}")
    a(f"v_lshlrev_b32 v{gPS}, 6, v{N}")
    a(f"v_lshl_add_u32 v{gPS}, v{G_}, 4, v{gPS}")
    a(f"s_mov_b32 s{sTMP}, 40960")
    a(f"v_mul_lo_u32 v{gRD}, v{G_}, s{sTMP}")
    a(f"v_lshl_add_u32 v{gRD}, v{N}, 4, v{gRD}")
    a(f"s_movk_i32 s{sTMP}, 1280")
    a(f"v_mul_lo_u32 v{gOUT}, v{R}, s{sTMP}")
    a(f"v_lshl_add_u32 v{gOUT}, v{C}, 4, v{gOUT}")
    a(f"v_lshl_add_u32 v{gOUT}, v{G_}, 3, v{gOUT}")
    a(f"v_and_b32 v21, 7, v{N}")
    a(f"v_mov_b32 v22, 0x3F80")
    a(f"v_mov_b32 v23, 0x3F800000")
    for k in range(4): a(f"v_mov_b32 v{gSEL+k}, 0")
    for jj in range(8):
        a(f"v_cmp_eq_u32 vcc, {jj}, v21")
        a(f"v_cndmask_b32 v{gSEL + jj//2}, v{gSEL + jj//2}, v{22 + jj%2}, vcc")
    a(f"v_sub_u32 v21, v{R}, v{G_}")
    a(f"v_lshlrev_b32 v21, 3, v21")
    a(f"v_add_u32 v21, v21, v{C}")
    a(f"s_lshl_b32 s{sTMP}, s{eC2}, 2")
    a(f"v_add_u32 v21, s{sTMP}, v21")
    for k in range(8):
        a(f"v_cmp_le_i32 {sr(eMSK+2*k,2)}, {k}, v21")
    a(f"s_mov_b32 s{eC}, {fbits(128 ** -0.5 * 1.4426950408889634):#x}")
    a(f"s_mov_b32 s{eM32}, -1"); a(f"s_mov_b32 s{eM32+1}, 0")
    a(f"v_lshlrev_b32 v21, 3, v{G_}")
    a(f"v_add_u32 v21, v21, v{R}")
    a(f"s_movk_i32 s{sTMP}, 1280")
    a(f"v_mul_lo_u32 v21, v21, s{sTMP}")
    a(f"v_lshl_add_u32 v21, v{C}, 4, v21")
    a(f"s_mul_i32 s{sTMP}, s{sW}, 320")
    a(f"v_add_u32 v21, s{sTMP}, v21")
    a.wait_vm0()
    a("s_barrier")
    for kp in range(4):
        if kp: a(f"v_add_u32 v21, {32*1280}, v21")
        for p in range(5):
            for tile in range(2):
                f = WOF + ((p * 2 + tile) * 4 + kp) * 4
                for hh in range(2):
                    a(f"ds_read_b64_tr_b16 {vr(f + 2*hh, 2)}, v21 offset:{4*hh*1280 + p*64 + tile*8}")
    a.wait_lg0()
    a("s_barrier")
    a(f"s_lshl_b32 s{eEPR}, s{eE}, 22")
    a(f"s_add_u32 s{eEPR}, s{eEPR}, {EP:#x}")
    a(f"s_mul_i32 s{eEPW}, s{eH}, 40960")
    a(f"s_mul_i32 s{sTMP}, s{sW}, 5120")
    a(f"s_add_u32 s{eEPW}, s{eEPW}, s{sTMP}")
    a(f"s_add_u32 s{eEPW}, s{eEPW}, s{eEPR}")
    a(f"s_mov_b32 s{eSEG}, s{eE}")
    a(f"s_mov_b32 s{eIT}, 0")

def engine_loop(a, nE, standalone=False):
    a.label("L_en_loop")
    a(f"s_cmp_ge_u32 s{eSEG}, 64")
    a(f"s_cbranch_scc1 L_end")
    if not standalone:
        blk_of_seg(a, eSEG, eA)
        a(f"s_lshl_b32 s{eA}, s{eA}, 2")
        a(f"s_add_u32 s{eA}, s{eA}, {D_BLK}")
        a(f"s_mov_b32 s{eB}, 32")
        wait_ctr(a, "L_en_w1", eA, eB, gT0, gT1)
    a(f"s_lshl_b32 s{eA}, s{eSEG}, 5")
    a(f"s_add_u32 s{eA}, s{eA}, s{eH}")
    a(f"s_lshl_b32 s{eB}, s{eA}, 11")
    a(f"s_lshl_b32 s{eA}, s{eA}, 13")
    a(f"s_add_u32 s{eT}, s{eA}, 4096")
    hk = []
    for k in range(8):
        hk.append(a(f"buffer_load_dwordx4 {vr(KX+4*k,4)}, v{gL16}, {sr(sWS,4)}, s{eA if k < 4 else eT} offen offset:{(k%4)*1024} sc1"))
    a(f"s_and_b32 s{sTMP}, s{sW}, 1")
    a(f"s_lshl_b32 s{sTMP}, s{sTMP}, 10")
    a(f"s_add_u32 s{eT+1}, s{eA}, s{sTMP}")
    a(f"s_add_u32 s{eT+1}, s{eT+1}, {QXI:#x}")
    a(f"s_add_u32 s{eT+2}, s{eT+1}, 4096")
    hq = [a(f"buffer_load_dwordx4 {vr(QF+4*k,4)}, v{gL16}, {sr(sWS,4)}, s{eT+1+k//2} offen offset:{(k%2)*2048} sc1") for k in range(4)]
    a(f"s_lshr_b32 s{sTMP}, s{sW}, 1")
    a(f"s_lshl_b32 s{eT+4}, s{sTMP}, 10")
    a(f"s_lshl_b32 s{sTMP}, s{sTMP}, 12")
    a(f"s_add_u32 s{eT+3}, s{eA}, s{sTMP}")
    a(f"s_add_u32 s{eT+3}, s{eT+3}, {VXI:#x}")
    hv = [a(f"buffer_load_dwordx4 {vr(VXF+4*k,4)}, v{gL16}, {sr(sWS,4)}, s{eT+3} offen offset:{k*1024} sc1") for k in range(4)]
    if not standalone:
        a(f"s_and_b32 s{eC2}, s{eSEG}, 3")
        a(f"s_lshl_b32 s{eC2}, s{eC2}, 2")
        a(f"s_add_u32 s{eC2}, s{eC2}, {D_KM}")
        a(f"s_lshr_b32 s{eD}, s{eSEG}, 2")
        a(f"s_add_u32 s{eD}, s{eD}, 1")
        a(f"s_lshl_b32 s{eD}, s{eD}, 6")
        wait_ctr(a, "L_en_w2", eC2, eD, gT0, gT1, sleep=4)
    a(f"s_add_u32 s{eT+5}, s{eB}, {KMI:#x}")
    hm = [a(f"buffer_load_dwordx4 {vr(KMF+4*k,4)}, v{gKM}, {sr(sWS,4)}, s{eT+5} offen offset:{k*512} sc1") for k in range(4)]
    a(f"s_add_u32 s{eT+4}, s{eT+4}, s{eB}")
    a(f"s_add_u32 s{eT+4}, s{eT+4}, {VMI:#x}")
    for k in range(4): a(f"v_accvgpr_write_b32 a{97+2*k}, 0")
    hvm = [a(f"buffer_load_dword a{96+2*k}, v{gL4}, {sr(sWS,4)}, s{eT+4} offen offset:{k*256} sc1") for k in range(4)]
    SA = 104
    for k in range(4):
        a.wait(hk[2*k+1], hq[k])
        c = lambda d: "0" if k == 0 else ar(d, 4)
        a(f"v_mfma_f32_16x16x32_bf16 {ar(SA,4)}, {vr(KX+8*k,4)}, {vr(QF+4*k,4)}, {c(SA)}")
        a(f"v_mfma_f32_16x16x32_bf16 {ar(SA+4,4)}, {vr(KX+8*k+4,4)}, {vr(QF+4*k,4)}, {c(SA+4)}")
    for k in range(4):
        a.wait(hm[k])
        a(f"v_mfma_f32_16x16x32_bf16 {ar(SA+8,4)}, {vr(KMF+4*k,4)}, {vr(QF+4*k,4)}, {'0' if k == 0 else ar(SA+8,4)}")
    S = [KX + i for i in range(10)]
    a(f"v_mov_b32 v{gT2}, 0xf149f2ca")
    for i in range(10): a(f"v_accvgpr_read_b32 v{S[i]}, a{SA+i}")
    for i in range(8): a(f"v_cndmask_b32 v{S[i]}, v{gT2}, v{S[i]}, {sr(eMSK+2*i,2)}")
    M, M2 = gT0, gT1
    a(f"v_max3_f32 v{M}, v{S[0]}, v{S[1]}, v{S[2]}")
    a(f"v_max3_f32 v{M2}, v{S[3]}, v{S[4]}, v{S[5]}")
    a(f"v_max3_f32 v{M}, v{M}, v{S[6]}, v{S[7]}")
    a(f"v_max3_f32 v{M2}, v{M2}, v{S[8]}, v{S[9]}")
    a(f"v_max_f32 v{M}, v{M}, v{M2}")
    a(f"v_mov_b32 v{M2}, v{M}")
    a(f"v_permlane16_swap_b32 v{M}, v{M2}")
    a(f"v_max_f32 v{M}, v{M}, v{M2}")
    a(f"v_mov_b32 v{M2}, v{M}")
    a(f"v_permlane32_swap_b32 v{M}, v{M2}")
    a(f"v_max_f32 v{M}, v{M}, v{M2}")
    a(f"v_mul_f32 v{M}, s{eC}, v{M}")
    for s_ in S: a(f"v_fma_f32 v{s_}, v{s_}, s{eC}, -v{M}")
    for s_ in S: a(f"v_exp_f32 v{s_}, v{s_}")
    P = KX + 12; PM = KX + 16
    for k in range(5): a(f"v_cvt_pk_bf16_f32 v{P+k}, v{S[2*k]}, v{S[2*k+1]}")
    a(f"v_mov_b32 v{PM+1}, 0")
    Ls = gT0
    a(f"v_add_f32 v{Ls}, v{S[0]}, v{S[1]}")
    for i in range(2, 10): a(f"v_add_f32 v{Ls}, v{Ls}, v{S[i]}")
    DO = QF; DM = KMF
    a.wait(hv, hvm)
    for t in range(4):
        a(f"v_mfma_f32_16x16x32_bf16 {vr(DO+4*t,4)}, {vr(VXF+4*t,4)}, {vr(P,4)}, 0")
    for t in range(4):
        a(f"v_mfma_f32_16x16x16_bf16 {vr(DM+4*t,4)}, {ar(96+2*t,2)}, {vr(PM,2)}, 0")
    a(f"v_mov_b32 v{M2}, v{Ls}")
    a(f"v_permlane16_swap_b32 v{Ls}, v{M2}")
    a(f"v_add_f32 v{Ls}, v{Ls}, v{M2}")
    a(f"v_mov_b32 v{M2}, v{Ls}")
    a(f"v_permlane32_swap_b32 v{Ls}, v{M2}")
    a(f"v_add_f32 v{Ls}, v{Ls}, v{M2}")
    a(f"v_rcp_f32 v{Ls}, v{Ls}")
    for t in range(4):
        for r in range(4):
            a(f"v_add_f32 v{DO+4*t+r}, v{DO+4*t+r}, v{DM+4*t+r}")
            a(f"v_mul_f32 v{DO+4*t+r}, v{DO+4*t+r}, v{Ls}")
        a(f"v_cvt_pk_bf16_f32 v{DO+4*t}, v{DO+4*t}, v{DO+4*t+1}")
        a(f"v_cvt_pk_bf16_f32 v{DO+4*t+1}, v{DO+4*t+2}, v{DO+4*t+3}")
        a(f"ds_write_b64 v{gOW}, {vr(DO+4*t,2)} offset:{L_OI + (t>>1)*2048 + (t&1)*512}")
    a.wait_lg0()
    a("s_barrier")
    OF = KX
    ho = [a(f"ds_read_b128 {vr(OF+4*i,4)}, v{gL16} offset:{L_OI + i*1024}") for i in range(8)]
    n = 0
    for p in range(5):
        for kp in range(4):
            for aa in range(2):
                a.wait(ho[kp*2 + aa])
                for tile in range(2):
                    d = ((p * 2 + aa) * 2 + tile) * 4
                    f = WOF + ((p * 2 + tile) * 4 + kp) * 4
                    a(f"v_mfma_f32_16x16x32_bf16 {ar(d,4)}, {vr(f,4)}, {vr(OF+4*(kp*2+aa),4)}, {'0' if kp == 0 else ar(d,4)}")
    a(f"s_add_u32 s{eT}, s{eEPW}, 4096")
    a(f"s_add_u32 s{eT+1}, s{eEPW}, 20480")
    a(f"s_add_u32 s{eT+2}, s{eEPW}, {20480+4096}")
    for p in range(5):
        for aa in range(2):
            t = QF + (n % 4) * 12; n += 1
            d = (p * 2 + aa) * 8
            for r in range(8): a(f"v_accvgpr_read_b32 v{t+4+r}, a{d+r}")
            for k in range(4): a(f"v_cvt_pk_bf16_f32 v{t+k}, v{t+4+2*k}, v{t+5+2*k}")
            so = [[eEPW, eT], [eT+1, eT+2]][aa][p // 4]
            a(f"buffer_store_dwordx4 {vr(t,4)}, v{gPS}, {sr(sWS,4)}, s{so} offen offset:{(p%4)*1024}")
    a.wait_vm0()
    a("s_barrier")
    a(f"s_lshl_b32 s{eA}, s{eE}, 2")
    a(f"s_add_u32 s{eA}, s{eA}, {D_ENG}")
    a(f"s_cmp_lg_u32 s{sW}, 0")
    a(f"s_cbranch_scc1 L_en_nosig")
    a(f"v_mov_b32 v{gT0}, s{eA}")
    a(f"v_mov_b32 v{gT1}, 1")
    a(f"s_mov_b64 exec, 1")
    a(f"global_atomic_add v{gT0}, v{gT1}, {sr(sDBG,2)} sc1")
    a(f"s_mov_b64 exec, -1")
    a.label("L_en_nosig")
    a(f"s_add_u32 s{eIT}, s{eIT}, 1")
    a(f"s_lshl_b32 s{eB}, s{eIT}, 5")
    wait_ctr(a, "L_en_w3", eA, eB, gT0, gT1, sleep=2)
    a(f"s_lshl_b32 s{eJ}, s{eH}, 2")
    a(f"s_add_u32 s{eJ}, s{eJ}, s{sW}")
    a.label("L_en_job")
    a(f"s_lshl_b32 s{eA}, s{eJ}, 8")
    a(f"s_add_u32 s{eA}, s{eA}, s{eEPR}")
    hs = []
    for i in range(8):
        hs.append(a(f"buffer_load_dwordx4 {vr(KX+4*i,4)}, v{gRD}, {sr(sWS,4)}, s{eA} offen sc1"))
        if i < 7: a(f"s_add_u32 s{eA}, s{eA}, {4*40960}")
    a(f"s_lshr_b32 s{eB}, s{eJ}, 2")
    a(f"s_cmp_ge_u32 s{eB}, 20")
    a(f"s_cselect_b32 s{eC2}, 4, 0")
    a(f"s_cselect_b32 s{eD}, 20, 0")
    a(f"s_sub_u32 s{eB}, s{eB}, s{eD}")
    a(f"s_and_b32 s{eD}, s{eJ}, 3")
    a(f"s_lshl_b32 s{eD}, s{eD}, 3")
    a(f"s_add_u32 s{eC2}, s{eC2}, s{eD}")
    a(f"s_lshl_b32 s{eD}, s{eSEG}, 5")
    a(f"s_add_u32 s{eC2}, s{eC2}, s{eD}")
    a(f"s_mul_i32 s{eC2}, s{eC2}, 1280")
    a(f"s_lshl_b32 s{eB}, s{eB}, 6")
    a(f"s_add_u32 s{eC2}, s{eC2}, s{eB}")
    D = QF
    for i in range(8):
        a.wait(hs[i])
        a(f"v_mfma_f32_16x16x32_bf16 {vr(D,4)}, {vr(gSEL,4)}, {vr(KX+4*i,4)}, {'0' if i == 0 else vr(D,4)}")
    a(f"v_cvt_pk_bf16_f32 v{D}, v{D}, v{D+1}")
    a(f"v_cvt_pk_bf16_f32 v{D+1}, v{D+2}, v{D+3}")
    a(f"s_mov_b64 exec, {sr(eM32,2)}")
    a(f"buffer_store_dwordx2 {vr(D,2)}, v{gOUT}, {sr(eOUT,4)}, s{eC2} offen")
    a(f"s_mov_b64 exec, -1")
    a(f"s_add_u32 s{eJ}, s{eJ}, 128")
    a(f"s_cmp_lt_u32 s{eJ}, 160")
    a(f"s_cbranch_scc1 L_en_job")
    a(f"s_xor_b32 s{eEPW}, s{eEPW}, 0x200000")
    a(f"s_xor_b32 s{eEPR}, s{eEPR}, 0x200000")
    a(f"s_add_u32 s{eSEG}, s{eSEG}, {nE}")
    a(f"s_branch L_en_loop")
```

```python
from asmlib import *
from team9 import KXI, VXI, QXI, sWS, sDBG, sW, sTMP

pX = 8; pQ = 12; pK = 28; pV = 32
pTB, pH = 36, 37
pXO, pWO = 38, 39
pLD = 40
pOUT = 41
pT2 = 42
pLX = 43
qL16, qXS0, qXS1, qWS = 0, 1, 2, 3
qAD = 4
qXSW = 13
qT0, qT1, qT2, qT3 = 128, 129, 130, 131
XF = 16
WF = 80
SZ = 32768
XOFF = 0; WOFF = 8192
NB = 5

def srd(a, dst, karg_off, nbytes):
    a(f"s_load_dwordx2 {sr(dst,2)}, s[0:1], {karg_off}")
    a(f"s_waitcnt lgkmcnt(0)")
    a(f"s_and_b32 s{dst+1}, s{dst+1}, 0xffff")
    a(f"s_mov_b32 s{dst+2}, {nbytes}")
    a(f"s_mov_b32 s{dst+3}, 0x00020000")

def proj_setup(a):
    srd(a, pX, 0, 2621440); srd(a, pQ, 16, 5242880); srd(a, pK, 24, 5242880); srd(a, pV, 32, 5242880)
    L = 132; U = 133; U2 = 134
    a(f"v_and_b32 v{L}, 63, v0")
    a(f"v_lshlrev_b32 v{qL16}, 4, v{L}")
    a(f"v_lshrrev_b32 v{qT0}, 2, v{L}")
    a(f"s_movk_i32 s{sTMP}, 1280")
    a(f"v_mul_lo_u32 v{qT0}, v{qT0}, s{sTMP}")
    a(f"v_and_b32 v{qT1}, 3, v{L}")
    a(f"v_lshrrev_b32 v{qT2}, 5, v{L}")
    for i, d in enumerate((qXS0, qXS1)):
        a(f"v_add_u32 v{U}, {2*i}, v{qT2}")
        a(f"v_sub_u32 v{U}, 0, v{U}")
        a(f"v_and_b32 v{U}, 3, v{U}")
        a(f"v_xor_b32 v{U}, v{U}, v{qT1}")
        a(f"v_lshl_add_u32 v{d}, v{U}, 4, v{qT0}")
    a(f"s_bitcmp1_b32 s{sW}, 0")
    a(f"s_cselect_b64 vcc, -1, 0")
    a(f"v_cndmask_b32 v{qXSW}, v{qXS0}, v{qXS1}, vcc")
    a(f"v_lshrrev_b32 v{qT0}, 4, v{L}")
    a(f"v_and_b32 v{qT1}, 15, v{L}")
    a(f"v_lshlrev_b32 v{qT2}, 2, v{qT0}")
    a(f"v_xor_b32 v{qT2}, v{qT2}, v{qT1}")
    a(f"v_lshlrev_b32 v{qWS}, 13, v{qT0}")
    a(f"v_lshl_add_u32 v{qWS}, v{qT2}, 4, v{qWS}")
    a(f"v_lshrrev_b32 v{qT2}, 2, v{qT1}")
    a(f"v_and_b32 v{qT3}, 3, v{qT1}")
    a(f"v_lshlrev_b32 v{qAD}, 9, v{qT2}")
    a(f"v_lshl_add_u32 v{qAD}, v{qT3}, 6, v{qAD}")
    a(f"v_sub_u32 v{U}, 0, v{qT2}")
    a(f"v_and_b32 v{U}, 3, v{U}")
    a(f"v_xor_b32 v{U}, v{U}, v{qT0}")
    a(f"v_lshl_add_u32 v{qAD}, v{U}, 4, v{qAD}")
    a(f"v_lshlrev_b32 v{U}, 3, v{qT0}")
    a(f"v_add_u32 v{U}, v{U}, v{qT2}")
    a(f"v_lshlrev_b32 v{U}, 8, v{U}")
    a(f"v_xor_b32 v{U2}, s{sW}, v{qT2}")
    a(f"v_lshl_add_u32 v{U}, v{U2}, 6, v{U}")
    a(f"v_lshl_add_u32 v{qAD+1}, v{qT3}, 4, v{U}")
    a(f"v_lshl_add_u32 v{qAD+2}, v{qT3}, 3, v{U}")
    for b in range(1, 3):
        for k in range(3): a(f"v_add_u32 v{qAD+3*b+k}, {b*65536}, v{qAD+k}")

def proj_task(a, sfx, opts=(), nseg=4):
    a(f"s_mul_i32 s{pXO}, s{pTB}, {32*1280}")
    if nseg == 4:
        a(f"s_mul_i32 s{sTMP}, s{sW}, {32*1280}")
        a(f"s_lshl_b32 s{pLX}, s{sW}, 11")
    else:
        a(f"s_and_b32 s{pLX}, s{sW}, {3 if nseg == 2 else 1}")
        a(f"s_mul_i32 s{sTMP}, s{pLX}, {16*1280}")
        a(f"s_lshl_b32 s{pLX}, s{pLX}, 10")
    a(f"s_add_u32 s{pXO}, s{pXO}, s{sTMP}")
    a(f"s_lshl_b32 s{pWO}, s{pH}, 8")
    a(f"s_lshl_b32 s{sTMP}, s{sW}, 16")
    a(f"s_add_u32 s{pWO}, s{pWO}, s{sTMP}")
    a(f"s_lshl_b32 s{pLD}, s{sW}, 11")
    hd = {}
    def dma_list(st):
        buf = (st % NB) * SZ
        out = []
        for m in range(2 if nseg == 4 else 1):
            out.append((f"s_add_u32 m0, s{pLX}, {buf + XOFF + m*1024}", f"s_add_u32 s{pT2}, s{pXO}, {m*16*1280 + st*64}",
                        f"buffer_load_dwordx4 v{qXS0+m if nseg == 4 else qXSW}, {sr(pX,4)}, s{pT2} offen lds"))
        for mi, sd in ((1, pK), (2, pV), (0, pQ)):
            for m in range(2):
                out.append((f"s_add_u32 m0, s{pLD}, {buf + WOFF + mi*8192 + m*1024}", f"s_add_u32 s{pT2}, s{pWO}, {(st*32 + m*4)*8192}",
                            f"buffer_load_dwordx4 v{qWS}, {sr(sd,4)}, s{pT2} offen lds"))
        return [(st, t) for t in out]
    def emit_dma(item):
        st, t = item
        a(t[0]); a(t[1]); hd[st] = a(t[2])
    def read_list(st):
        buf = (st % NB) * SZ; s_ = st % 2
        out = []
        def ad(k, off):
            o = buf + off
            return f"v{qAD + 3*(o // 65536) + k} offset:{o % 65536}"
        for mat in range(3):
            for tile in range(2):
                f = WF + s_ * 24 + (mat * 2 + tile) * 4
                for hh in range(2):
                    off = WOFF + mat * 8192 + 4 * hh * 256 + (tile * 8 if mat < 2 else tile * 32)
                    out.append(f"ds_read_b64_tr_b16 {vr(f + 2*hh, 2)}, {ad(1 if mat < 2 else 2, off)}")
            if mat == 0:
                for sg in range(nseg):
                    for aa in range(2):
                        f = XF + s_ * 32 + (sg * 2 + aa) * 4
                        out.append(f"ds_read_b128 {vr(f,4)}, {ad(0, XOFF + sg*2048 + aa*256)}")
        return out
    acc = lambda mat, tile, sg, aa: ((mat * 2 + tile) * 8 + sg * 2 + aa) * 4
    rper = {4: lambda n: 1 if n % 2 == 0 else 0, 2: lambda n: 1 if n % 4 else 0, 1: lambda n: 2 if n <= 4 else 1}[nseg]
    dper = {4: lambda n: 1 if n % 5 == 1 else 0, 2: lambda n: 1 if n % 3 == 1 else 0, 1: lambda n: 1 if n % 3 else 0}[nseg]
    for st in range(NB):
        for it in dma_list(st): emit_dma(it)
    for mt in range(6):
        for r in range(8 * nseg): a(f"v_accvgpr_write_b32 a{mt*32 + r}, 0")
    a.wait(hd[0])
    a("s_barrier")
    for t in read_list(0): a(t)
    for st in range(20):
        a.wait_lg0()
        if st + 1 < 20: a.wait(hd[st + 1])
        a("s_barrier")
        rl = read_list(st + 1) if st + 1 < 20 else []
        dl = dma_list(st + NB) if st + NB < 20 and "nodma" not in opts else []
        if "nodma" in opts and st + NB < 20: hd[st + NB] = None
        s_ = st % 2
        n = 0
        for mat in range(3):
            for tile in range(2):
                wf = WF + s_ * 24 + (mat * 2 + tile) * 4
                for sg in range(nseg):
                    for aa in range(2):
                        xf = XF + s_ * 32 + (sg * 2 + aa) * 4
                        d = ar(acc(mat, tile, sg, aa), 4)
                        if mat < 2: a(f"v_mfma_f32_16x16x32_bf16 {d}, {vr(wf,4)}, {vr(xf,4)}, {d}")
                        else: a(f"v_mfma_f32_16x16x32_bf16 {d}, {vr(xf,4)}, {vr(wf,4)}, {d}")
                        n += 1
                        for _ in range(rper(n)):
                            if rl: a(rl.pop(0))
                        for _ in range(dper(n)):
                            if dl: emit_dma(dl.pop(0))
        assert not rl and not dl
    if "st" in opts: a("s_memrealtime s[94:95]")
    a(f"s_lshl_b32 s{pOUT}, s{pTB}, 5")
    a(f"s_add_u32 s{pOUT}, s{pOUT}, s{pH}")
    a(f"s_lshl_b32 s{pOUT}, s{pOUT}, 13")
    a(f"s_lshl_b32 s{sTMP}, s{sW}, 11")
    a(f"s_add_u32 s{pOUT}, s{pOUT}, s{sTMP}")
    n = 0
    for mat, base in ((1, KXI), (0, QXI), (2, VXI)):
        for sg in range(nseg):
            a(f"s_add_u32 s{pT2}, s{pOUT}, {base + sg*32*8192:#x}")
            for o in range(2):
                t = XF + (n % 4) * 12; n += 1
                srcs = [acc(mat, 0, sg, o), acc(mat, 1, sg, o)] if mat < 2 else [acc(mat, o, sg, 0), acc(mat, o, sg, 1)]
                for k, s_ in enumerate(srcs):
                    for r in range(4): a(f"v_accvgpr_read_b32 v{t + 4 + 4*k + r}, a{s_ + r}")
                for k in range(4):
                    a(f"v_cvt_pk_bf16_f32 v{t + k}, v{t + 4 + 2*k}, v{t + 5 + 2*k}")
                a(f"buffer_store_dwordx4 {vr(t,4)}, v{qL16}, {sr(sWS,4)}, s{pT2} offen offset:{o*1024} {'' if 'plain' in opts else 'sc1'}")
    a.wait_vm0()
    a("s_barrier")
```

```python
from asmlib import *
import struct

KXI   = 0x0000000
VXI   = 0x1000000
QXI   = 0x2000000
KMI   = 0x3000000
VMI   = 0x3400000
PB    = 0x4000000
PST = 10240 + 128
PBX = 0x80000
IMGL  = 0x4100000
IMGR  = 0x4140000
TB    = 0x4120000
PROBE = 0x4160000
STAMP = 0x5000000
WS_BYTES = 268435456

L_IA = 0
L_IB = 10240
L_T  = 20480
L_O  = 22528
L_KV = 24576
NKV = 4
KVD = 2
LDS_BYTES = 163840

vL16, vA, vGW, vAV, vRD, vPB, vPS, vIDX = 0, 1, 2, 3, 4, 5, 6, 7
vID0 = 8; vGG = 10; vSA = 11
vXA = 188
vBLK = 190
vBA = 191
vKMW = 189
vTW, vTQ, vTK, vOW = 12, 13, 14, 15
vAG = 16
vKL, vKR, vVX = 19, 20, 21
vL4 = 22
vCK = 23
vT0, vT1, vT2, vT3 = 24, 25, 26, 27
ZQ, ZK, V = 28, 32, 36
GL = 40
AR = 52
KXR = 84
TLQ, TLK, TRQ, TRK = 116, 124, 132, 140
VXR = 148
D3 = 152
TT = 164
DO = 168
PP = 172
VP = 178
XR = 180
vSEL4 = 184
RESV0 = 192
ACC = [AR, AR + 4, AR + 8, AR + 12, AR + 16]
AO = AR + 20
RL = TLQ

sWS = 4; sRA = 8; sDBG = 16
sXCC, sH, sW, sSTEP, sSPIN = 18, 19, 20, 21, 22
sTMP = 23
sX, sR, sU = 24, 25, 26
sKX, sVX, sKM, sVM = 28, 29, 30, 31
sPB0 = 32
sHASJ = 33
sRD = 34
sJL, sJR = 42, 43
sGL, sGR = 44, 45
sTBW, sTBR = 46, 47
sMLO = 48; sMHI = 50; sMPB = 52
sTAG0, sTAG1 = 54, 55
sONE = 56
sC = 58
sSLOT = 59
sKVW, sKVR = 60, 61
sT2, sT3, sT4, sT5 = 62, 63, 64, 65
sSTAMP = 66
sM40 = 68
sGL1, sGL2 = 70, 71
sPT = 72
sKSEG = 76
sKVM = 67
sTM = 84
SPIN_MAX = 200000

def fbits(x):
    return struct.unpack("<I", struct.pack("<f", x))[0]

OPS = [(m, i) for m in "qkv" for i in range(10)] + [("WO", c, j) for c in range(5) for j in range(2)]
PL = {}
for n, op in enumerate(OPS):
    PL[op] = ("a", n * 8) if n < 32 else ("v", RESV0 + (n - 32) * 8)

def breg(op):
    p = PL[op]
    return ar(p[1], 8) if p[0] == "a" else vr(p[1], 8)

class Team:
    def __init__(self, a, stamps=False, opts=()):
        self.a = a
        self.stamps = stamps
        self.opts = set(opts)
    def opt(self, name, default):
        o = [x for x in self.opts if x.startswith(name + "=")]
        return int(o[0][len(name) + 1:]) if o else default
    def smf(self, op, D, A):
        self.a(f"v_smfmac_f32_16x16x64_bf16 {vr(D,4)}, {vr(A,4)}, {breg(op)}, v{vIDX}")
    def stamp(self, i):
        sel = [o for o in self.opts if o.startswith("st=")]
        names = sel[0][3:].split("/") if sel else ["0", "1", "2", "3", "4", "5", "6", "7"]
        if str(i) not in names or not self.stamps: return
        self.a(f"s_memtime {sr(sTM + 2*names.index(str(i)), 2)}")
    def srd(self, dst, karg_off, nbytes):
        a = self.a
        a(f"s_load_dwordx2 {sr(dst,2)}, s[0:1], {karg_off}")
        a(f"s_waitcnt lgkmcnt(0)")
        a(f"s_and_b32 s{dst+1}, s{dst+1}, 0xffff")
        a(f"s_mov_b32 s{dst+2}, {nbytes}")
        a(f"s_mov_b32 s{dst+3}, 0x00020000")

    def setup(self):
        a = self.a
        L, N, Gg, Tt, TH = 100, 101, 102, 103, 104
        a(f"v_and_b32 v{L}, 63, v0")
        a(f"v_and_b32 v{N}, 15, v{L}")
        a(f"v_lshrrev_b32 v{Gg}, 4, v{L}")
        a(f"v_and_b32 v{Tt}, 7, v{L}")
        a(f"v_bfe_u32 v{TH}, v{L}, 3, 1")
        a(f"v_lshlrev_b32 v{vL16}, 4, v{L}")
        a(f"v_lshlrev_b32 v{vL4}, 2, v{L}")
        a(f"v_lshlrev_b32 v{vA}, 7, v{Gg}")
        a(f"v_lshl_add_u32 v{vA}, v{Tt}, 4, v{vA}")
        a(f"s_mul_i32 s{sTMP}, s{sW}, 2560")
        a(f"v_add_u32 v{vGW}, s{sTMP}, v{vA}")
        a(f"v_lshl_add_u32 v{vAV}, v{TH}, 9, v{vA}")
        for b in range(1, 4):
            a(f"s_add_u32 s{sTMP}, s{sW}, {b}")
            a(f"s_and_b32 s{sTMP}, s{sTMP}, 3")
            a(f"s_lshl_b32 s{sTMP}, s{sTMP}, 10")
            a(f"v_add_u32 v{vAG+b-1}, s{sTMP}, v{vL16}")
        a(f"s_movk_i32 s{sTMP}, {PST}")
        a(f"v_mul_lo_u32 v{vRD}, v{Gg}, s{sTMP}")
        a(f"v_lshl_add_u32 v{vRD}, v{N}, 3, v{vRD}")
        G1, G0 = 105, 106
        a(f"v_lshrrev_b32 v{G1}, 1, v{Gg}")
        a(f"v_and_b32 v{G0}, 1, v{Gg}")
        a(f"v_and_b32 v107, 3, v{L}")
        a(f"v_lshlrev_b32 v{vPB}, 4, v107")
        a(f"v_lshlrev_b32 v{vXA}, 3, v{L}")
        a(f"v_lshl_add_u32 v{vPB}, v{G1}, 7, v{vPB}")
        a(f"v_lshl_add_u32 v{vPB}, v{G0}, 3, v{vPB}")
        a(f"s_lshl_b32 s{sTMP}, s{sW}, 10")
        a(f"v_add_u32 v{vGG}, s{sTMP}, v{vL16}")
        a(f"v_lshrrev_b32 v{vSA}, 1, v{vGG}")
        a(f"v_lshlrev_b32 v{vPS}, 8, v{G0}")
        a(f"v_lshl_add_u32 v{vPS}, v{TH}, 7, v{vPS}")
        a(f"v_lshl_add_u32 v{vPS}, v{Tt}, 4, v{vPS}")
        a(f"v_lshl_add_u32 v{vPS}, v{G1}, 3, v{vPS}")
        a(f"v_mov_b32 v107, 0x8888")
        a(f"v_mov_b32 v108, 0xDDDD")
        a(f"v_cmp_eq_u32 vcc, 0, v{TH}")
        a(f"v_cndmask_b32 v{vIDX}, v108, v107, vcc")
        a(f"v_lshlrev_b32 v107, 2, v{Gg}")
        a(f"v_sub_u32 v107, v{N}, v107")
        a(f"v_mov_b32 v108, 0x3F80")
        a(f"v_mov_b32 v109, 0x3F800000")
        a(f"v_mov_b32 v{vID0}, 0")
        a(f"v_mov_b32 v{vID0+1}, 0")
        for jj in range(4):
            a(f"v_cmp_eq_u32 vcc, {jj}, v107")
            a(f"v_cndmask_b32 v{vID0 + jj//2}, v{vID0 + jj//2}, v{108 + jj%2}, vcc")
        a(f"s_mov_b32 s{sONE}, 0x3F80"); a(f"s_mov_b32 s{sONE+1}, 0")
        a(f"v_lshlrev_b64 {vr(vSEL4,2)}, v{vL16}, {sr(sONE,2)}")
        a(f"v_lshlrev_b64 {vr(vSEL4+2,2)}, v{vL16}, {sr(sONE,2)}")
        a(f"v_lshlrev_b32 v{vTW}, 4, v{N}")
        a(f"v_lshl_add_u32 v{vTW}, v{G1}, 8, v{vTW}")
        a(f"v_lshl_add_u32 v{vTW}, v{G0}, 3, v{vTW}")
        a(f"s_lshl_b32 s{sTMP}, s{sW}, 9")
        a(f"v_add_u32 v{vTW}, s{sTMP}, v{vTW}")
        a(f"v_lshlrev_b32 v{vKMW}, 4, v{Tt}")
        a(f"v_lshl_add_u32 v{vKMW}, v{G1}, 7, v{vKMW}")
        a(f"v_lshl_add_u32 v{vKMW}, v{G0}, 3, v{vKMW}")
        a(f"v_lshlrev_b32 v107, 8, v{Gg}")
        a(f"v_lshl_add_u32 v{vTQ}, v{Tt}, 4, v107")
        a(f"v_bfe_u32 v108, v{N}, 2, 1")
        a(f"v_lshlrev_b32 v108, 2, v108")
        a(f"v_lshl_add_u32 v108, v{TH}, 1, v108")
        a(f"v_and_b32 v109, 1, v{N}")
        a(f"v_add3_u32 v108, v108, v109, 8")
        a(f"v_lshl_add_u32 v{vTK}, v108, 4, v107")
        a(f"v_lshlrev_b32 v{vOW}, 7, v{G1}")
        a(f"v_lshl_add_u32 v{vOW}, v{Tt}, 4, v{vOW}")
        a(f"v_lshl_add_u32 v{vOW}, v{G0}, 3, v{vOW}")
        a(f"s_lshl_b32 s{sTMP}, s{sW}, 8")
        a(f"v_add_u32 v{vOW}, s{sTMP}, v{vOW}")
        a(f"v_mov_b32 v{VP+1}, 0")
        a(f"v_mov_b32 v{PP+5}, 0")
        a(f"s_mov_b32 s{sMLO}, 0x00FF00FF"); a(f"s_mov_b32 s{sMLO+1}, 0x00FF00FF")
        a(f"s_mov_b32 s{sMHI}, 0xFF00FF00"); a(f"s_mov_b32 s{sMHI+1}, 0xFF00FF00")
        a(f"s_mov_b32 s{sMPB}, 0x000F000F"); a(f"s_mov_b32 s{sMPB+1}, 0x000F000F")
        a(f"s_mov_b32 s{sM40}, -1"); a(f"s_mov_b32 s{sM40+1}, 0xFF")
        a(f"s_mov_b32 s{sC}, {fbits(128 ** -0.5 * 1.4426950408889634):#x}")
        a(f"s_and_b32 s{sU}, s{sR}, 1")
        a(f"s_lshr_b32 s{sH}, s{sR}, 1")
        a(f"s_lshl_b32 s{sTMP}, s{sX}, 4")
        a(f"s_add_u32 s{sH}, s{sH}, s{sTMP}")
        a(f"s_lshl_b32 s{sKX}, s{sH}, 13")
        a(f"s_lshl_b32 s{sTMP}, s{sU}, 12")
        a(f"s_add_u32 s{sVX}, s{sKX}, s{sTMP}")
        a(f"s_lshl_b32 s{sTMP}, s{sW}, 10")
        a(f"s_add_u32 s{sVX}, s{sVX}, s{sTMP}")
        a(f"s_add_u32 s{sVX}, s{sVX}, {VXI:#x}")
        a(f"s_lshl_b32 s{sTMP}, s{sW}, 11")
        a(f"s_add_u32 s{sKX}, s{sKX}, s{sTMP}")
        a(f"s_lshl_b32 s{sKM}, s{sH}, 11")
        a(f"s_lshl_b32 s{sTMP}, s{sU}, 10")
        a(f"s_add_u32 s{sKM}, s{sKM}, s{sTMP}")
        a(f"s_lshl_b32 s{sTMP}, s{sW}, 8")
        a(f"s_add_u32 s{sVM}, s{sKM}, s{sTMP}")
        a(f"s_add_u32 s{sVM}, s{sVM}, {VMI:#x}")
        a(f"s_add_u32 s{sKM}, s{sKM}, s{sTMP}")
        a(f"s_add_u32 s{sKM}, s{sKM}, {KMI:#x}")
        a(f"s_mul_i32 s{sPB0}, s{sR}, {PST}")
        a(f"s_mul_i32 s{sTMP}, s{sW}, 2560")
        a(f"s_add_u32 s{sPB0}, s{sPB0}, s{sTMP}")
        a(f"s_mul_i32 s{sT5}, s{sX}, {PBX}")
        a(f"s_add_u32 s{sT5}, s{sT5}, {PB:#x}")
        a(f"s_add_u32 s{sPB0}, s{sPB0}, s{sT5}")
        a(f"s_lshl_b32 s{sTMP}, s{sW}, 1")
        a(f"s_lshr_b32 s{sT2}, s{sR}, 4")
        a(f"s_add_u32 s{sTMP}, s{sTMP}, s{sT2}")
        a(f"s_cmp_le_u32 s{sTMP}, 4")
        a(f"s_cselect_b32 s{sHASJ}, 1, 0")
        a(f"s_cselect_b32 s{sTMP}, s{sTMP}, 4")
        a(f"s_sub_u32 s{sTMP}, 4, s{sTMP}")
        a(f"s_bfe_u32 s{sT2}, s{sR}, 0x20002")
        a(f"s_bfe_u32 s{sT3}, s{sR}, 0x10001")
        a(f"s_and_b32 s{sT4}, s{sR}, 1")
        a(f"s_mul_i32 s{sRD}, s{sT2}, 5")
        a(f"s_add_u32 s{sRD}, s{sRD}, s{sTMP}")
        a(f"s_lshl_b32 s{sRD}, s{sRD}, 9")
        a(f"s_add_u32 s{sRD}, s{sRD}, s{sT5}")
        a(f"s_lshl_b32 s{sT5}, s{sT3}, 8")
        a(f"s_add_u32 s{sRD}, s{sRD}, s{sT5}")
        a(f"s_lshl_b32 s{sT5}, s{sT4}, 7")
        a(f"s_add_u32 s{sRD}, s{sRD}, s{sT5}")
        for i in range(1, 8):
            a(f"s_add_u32 s{sRD+i}, s{sRD+i-1}, {4*PST}")
        a(f"s_lshl_b32 s{sJL}, s{sTMP}, 11")
        a(f"s_lshl_b32 s{sT5}, s{sT2}, 9")
        a(f"s_add_u32 s{sJL}, s{sJL}, s{sT5}")
        a(f"s_lshl_b32 s{sT5}, s{sT4}, 8")
        a(f"s_add_u32 s{sJL}, s{sJL}, s{sT5}")
        a(f"s_lshl_b32 s{sT5}, s{sT3}, 7")
        a(f"s_add_u32 s{sJR}, s{sJL}, s{sT5}")
        a(f"s_and_b32 s{sT5}, s{sJR}, 0x2000")
        a(f"s_add_u32 s{sJR}, s{sJR}, s{sT5}")
        a(f"s_lshl_b32 s{sT5}, s{sT3}, 6")
        a(f"s_add_u32 s{sJL}, s{sJL}, s{sT5}")
        a(f"s_lshl_b32 s{sT5}, s{sX}, 15")
        a(f"s_add_u32 s{sGL}, s{sT5}, {IMGL:#x}")
        a(f"s_add_u32 s{sGL1}, s{sGL}, 4096")
        a(f"s_add_u32 s{sGL2}, s{sGL}, 8192")
        a(f"s_add_u32 s{sJL}, s{sJL}, s{sGL}")
        a(f"s_lshl_b32 s{sT5}, s{sX}, 16")
        a(f"s_add_u32 s{sJR}, s{sJR}, {IMGR:#x}")
        a(f"s_add_u32 s{sGR}, s{sJR}, s{sT5}")
        a(f"s_xor_b32 s{sT5}, s{sT5}, 0x10000")
        a(f"s_add_u32 s{sJR}, s{sJR}, s{sT5}")
        a(f"s_mov_b32 s{sSLOT}, 32768")
        a(f"s_lshl_b32 s{sTBW}, s{sX}, 5")
        a(f"s_add_u32 s{sTBW}, s{sTBW}, s{sR}")
        a(f"s_lshl_b32 s{sTBW}, s{sTBW}, 11")
        a(f"s_add_u32 s{sTBW}, s{sTBW}, {TB:#x}")
        a(f"s_xor_b32 s{sTBR}, s{sTBW}, 0x800")
        a(f"s_mov_b32 s{sTAG0}, 0")
        a(f"s_mov_b32 s{sTAG1}, 0")
        a(f"s_mov_b32 s{sSTEP}, 0")
        a(f"s_mov_b32 s{sKSEG}, 0")
        a(f"v_mov_b32 v{vBLK}, 0")
        a(f"v_min_u32 v{vBA}, 92, v{vL4}")
        a(f"v_add_u32 v{vBA}, 64, v{vBA}")
        if self.stamps:
            a(f"s_lshl_b32 s{sTMP}, s{sX}, 5")
            a(f"s_add_u32 s{sTMP}, s{sTMP}, s{sR}")
            a(f"s_lshl_b32 s{sTMP}, s{sTMP}, 2")
            a(f"s_add_u32 s{sTMP}, s{sTMP}, s{sW}")
            a(f"s_lshl_b32 s{sSTAMP}, s{sTMP}, 13")
            a(f"s_add_u32 s{sSTAMP}, s{sSTAMP}, {STAMP:#x}")

    def init_buffers(self):
        a = self.a
        a(f"v_mov_b64 {vr(vT0,2)}, -1")
        for c in range(5):
            a(f"buffer_store_dwordx2 {vr(vT0,2)}, v{vPS}, {sr(sWS,4)}, s{sPB0} offen offset:{c*512}")
        a(f"buffer_store_dwordx2 {vr(vT0,2)}, v{vTW}, {sr(sWS,4)}, s{sTBW} offen")
        a(f"s_cmp_eq_u32 s{sHASJ}, 0")
        a(f"s_cbranch_scc1 L_team_noinit")
        a(f"s_mov_b64 exec, {sr(sMPB,2)}")
        a(f"v_mov_b64 {vr(vT2,2)}, -1")
        a(f"s_add_u32 s{sT2}, s{sJR}, 32768")
        a(f"buffer_store_dwordx2 {vr(vT0,2)}, v{vPB}, {sr(sWS,4)}, s{sJL} offen")
        a(f"s_mov_b64 exec, 0xFFFF")
        a(f"buffer_store_dwordx2 {vr(vT0,2)}, v{vXA}, {sr(sWS,4)}, s{sJR} offen sc1")
        a(f"buffer_store_dwordx2 {vr(vT0,2)}, v{vXA}, {sr(sWS,4)}, s{sT2} offen sc1")
        a(f"s_add_u32 s{sT2}, s{sT2}, 8192")
        a(f"s_add_u32 s{sT3}, s{sJR}, 8192")
        a(f"buffer_store_dwordx2 {vr(vT0,2)}, v{vXA}, {sr(sWS,4)}, s{sT2} offen sc1")
        a(f"buffer_store_dwordx2 {vr(vT0,2)}, v{vXA}, {sr(sWS,4)}, s{sT3} offen sc1")
        a(f"s_mov_b64 exec, -1")
        a.label("L_team_noinit")

    def arrive(self, dbg_off):
        a = self.a
        a.wait_all()
        a("s_barrier")
        a(f"s_cmp_lg_u32 s{sW}, 0")
        a(f"s_cbranch_scc1 L_ta_done")
        a(f"s_mov_b64 exec, 1")
        a(f"s_or_b32 s{sTMP}, s{sX}, s{sR}")
        a(f"s_cmp_lg_u32 s{sTMP}, 0")
        a(f"s_cbranch_scc1 L_noprobe")
        a(f"s_mov_b32 s{sT2}, 0")
        a(f"s_mov_b32 s{sT3}, 0")
        for rep in range(3):
            for hf in range(2):
                a(f"v_mov_b32 v{vT0}, {PROBE + hf*8192 + rep*256 + (rep%2)*4096:#x}")
                a(f"buffer_store_dword v{vT0}, v{vT0}, {sr(sWS,4)}, 0 offen sc1")
                a.wait_vm0()
                a(f"s_memtime {sr(sPT,2)}")
                a(f"s_waitcnt lgkmcnt(0)")
                a(f"buffer_load_dword v{vT1}, v{vT0}, {sr(sWS,4)}, 0 offen sc1")
                a.wait_vm0()
                a(f"s_memtime {sr(sPT+2,2)}")
                a(f"s_waitcnt lgkmcnt(0)")
                a(f"s_sub_u32 s{sTMP}, s{sPT+2}, s{sPT}")
                if rep: a(f"s_add_u32 s{sT2+hf}, s{sT2+hf}, s{sTMP}")
        a(f"s_cmp_lt_u32 s{sT3}, s{sT2}")
        a(f"s_cselect_b32 s{sTMP}, 0x2000, 0")
        if "far" in self.opts: a(f"s_xor_b32 s{sTMP}, s{sTMP}, 0x2000")
        a(f"v_mov_b32 v{vT0}, {dbg_off + 4}")
        a(f"v_mov_b32 v{vT1}, s{sTMP}")
        a(f"global_store_dword v{vT0}, v{vT1}, {sr(sDBG,2)} sc1")
        a.wait_vm0()
        a.label("L_noprobe")
        a(f"v_mov_b32 v{vT0}, {dbg_off}")
        a(f"v_mov_b32 v{vT1}, 1")
        a(f"global_atomic_add v{vT0}, v{vT1}, {sr(sDBG,2)} sc1")
        a(f"s_mov_b64 exec, -1")
        a.wait_vm0()
        a.label("L_ta_done")

    def wait_team(self, dbg_off):
        a = self.a
        a(f"v_mov_b32 v{vT0}, {dbg_off}")
        a(f"s_mov_b32 s{sSPIN}, 0")
        a.label(f"L_tw_poll")
        a(f"global_load_dword v{vT1}, v{vT0}, {sr(sDBG,2)} sc1")
        a(f"s_add_u32 s{sSPIN}, s{sSPIN}, 1")
        a(f"s_cmp_gt_u32 s{sSPIN}, {SPIN_MAX}")
        a(f"s_cbranch_scc1 L_fail")
        a.wait_vm0()
        a(f"v_readfirstlane_b32 s{sTMP}, v{vT1}")
        a(f"s_cmp_lt_u32 s{sTMP}, 64")
        a(f"s_cbranch_scc1 L_tw_poll")
        a(f"global_load_dword v{vT1}, v{vT0}, {sr(sDBG,2)} offset:4 sc1")
        a.wait_vm0()
        a(f"v_readfirstlane_b32 s{sTMP}, v{vT1}")
        a(f"s_and_b32 s{sTMP}, s{sTMP}, 0x2000")
        a(f"s_add_u32 s{sJR}, s{sJR}, s{sTMP}")
        a(f"s_add_u32 s{sGR}, s{sGR}, s{sTMP}")

    def load_weights(self):
        a = self.a
        TA = 40
        OUT = 104
        vW, vWo, vSN, vSO, vPSEL = 112, 113, 114, 115, 116
        vSB = 117
        vAD = [124, 125, 126, 127]
        NB = 5; SZ = 32768
        a(f"v_lshrrev_b32 v{vT0}, 7, v{vL16}")
        a(f"v_and_b32 v{vT1}, 0x70, v{vL16}")
        a(f"v_lshl_add_u32 v{vW}, v{vT0}, 13, v{vT1}")
        a(f"v_lshrrev_b32 v{vT0}, 8, v{vL16}")
        a(f"v_and_b32 v{vT1}, 0xF0, v{vL16}")
        a(f"s_movk_i32 s{sTMP}, 1280")
        a(f"v_mul_lo_u32 v{vWo}, v{vT0}, s{sTMP}")
        a(f"v_add_u32 v{vWo}, v{vWo}, v{vT1}")
        a(f"v_lshrrev_b32 v{vT2}, 5, v{vT1}")
        a(f"v_lshlrev_b32 v{vSN}, 2, v{vT2}")
        a(f"v_lshrrev_b32 v{vT2}, 1, v{vT0}")
        a(f"v_lshl_add_u32 v{vSN}, v{vT2}, 11, v{vSN}")
        a(f"v_and_b32 v{vT2}, 1, v{vT0}")
        a(f"v_lshl_add_u32 v{vSN}, v{vT2}, 9, v{vSN}")
        a(f"s_lshl_b32 s{sTMP}, s{sW}, 5")
        a(f"v_add_u32 v{vSN}, s{sTMP}, v{vSN}")
        a(f"v_mov_b32 v{vT2}, 0x05040100")
        a(f"v_mov_b32 v{vT3}, 0x07060302")
        a(f"v_and_b32 v{vPSEL}, 16, v{vL16}")
        a(f"v_cmp_eq_u32 vcc, 0, v{vPSEL}")
        a(f"v_cndmask_b32 v{vPSEL}, v{vT3}, v{vT2}, vcc")
        for b in range(4):
            a(f"s_add_u32 s{sTMP}, s{sW}, {b}")
            a(f"s_and_b32 s{sTMP}, s{sTMP}, 3")
            a(f"s_lshl_b32 s{sTMP}, s{sTMP}, 13")
            a(f"v_add_u32 v{vSB+b}, s{sTMP}, v{vSN}")
        a(f"v_lshrrev_b32 v{vT1}, 2, v{vT1}")
        a(f"v_lshl_add_u32 v{vSO}, v{vT0}, 10, v{vT1}")
        a(f"s_lshl_b32 s{sTMP}, s{sW}, 6")
        a(f"v_add_u32 v{vSO}, s{sTMP}, v{vSO}")
        sBQ, sBS, sBO, sLD = sT2, sT3, sT4, sT5
        a(f"s_lshl_b32 s{sBS}, s{sH}, 8")
        a(f"s_lshl_b32 s{sTMP}, s{sU}, 7")
        a(f"s_add_u32 s{sBS}, s{sBS}, s{sTMP}")
        a(f"s_mul_i32 s{sTMP}, s{sW}, {64*8192}")
        a(f"s_add_u32 s{sBQ}, s{sBS}, s{sTMP}")
        a(f"s_mul_i32 s{sTMP}, s{sW}, {32*8192}")
        a(f"s_add_u32 s{sBS}, s{sBS}, s{sTMP}")
        a(f"s_mul_i32 s{sBO}, s{sH}, 163840")
        a(f"s_mul_i32 s{sTMP}, s{sU}, {64*1280}")
        a(f"s_add_u32 s{sBO}, s{sBO}, s{sTMP}")
        a(f"s_mul_i32 s{sTMP}, s{sW}, {16*1280}")
        a(f"s_add_u32 s{sBO}, s{sBO}, s{sTMP}")
        a(f"s_lshl_b32 s{sLD}, s{sW}, 12")
        stages = [(m, i) for m in "qkv" for i in range(3)] + [("o", c) for c in range(5)]
        karg = {"q": 16, "k": 24, "v": 32, "o": 40}
        srds = {"q": 8, "k": 12, "v": 8, "o": 12}
        loaded = set()
        hd = {}
        def dma(n):
            kind, i = stages[n]
            if kind not in loaded:
                self.srd(srds[kind], karg[kind], 5242880); loaded.add(kind)
            buf = (n % NB) * SZ
            hs = []
            big = kind != "o" and i < 2
            for m in range(8 if big else 4):
                if big:
                    a(f"s_lshl_b32 m0, s{sLD}, 1")
                    a(f"s_add_u32 m0, m0, {buf + m*1024}")
                else:
                    a(f"s_add_u32 m0, s{sLD}, {buf + m*1024}")
                if kind == "o":
                    a(f"s_add_u32 s{sTMP}, s{sBO}, {4*m*1280 + i*256}")
                    hs.append(a(f"buffer_load_dwordx4 v{vWo}, {sr(srds[kind],4)}, s{sTMP} offen lds"))
                elif big:
                    a(f"s_add_u32 s{sTMP}, s{sBQ}, {(256*i + 8*m) * 8192}")
                    hs.append(a(f"buffer_load_dwordx4 v{vW}, {sr(srds[kind],4)}, s{sTMP} offen lds"))
                else:
                    a(f"s_add_u32 s{sTMP}, s{sBS}, {(512 + 8*m) * 8192}")
                    hs.append(a(f"buffer_load_dwordx4 v{vW}, {sr(srds[kind],4)}, s{sTMP} offen lds"))
            hd[n] = hs
        def combine(op, lo, hi):
            p = PL[op]
            for r in range(8):
                d = p[1] + r if p[0] == "v" else OUT + r
                a(f"v_perm_b32 v{d}, v{hi+r}, v{lo+r}, v{vPSEL}")
            if p[0] == "a":
                for r in range(8): a(f"v_accvgpr_write_b32 a{p[1]+r}, v{OUT+r}")
        AH = NB - 1
        for n in range(AH): dma(n)
        for n, (kind, i) in enumerate(stages):
            a.wait(hd[n])
            a.wait_lg0()
            a("s_barrier")
            if n + AH < len(stages): dma(n + AH)
            buf = (n % NB) * SZ
            if kind in "qkv":
                nb = 4 if i < 2 else 2
                hs = {}
                for b in range(nb):
                    if i < 2: a(f"v_add_u32 v{vAD[b]}, {buf}, v{vSB+b}")
                    else: a(f"v_add_u32 v{vAD[b]}, {buf + b*8192}, v{vSN}")
                for b in range(nb):
                    for hf in range(2):
                        for r in range(8):
                            hs[b] = a(f"ds_read_b32 v{TA + 16*b + 8*hf + r}, v{vAD[b]} offset:{(32*(r>>2) + (r&3) + 8*hf)*128}")
                    if b >= 1:
                        a.wait(hs[b-1])
                        combine((kind, 2*(b-1) + i if i < 2 else 8 + b - 1), TA + 16*(b-1), TA + 16*(b-1) + 8)
                b = nb
                a.wait(hs[b-1])
                combine((kind, 2*(b-1) + i if i < 2 else 8 + b - 1), TA + 16*(b-1), TA + 16*(b-1) + 8)
            else:
                a(f"v_add_u32 v{vAD[0]}, {buf}, v{vSO}")
                for j in range(2):
                    p = PL[("WO", i, j)]
                    for r in range(8):
                        a(f"ds_read_b32 {p[0]}{p[1]+r}, v{vAD[0]} offset:{(32*j + (r&3) + 16*(r>>2))*256}")
        a.wait_all()
        a("s_barrier")

    def kv_ready(self, lab):
        a = self.a
        from engine import blk_of_seg, D_BLK
        a(f"s_min_u32 s{sT2}, s{sKSEG}, 63")
        blk_of_seg(a, sT2, sT3)
        a(f"s_mov_b32 s{sSPIN}, 0")
        a.label(lab)
        a(f"v_cmp_le_u32 vcc, 32, v{vBLK}")
        a(f"s_nop 1")
        a(f"s_bitcmp1_b32 vcc_lo, s{sT3}")
        a(f"s_cbranch_scc1 {lab}_ok")
        a(f"global_load_dword v{vBLK}, v{vBA}, {sr(sDBG,2)} sc1")
        a(f"s_add_u32 s{sSPIN}, s{sSPIN}, 1")
        a(f"s_cmp_gt_u32 s{sSPIN}, {SPIN_MAX}")
        a(f"s_cbranch_scc1 L_fail")
        a(f"s_waitcnt vmcnt(0)")
        a(f"s_sleep 2")
        a(f"s_branch {lab}")
        a.label(f"{lab}_ok")
        a(f"s_add_u32 s{sKSEG}, s{sKSEG}, 1")
    def kv_dma(self):
        a = self.a
        if "full" in self.opts:
            self.nkv = getattr(self, "nkv", 0) + 1
            save = list(a.vm)
            self.kv_ready(f"L_kvr{self.nkv}")
            a.vm = save
        f = "nt"
        a(f"s_add_u32 m0, s{sKVM}, s{sKVW}")
        a(f"s_lshr_b32 s{sTMP}, s{sKVM}, 1")
        a(f"buffer_load_dwordx4 v{vL16}, {sr(sWS,4)}, s{sKX} offen sc1 lds")
        a(f"buffer_load_dwordx4 v{vL16}, {sr(sWS,4)}, s{sKX} offen offset:1024 sc1 lds")
        a(f"s_add_u32 s{sTMP}, s{sTMP}, s{sKVW}")
        a(f"s_add_u32 m0, s{sTMP}, 8192")
        a(f"s_add_u32 s{sKVW}, s{sKVW}, 12288")
        a(f"buffer_load_dwordx4 v{vL16}, {sr(sWS,4)}, s{sVX} offen sc1 lds")
        a(f"s_cmp_eq_u32 s{sKVW}, {L_KV + NKV*12288}")
        a(f"s_cselect_b32 s{sKVW}, {L_KV}, s{sKVW}")
        if "samekv" not in self.opts:
            a(f"s_add_u32 s{sKX}, s{sKX}, {32*8192}")
            a(f"s_add_u32 s{sVX}, s{sVX}, {32*8192}")

    def prologue(self):
        a = self.a
        a(f"s_lshl_b32 s{sKVM}, s{sW}, 11")
        a(f"s_mov_b32 s{sKVW}, {L_KV}")
        a(f"s_mov_b32 s{sKVR}, {L_KV}")
        for _ in range(KVD): self.kv_dma()
        self.srd(sRA, 8, 10240)
        a(f"s_movk_i32 s{sTMP}, 1280")
        a(f"v_bfe_u32 v{vT0}, v{vGG}, 4, 3")
        a(f"v_mul_lo_u32 v{vT0}, v{vT0}, s{sTMP}")
        a(f"v_lshrrev_b32 v{vT1}, 7, v{vGG}")
        a(f"v_lshl_add_u32 v{vT0}, v{vT1}, 4, v{vT0}")
        a(f"buffer_load_dwordx4 {vr(GL,4)}, v{vT0}, {sr(sRA,4)}, 0 offen")
        a(f"buffer_load_dwordx4 {vr(GL+4,4)}, v{vT0}, {sr(sRA,4)}, 0 offen offset:512")
        a(f"v_bfe_u32 v{vT2}, v{vSA}, 4, 3")
        a(f"v_mul_lo_u32 v{vT2}, v{vT2}, s{sTMP}")
        a(f"v_lshrrev_b32 v{vT1}, 7, v{vSA}")
        a(f"v_lshl_add_u32 v{vT2}, v{vT1}, 4, v{vT2}")
        a(f"v_and_b32 v{vT1}, 8, v{vSA}")
        a(f"v_add_u32 v{vT2}, v{vT2}, v{vT1}")
        a(f"buffer_load_dwordx2 {vr(GL+8,2)}, v{vT2}, {sr(sRA,4)}, 0 offen offset:1024")
        for r in range(ZQ, ZQ + 12, 2): a(f"v_mov_b64 {vr(r,2)}, 0")
        a.wait_all()

    def poll(self, lab, issue, regs, tag, thr=None, sleep=0):
        a = self.a
        a(f"s_mov_b32 s{sSPIN}, 0")
        a.label(lab)
        issue()
        a(f"s_add_u32 s{sSPIN}, s{sSPIN}, 1")
        a(f"s_cmp_gt_u32 s{sSPIN}, {SPIN_MAX}")
        a(f"s_cbranch_scc1 L_fail")
        a(f"s_waitcnt vmcnt({thr if thr is not None else self.opt('thr', 30)})")
        if sleep: a(f"s_sleep {sleep}")
        for n, r in enumerate(regs): self.ck(r, tag, n == 0)
        a(f"v_and_b32 v{vCK}, 1, v{vCK}")
        a(f"v_cmp_ne_u32 vcc, 0, v{vCK}")
        a(f"s_cbranch_vccnz {lab}")
    def bpoll(self, lab, issue, first, regs, per, tag):
        a = self.a
        a(f"s_mov_b32 s{sSPIN}, 0")
        a(f"s_branch {lab}_c")
        save = list(a.vm)
        a.label(lab)
        issue()
        a.vm = save
        a.label(f"{lab}_c")
        a(f"s_add_u32 s{sSPIN}, s{sSPIN}, 1")
        a(f"s_cmp_gt_u32 s{sSPIN}, {SPIN_MAX}")
        a(f"s_cbranch_scc1 L_fail")
        assert a.vm[-len(first):] == first
        for n, r in enumerate(regs):
            a.wait(first[n // per])
            self.ck(r, tag, n == 0)
        a(f"v_and_b32 v{vCK}, 1, v{vCK}")
        a(f"v_cmp_ne_u32 vcc, 0, v{vCK}")
        a(f"s_cbranch_vccnz {lab}")
    def poison(self, regs, tag):
        self.a(f"s_xor_b32 s{sTMP}, s{tag}, 1")
        for r in regs: self.a(f"v_mov_b32 v{r}, s{sTMP}")
    def ck(self, reg, tag, first):
        if first: self.a(f"v_xor_b32 v{vCK}, s{tag}, v{reg}")
        else: self.a(f"v_bitop3_b32 v{vCK}, v{vCK}, v{reg}, s{tag} bitop3:0xF6")

    def step(self, exit_label):
        a = self.a
        TREG = [r + 1 for r in [TRQ, TRQ + 2, TRK, TRK + 2, TRQ + 4, TRQ + 6, TRK + 4, TRK + 6]]
        RREG = [RL + 2*i + 1 for i in range(8)]
        GREG = [GL + 2*i + 1 for i in range(5)]
        areg = lambda k: GL + 4 * k if k < 2 else AR + 4 * (k - 2)
        self.stamp(0)
        a(f"ds_write_b128 v{vGG}, {vr(GL,4)} offset:{L_IA}")
        self.smf(("q", 0), ZQ, areg(0))
        a(f"ds_write_b128 v{vGG}, {vr(GL+4,4)} offset:{L_IA+4096}")
        self.smf(("k", 0), ZK, areg(0))
        a(f"ds_write_b64 v{vSA}, {vr(GL+8,2)} offset:{L_IA+8192}")
        self.smf(("q", 1), ZQ, areg(1))
        self.smf(("k", 1), ZK, areg(1))
        a(f"s_lshl_b32 s{sTMP}, s{sU}, 12")
        a(f"s_add_u32 s{sT2}, s{sTMP}, s{sKVR}")
        a(f"v_add_u32 v{vKL}, s{sT2}, v{vL16}")
        a.wait_lg0()
        a("s_barrier")
        self.stamp("b1")
        ah = {}
        for k in range(2, 10):
            if k < 8: ah[k] = a(f"ds_read_b128 {vr(areg(k),4)}, v{vAG + k//2 - 1} offset:{L_IA + (k%2)*4096}")
            else: ah[k] = a(f"ds_read_b128 {vr(areg(k),4)}, v{vL16} offset:{L_IA + k*1024}")
        self.smf(("v", 0), V, areg(0))
        a(f"s_xor_b32 s{sTMP}, s{sTMP}, 0x1000")
        a(f"s_add_u32 s{sT2}, s{sTMP}, s{sKVR}")
        a(f"v_add_u32 v{vKR}, s{sT2}, v{vL16}")
        self.smf(("v", 1), V, areg(1))
        a(f"s_lshr_b32 s{sTMP}, s{sKVM}, 1")
        a(f"s_add_u32 s{sT2}, s{sTMP}, s{sKVR}")
        a(f"v_add_u32 v{vVX}, s{sT2}, v{vL16}")
        for k in range(2, 10):
            a.wait(ah[k])
            self.smf(("q", k), ZQ, areg(k))
            kk = k - 2
            a(f"ds_read_b128 {vr(KXR+4*kk,4)}, v{vKL if kk < 4 else vKR} offset:{(kk%4)*1024}")
            self.smf(("k", k), ZK, areg(k))
        self.stamp(1)
        vs = {"done": 2}
        def vfill(n):
            for _ in range(n):
                k = vs["done"]
                if k >= 10: return
                self.smf(("v", k), V, areg(k))
                vs["done"] += 1
        vfill(2)
        for r in range(4): a(f"v_permlane32_swap_b32 v{ZQ+r}, v{ZK+r}")
        a(f"v_pk_add_f32 {vr(ZQ,2)}, {vr(ZQ,2)}, {vr(ZK,2)}")
        a(f"v_pk_add_f32 {vr(ZQ+2,2)}, {vr(ZQ+2,2)}, {vr(ZK+2,2)}")
        a(f"v_cvt_pk_bf16_f32 v{TT}, v{ZQ}, v{ZQ+1}")
        a(f"v_cvt_pk_bf16_f32 v{TT+1}, v{ZQ+2}, v{ZQ+3}")
        a(f"ds_read_b128 {vr(VXR,4)}, v{vVX} offset:8192")
        a(f"v_mfma_f32_16x16x16_bf16 {vr(ZK,4)}, {vr(TT,2)}, {vr(vID0,2)}, 0")
        vfill(2)
        a(f"v_cvt_pk_bf16_f32 v{TT+1}, v{ZK+2}, v{ZK+3}")
        a(f"v_cvt_pk_bf16_f32 v{TT+2}, v{ZK}, v{ZK+1}")
        a(f"v_and_or_b32 v{TT+3}, v{TT+1}, -2, s{sTAG0}")
        a(f"buffer_store_dwordx2 {vr(TT+2,2)}, v{vTW}, {sr(sWS,4)}, s{sTBW} offen")
        a(f"v_mov_b32 v{TT}, v{TT+2}")
        a(f"ds_write_b64 v{vTW}, {vr(TT,2)} offset:{L_T}")
        self.stamp("ts")
        vfill(2)
        a.wait_lg0()
        a("s_barrier")
        self.stamp(2)
        hq = [a(f"ds_read_b128 {vr(TLQ+4*k,4)}, v{vTQ} offset:{L_T + k*1024}") for k in range(2)]
        hkk = [a(f"ds_read_b128 {vr(TLK+4*k,4)}, v{vTK} offset:{L_T + k*1024}") for k in range(2)]
        def tissue():
            return [a(f"buffer_load_dwordx4 {vr(TRQ,4)}, v{vTQ}, {sr(sWS,4)}, s{sTBR} offen sc1"),
                    a(f"buffer_load_dwordx4 {vr(TRK,4)}, v{vTK}, {sr(sWS,4)}, s{sTBR} offen sc1"),
                    a(f"buffer_load_dwordx4 {vr(TRQ+4,4)}, v{vTQ}, {sr(sWS,4)}, s{sTBR} offen offset:1024 sc1"),
                    a(f"buffer_load_dwordx4 {vr(TRK+4,4)}, v{vTK}, {sr(sWS,4)}, s{sTBR} offen offset:1024 sc1")]
        vfill(2)
        if self.opt("t1", 0) == 0: ths = tissue()
        def smm(Q, K, kx, first):
            c = lambda d: "0" if first else vr(d, 4)
            a(f"v_mfma_f32_16x16x32_bf16 {vr(D3,4)}, {vr(kx,4)}, {vr(Q,4)}, {c(D3)}")
            a(f"v_mfma_f32_16x16x32_bf16 {vr(D3+4,4)}, {vr(kx+4,4)}, {vr(Q,4)}, {c(D3+4)}")
            a(f"v_mfma_f32_16x16x32_bf16 {vr(D3+8,4)}, {vr(K,4)}, {vr(Q,4)}, {c(D3+8)}")
        a.wait(hq, hkk)
        smm(TLQ, TLK, KXR, True)
        if self.opt("t1", 0) == 1: ths = tissue()
        smm(TLQ + 4, TLK + 4, KXR + 8, False)
        a(f"v_permlane32_swap_b32 v{V}, v{V+2}")
        a(f"v_permlane32_swap_b32 v{V+1}, v{V+3}")
        a(f"v_pk_add_f32 {vr(V,2)}, {vr(V,2)}, {vr(V+2,2)}")
        a(f"v_cvt_pk_bf16_f32 v{VP}, v{V}, v{V+1}")
        for c in range(5):
            a(f"v_mov_b64 {vr(ACC[c],2)}, 0")
            a(f"v_mov_b64 {vr(ACC[c]+2,2)}, 0")
        a(f"v_mov_b64 {vr(V,2)}, 0")
        a(f"v_mov_b64 {vr(V+2,2)}, 0")
        a(f"v_mov_b64 {vr(ZK,2)}, 0")
        a(f"v_mov_b64 {vr(ZK+2,2)}, 0")
        a(f"s_add_u32 s{sKVR}, s{sKVR}, 12288")
        a(f"s_cmp_eq_u32 s{sKVR}, {L_KV + NKV*12288}")
        a(f"s_cselect_b32 s{sKVR}, {L_KV}, s{sKVR}")
        self.poison(RREG, sTAG0) if False else None
        a(f"v_mov_b64 {vr(XR,2)}, 0")
        a(f"s_mov_b64 exec, 0xFFFF")
        self.poison([XR+1], sTAG1)
        a(f"s_mov_b64 exec, -1")
        self.bpoll("L_tpoll", tissue, ths, TREG, 2, sTAG0)
        if self.stamps: a(f"s_mov_b32 s{sT5}, s{sSPIN}")
        self.stamp(3)
        smm(TRQ, TRK, KXR + 16, False)
        smm(TRQ + 4, TRK + 4, KXR + 24, False)
        if "nokv" not in self.opts and self.opt("kvpos", 1) == 1: self.kv_dma()
        a(f"s_mov_b64 exec, {sr(sMHI,2)}")
        if "nokm" not in self.opts: a(f"buffer_store_dwordx2 {vr(TT,2)}, v{vKMW}, {sr(sWS,4)}, s{sKM} offen sc1")
        a(f"s_mov_b64 exec, -1")
        if "nokm" not in self.opts: a(f"buffer_store_dword v{VP}, v{vL4}, {sr(sWS,4)}, s{sVM} offen sc1")
        if "full" in self.opts:
            a(f"global_load_dword v{vBLK}, v{vBA}, {sr(sDBG,2)} sc1")
            a(f"s_cmp_eq_u32 s{sSTEP}, 0")
            a(f"s_cselect_b32 s{sTMP}, 1, s{sW}")
            a(f"s_cmp_lg_u32 s{sTMP}, 0")
            a(f"s_cbranch_scc1 L_nosig")
            a(f"s_add_u32 s{sTMP}, s{sSTEP}, 3")
            a(f"s_and_b32 s{sTMP}, s{sTMP}, 3")
            a(f"s_lshl_b32 s{sTMP}, s{sTMP}, 2")
            a(f"s_add_u32 s{sTMP}, s{sTMP}, 208")
            a(f"v_mov_b32 v{vT0}, s{sTMP}")
            a(f"v_mov_b32 v{vT1}, 1")
            a(f"s_mov_b64 exec, 1")
            save = list(a.vm)
            a(f"global_atomic_add v{vT0}, v{vT1}, {sr(sDBG,2)} sc1")
            a.vm = save
            a(f"s_mov_b64 exec, -1")
            a.label("L_nosig")
        a(f"s_cmp_eq_u32 s{sSTEP}, 63")
        a(f"s_cbranch_scc1 {exit_label}")
        S = [ZQ, ZQ+1, ZQ+2, ZQ+3, vT1]
        for r in range(4):
            a(f"v_cndmask_b32 v{S[r]}, v{D3+4+r}, v{D3+r}, {sr(sMLO,2)}")
        M, M2 = vT0, vT3
        a(f"v_max3_f32 v{M}, v{S[0]}, v{S[1]}, v{S[2]}")
        a(f"v_cndmask_b32 v{S[4]}, v{D3+9}, v{D3+8}, {sr(sMLO,2)}")
        a(f"v_max3_f32 v{M}, v{M}, v{S[3]}, v{S[4]}")
        a(f"s_add_u32 s{sKM}, s{sKM}, {32*2048}")
        a(f"s_add_u32 s{sVM}, s{sVM}, {32*2048}")
        a(f"v_max_f32_dpp v{M}, v{M}, v{M} row_ror:8 row_mask:0xf bank_mask:0xf")
        a(f"v_mov_b32 v{M2}, v{M}")
        a(f"v_permlane16_swap_b32 v{M}, v{M2}")
        a(f"v_max_f32 v{M}, v{M}, v{M2}")
        a(f"v_mov_b32 v{M2}, v{M}")
        a(f"v_permlane32_swap_b32 v{M}, v{M2}")
        a(f"v_max_f32 v{M}, v{M}, v{M2}")
        a(f"v_mul_f32 v{M}, s{sC}, v{M}")
        for s_ in S: a(f"v_fma_f32 v{s_}, v{s_}, s{sC}, -v{M}")
        for s_ in S: a(f"v_exp_f32 v{s_}, v{s_}")
        P = PP; PM = PP + 4
        Ls = vT0
        a(f"v_cvt_pk_bf16_f32 v{P}, v{S[0]}, v{S[1]}")
        a(f"v_cvt_pk_bf16_f32 v{P+1}, v{S[2]}, v{S[3]}")
        a(f"v_mov_b32_dpp v{vT2}, v{S[4]} row_ror:8 row_mask:0xf bank_mask:0xf")
        a(f"v_mov_b32_dpp v{P+2}, v{P} row_ror:8 row_mask:0xf bank_mask:0xf")
        a(f"v_mov_b32_dpp v{P+3}, v{P+1} row_ror:8 row_mask:0xf bank_mask:0xf")
        a(f"v_cvt_pk_bf16_f32 v{PM}, v{S[4]}, v{vT2}")
        a(f"v_add_f32 v{Ls}, v{S[0]}, v{S[1]}")
        a(f"v_mfma_f32_16x16x32_bf16 {vr(DO,4)}, {vr(VXR,4)}, {vr(P,4)}, 0")
        a(f"v_add_f32 v{M2}, v{S[2]}, v{S[3]}")
        a(f"v_add_f32 v{Ls}, v{Ls}, v{S[4]}")
        a(f"v_mfma_f32_16x16x16_bf16 {vr(D3,4)}, {vr(VP,2)}, {vr(PM,2)}, 0")
        self.stamp(4)
        a(f"v_add_f32 v{Ls}, v{Ls}, v{M2}")
        a(f"v_mov_b64 {vr(ZQ,2)}, 0")
        a(f"v_mov_b64 {vr(ZQ+2,2)}, 0")
        a(f"v_add_f32_dpp v{Ls}, v{Ls}, v{Ls} row_ror:8 row_mask:0xf bank_mask:0xf")
        a(f"v_mov_b32 v{M2}, v{Ls}")
        a(f"v_permlane16_swap_b32 v{Ls}, v{M2}")
        a(f"v_add_f32 v{Ls}, v{Ls}, v{M2}")
        a(f"v_mov_b32 v{M2}, v{Ls}")
        a(f"v_permlane32_swap_b32 v{Ls}, v{M2}")
        a(f"v_add_f32 v{Ls}, v{Ls}, v{M2}")
        a(f"v_rcp_f32 v{Ls}, v{Ls}")
        a(f"v_pk_add_f32 {vr(DO,2)}, {vr(DO,2)}, {vr(D3,2)}")
        a(f"v_pk_add_f32 {vr(DO+2,2)}, {vr(DO+2,2)}, {vr(D3+2,2)}")
        a(f"s_mov_b64 exec, {sr(sMLO,2)}")
        for r in range(4): a(f"v_mul_f32 v{DO+r}, v{DO+r}, v{Ls}")
        a(f"v_cvt_pk_bf16_f32 v{DO}, v{DO}, v{DO+1}")
        a(f"v_cvt_pk_bf16_f32 v{DO+1}, v{DO+2}, v{DO+3}")
        a(f"ds_write_b64 v{vOW}, {vr(DO,2)} offset:{L_O}")
        if "dbgo" in self.opts:
            a(f"s_sub_u32 s{sTMP}, s{sKM}, {32*2048 + KMI - 0x6000000}")
            a(f"buffer_store_dwordx2 {vr(DO,2)}, v{vKMW}, {sr(sWS,4)}, s{sTMP} offen sc1")
            a(f"s_add_u32 s{sTMP}, s{sTMP}, 0x1000000")
            a(f"buffer_store_dwordx2 {vr(TT,2)}, v{vKMW}, {sr(sWS,4)}, s{sTMP} offen sc1")
        a(f"s_mov_b64 exec, -1")
        if "nokv" not in self.opts and self.opt("kvpos", 1) == 0: self.kv_dma()
        self.stamp("pb3")
        a.wait_lg0()
        a("s_barrier")
        self.stamp("b3")
        oh = [a(f"ds_read_b128 {vr(AO+4*j,4)}, v{vA} offset:{L_O + j*512}") for j in range(2)]
        def publish(c):
            A_ = ACC[c]
            a(f"v_cvt_pk_bf16_f32 v{A_}, v{A_}, v{A_+1}")
            a(f"v_cvt_pk_bf16_f32 v{A_+1}, v{A_+2}, v{A_+3}")
            a(f"v_and_or_b32 v{A_+1}, v{A_+1}, -2, s{sTAG0}")
            a(f"buffer_store_dwordx2 {vr(A_,2)}, v{vPS}, {sr(sWS,4)}, s{sPB0} offen offset:{c*512}")
        for c in range(5):
            for j in range(2):
                a.wait(oh[j])
                self.smf(("WO", c, j), ACC[c], AO + 4 * j)
            if c >= 1: publish(c - 1)
        publish(4)
        self.stamp(5)
        a(f"s_cmp_eq_u32 s{sHASJ}, 0")
        a(f"s_cbranch_scc1 L_red_skip")
        D = D3; DB = D3 + 4
        def rissue():
            return [a(f"buffer_load_dwordx2 {vr(RL+2*i,2)}, v{vRD}, {sr(sWS,4)}, s{sRD+i} offen sc1") for i in range(8)]
        if self.opt("rs", 2): a(f"s_sleep {self.opt('rs', 2)}")
        a(f"s_mov_b32 s{sSPIN}, 0")
        a.label("L_red")
        hs = rissue()
        a(f"s_add_u32 s{sSPIN}, s{sSPIN}, 1")
        a(f"s_cmp_gt_u32 s{sSPIN}, {SPIN_MAX}")
        a(f"s_cbranch_scc1 L_fail")
        for i in range(4):
            a.wait(hs[2*i+1])
            self.ck(RL + 4*i + 1, sTAG0, i == 0)
            self.ck(RL + 4*i + 3, sTAG0, False)
            a(f"v_mfma_f32_16x16x32_bf16 {vr(DB,4)}, {vr(vSEL4,4)}, {vr(RL+4*i,4)}, {vr(DB,4) if i else 0}")
        a(f"v_and_b32 v{vCK}, 1, v{vCK}")
        a(f"v_cmp_ne_u32 vcc, 0, v{vCK}")
        a(f"s_cbranch_vccnz L_red")
        if self.stamps: a(f"s_mov_b32 s{sT4}, s{sSPIN}")
        a(f"v_mfma_f32_16x16x32_bf16 {vr(D,4)}, {vr(RL,4)}, {vr(vSEL4,4)}, 0")
        a(f"v_cvt_pk_bf16_f32 v{DB}, v{DB}, v{DB+1}")
        a(f"v_cvt_pk_bf16_f32 v{DB+1}, v{DB+2}, v{DB+3}")
        a(f"v_and_or_b32 v{DB+1}, v{DB+1}, -2, s{sTAG1}")
        a(f"s_mov_b64 exec, 0xFFFF")
        a(f"buffer_store_dwordx2 {vr(DB,2)}, v{vXA}, {sr(sWS,4)}, s{sJR} offen sc1")
        a(f"s_mov_b64 exec, -1")
        self.stamp("p")
        for i in range(1, 4):
            a(f"v_mfma_f32_16x16x32_bf16 {vr(D,4)}, {vr(RL+4*i,4)}, {vr(vSEL4,4)}, {vr(D,4)}")
        if self.opt("xd", 2): a(f"s_sleep {self.opt('xd', 2)}")
        a(f"s_mov_b64 exec, 0xFFFF")
        self.poll("L_x", lambda: a(f"buffer_load_dwordx2 {vr(XR,2)}, v{vXA}, {sr(sWS,4)}, s{sGR} offen sc1"), [XR+1], sTAG1, thr=self.opt("xthr", 30), sleep=self.opt("xs", 1))
        a(f"s_mov_b64 exec, -1")
        if self.stamps: a(f"s_mov_b32 s{sT3}, s{sSPIN}")
        a(f"v_mfma_f32_16x16x16_bf16 {vr(D,4)}, {vr(XR,2)}, {vr(vSEL4,2)}, {vr(D,4)}")
        a(f"s_mov_b64 exec, {sr(sMPB,2)}")
        a(f"v_cvt_pk_bf16_f32 v{D}, v{D}, v{D+1}")
        a(f"v_cvt_pk_bf16_f32 v{D+1}, v{D+2}, v{D+3}")
        a(f"v_and_or_b32 v{D+1}, v{D+1}, -2, s{sTAG0}")
        a(f"buffer_store_dwordx2 {vr(D,2)}, v{vPB}, {sr(sWS,4)}, s{sJL} offen")
        a(f"s_mov_b64 exec, -1")
        a.label("L_red_skip")
        self.stamp(6)
        a("s_barrier")
        self.stamp("b0")
        def gissue():
            return [a(f"buffer_load_dwordx4 {vr(GL,4)}, v{vGG}, {sr(sWS,4)}, s{sGL} offen sc1"),
                    a(f"buffer_load_dwordx4 {vr(GL+4,4)}, v{vGG}, {sr(sWS,4)}, s{sGL1} offen sc1"),
                    a(f"buffer_load_dwordx2 {vr(GL+8,2)}, v{vSA}, {sr(sWS,4)}, s{sGL2} offen sc1")]
        if self.opt("ad", 1): a(f"s_sleep {self.opt('ad', 1)}")
        self.bpoll("L_ga", gissue, gissue(), GREG, 2, sTAG0)
        self.stamp(7)
        a(f"s_add_u32 s{sSTEP}, s{sSTEP}, 1")
        a(f"s_and_b32 s{sTAG0}, s{sSTEP}, 1")
        a(f"s_bfe_u32 s{sTAG1}, s{sSTEP}, 0x10001")
        for r in (sJR, sGR): a(f"s_add_u32 s{r}, s{r}, s{sSLOT}")
        a(f"s_sub_u32 s{sSLOT}, 0, s{sSLOT}")
        if self.stamps:
            a.wait_lg0()
            for i in range(8):
                a(f"v_mov_b32 v{KXR+i}, s{sTM+2*i}")
            for i, r in enumerate([sT5, sT4, sT3, sSPIN]):
                a(f"v_mov_b32 v{KXR+8+i}, s{r}")
            a(f"v_mov_b32 v{vT1}, 0")
            a(f"s_mov_b64 exec, 1")
            for i in range(3):
                a(f"buffer_store_dwordx4 {vr(KXR+4*i,4)}, v{vT1}, {sr(sWS,4)}, s{sSTAMP} offen offset:{16*i}")
            a(f"s_mov_b64 exec, -1")
            a(f"s_add_u32 s{sSTAMP}, s{sSTAMP}, 128")

def team_code(a, stamps, opts, exit_label="L_end"):
    t = Team(a, stamps, opts)
    t.setup()
    t.init_buffers()
    t.arrive(52)
    if stamps: a(f"s_memtime {sr(sTM+16,2)}")
    t.load_weights()
    t.wait_team(52)
    if stamps:
        a(f"s_memtime {sr(sTM,2)}")
        a.wait_lg0()
        a(f"s_sub_u32 s{sTMP}, s{sTM}, s{sTM+16}")
        a(f"v_mov_b32 v{vT0}, s{sTMP}")
        a(f"v_mov_b32 v{vT1}, 0")
        a(f"buffer_store_dword v{vT0}, v{vT1}, {sr(sWS,4)}, s{sSTAMP} offen offset:64")
        a.wait_vm0()
    t.prologue()
    a.label("L_loop")
    t.step(exit_label)
    a("s_branch L_loop")

def election(a):
    a("s_cmp_ge_u32 s2, 256")
    a("s_cbranch_scc1 L_end")
    a(f"s_load_dwordx2 {sr(sDBG,2)}, s[0:1], 64")
    a(f"s_load_dwordx2 {sr(sWS,2)}, s[0:1], 72")
    a(f"s_getreg_b32 s{sXCC}, hwreg(HW_REG_XCC_ID)")
    a(f"s_and_b32 s{sXCC}, s{sXCC}, 7")
    a(f"v_lshrrev_b32 v1, 6, v0")
    a(f"v_readfirstlane_b32 s{sW}, v1")
    a("s_waitcnt lgkmcnt(0)")
    a(f"s_and_b32 s{sWS+1}, s{sWS+1}, 0xffff")
    a(f"s_mov_b32 s{sWS+2}, {WS_BYTES}")
    a(f"s_mov_b32 s{sWS+3}, 0x00020000")
    a(f"v_mov_b32 v5, 0")
    a(f"s_cmp_lg_u32 s{sW}, 0")
    a("s_cbranch_scc1 L_el_done")
    a("s_mov_b64 exec, 1")
    a(f"s_lshl_b32 s{sTMP}, s{sXCC}, 2")
    a(f"v_mov_b32 v1, s{sTMP}")
    a(f"v_mov_b32 v2, 1")
    a(f"global_atomic_add v3, v1, v2, {sr(sDBG,2)} sc0 sc1")
    a.wait_vm0()
    a(f"v_readfirstlane_b32 s{sR}, v3")
    a(f"s_lshr_b32 s{sT2}, s{sXCC}, 1")
    a(f"s_cmp_lg_u32 s{sR}, 31")
    a("s_cbranch_scc1 L_el_poll0")
    a(f"s_lshl_b32 s{sTMP}, s{sT2}, 2")
    a(f"s_add_u32 s{sTMP}, s{sTMP}, 36")
    a(f"v_mov_b32 v1, s{sTMP}")
    a(f"global_atomic_add v3, v1, v2, {sr(sDBG,2)} sc0 sc1")
    a.wait_vm0()
    a(f"v_readfirstlane_b32 s{sTMP}, v3")
    a(f"s_cmp_lg_u32 s{sTMP}, 1")
    a("s_cbranch_scc1 L_el_poll0")
    a(f"s_add_u32 s{sTMP}, s{sT2}, 1")
    a(f"v_mov_b32 v1, 32")
    a(f"v_mov_b32 v2, s{sTMP}")
    a(f"v_mov_b32 v3, 0")
    a(f"global_atomic_cmpswap v1, v[2:3], {sr(sDBG,2)} sc1")
    a.label("L_el_poll0")
    a(f"v_mov_b32 v1, 32")
    a(f"s_mov_b32 s{sSPIN}, 0")
    a.label("L_el_poll")
    a(f"global_load_dword v2, v1, {sr(sDBG,2)} sc1")
    a(f"s_add_u32 s{sSPIN}, s{sSPIN}, 1")
    a(f"s_mov_b32 s{sTMP}, 0")
    a(f"s_cmp_gt_u32 s{sSPIN}, {SPIN_MAX}")
    a("s_cbranch_scc1 L_el_got")
    a.wait_vm0()
    a(f"v_readfirstlane_b32 s{sTMP}, v2")
    a(f"s_cmp_eq_u32 s{sTMP}, 0")
    a("s_cbranch_scc1 L_el_poll")
    a.label("L_el_got")
    a.wait_vm0()
    a(f"s_add_u32 s{sT2}, s{sT2}, 1")
    a(f"s_cmp_eq_u32 s{sTMP}, s{sT2}")
    a(f"s_cselect_b32 s{sR}, s{sR}, 255")
    a(f"s_min_u32 s{sR}, s{sR}, 255")
    a(f"v_mov_b32 v2, s{sR}")
    a(f"ds_write_b32 v5, v2")
    a.wait_lg0()
    a("s_mov_b64 exec, -1")
    a.label("L_el_done")
    a("s_barrier")
    a(f"ds_read_b32 v2, v5")
    a.wait_lg0()
    a(f"v_readfirstlane_b32 s{sR}, v2")
    a("s_barrier")
    a(f"s_and_b32 s{sX}, s{sXCC}, 1")
    a(f"s_cmp_ge_u32 s{sR}, 32")
    a("s_cbranch_scc1 L_end")
```

```python
import sys
from asmlib import *
import team6 as T
from team6 import *
import proj as P
import engine as E

NAME = "standalone__memory_aug_recurrent_mem_tr__prompt_kernel"

def gen(stamps=False, opts=()):
    a = Asm()
    opts = list(opts) + ["full"]
    el = Asm(); election(el)
    for it in el.lines:
        t = it if isinstance(it, str) else it.text
        if t.startswith(f"s_cselect_b32 s{sR}, s{sR}, 255"):
            a(f"s_cselect_b32 s{sT3}, 0, 0x100")
            a(f"s_min_u32 s{sR}, s{sR}, 255")
            a(f"s_or_b32 s{sR}, s{sR}, s{sT3}")
            a(f"s_lshl_b32 s{sTMP}, s{sTMP}, 12")
            a(f"s_or_b32 s{sR}, s{sR}, s{sTMP}")
            continue
        if t.startswith(f"s_min_u32 s{sR}, s{sR}, 255"): continue
        if t.startswith(f"s_cmp_ge_u32 s{sR}, 32"): break
        if isinstance(it, str): a.raw(it)
        else: a(t)
    a.vm = []; a.lg = []
    a(f"s_lshr_b32 s{sT4}, s{sR}, 12")
    a(f"s_and_b32 s{sR}, s{sR}, 0x1FF")
    a(f"s_cmp_eq_u32 s{sT4}, 0")
    a(f"s_cbranch_scc1 L_fail")
    a(f"s_cmp_ge_u32 s{sR}, 32")
    a(f"s_cbranch_scc1 L_helper")
    team_code(a, stamps, opts, exit_label="L_team_exit")
    a.label("L_team_exit")
    a.wait_all()
    a("s_barrier")
    a(f"s_cmp_lg_u32 s{sW}, 0")
    a(f"s_cbranch_scc1 L_end")
    a(f"v_mov_b32 v{vT0}, {208 + 12}")
    a(f"v_mov_b32 v{vT1}, 1")
    a(f"s_mov_b64 exec, 1")
    a(f"global_atomic_add v{vT0}, v{vT1}, {sr(sDBG,2)} sc1")
    a("s_branch L_end")
    a.label("L_helper")
    hXI, hRK, hNH, hH0, hMUL, hQ, hBLK = 70, 71, 72, 73, 74, 75, 76
    a(f"s_and_b32 s{hRK}, s{sR}, 0xFF")
    a(f"s_bitcmp1_b32 s{sR}, 8")
    a(f"s_cbranch_scc0 L_end")
    a(f"s_lshl_b32 s{sTMP}, s{sT4}, 1")
    a(f"s_cmp_ge_u32 s{sXCC}, s{sTMP}")
    a(f"s_cselect_b32 s{sTMP}, 2, 0")
    a(f"s_sub_u32 s{hXI}, s{sXCC}, s{sTMP}")
    a(f"s_cmp_lt_u32 s{hXI}, 2")
    a(f"s_cselect_b32 s{hNH}, 6, 5")
    a(f"s_movk_i32 s{hMUL}, 205")
    a(f"s_cselect_b32 s{hMUL}, 171, s{hMUL}")
    a(f"s_cselect_b32 s{sTMP}, 0, 2")
    a(f"s_mul_i32 s{hH0}, s{hXI}, s{hNH}")
    a(f"s_add_u32 s{hH0}, s{hH0}, s{sTMP}")
    P.proj_setup(a)
    a(f"s_mov_b32 s{hQ}, s{hRK}")
    a.label("L_task")
    a(f"s_mul_i32 s{hBLK}, s{hQ}, s{hMUL}")
    a(f"s_lshr_b32 s{hBLK}, s{hBLK}, 10")
    a(f"s_cmp_ge_u32 s{hBLK}, 24")
    a(f"s_cbranch_scc1 L_engine")
    a(f"s_mul_i32 s{sTMP}, s{hBLK}, s{hNH}")
    a(f"s_sub_u32 s{P.pH}, s{hQ}, s{sTMP}")
    a(f"s_add_u32 s{P.pH}, s{P.pH}, s{hH0}")
    a(f"s_cmp_lt_u32 s{hBLK}, 6")
    a(f"s_cbranch_scc1 L_t1")
    a(f"s_lshl_b32 s{P.pTB}, s{hBLK}, 1")
    a(f"s_sub_u32 s{P.pTB}, s{P.pTB}, 6")
    a(f"s_cmp_lt_u32 s{hBLK}, 12")
    a(f"s_cbranch_scc1 L_t2")
    a(f"s_lshl_b32 s{P.pTB}, s{hBLK}, 2")
    a(f"s_sub_u32 s{P.pTB}, s{P.pTB}, 30")
    a(f"s_cmp_eq_u32 s{hBLK}, 23")
    a(f"s_cbranch_scc1 L_t2")
    P.proj_task(a, "4", nseg=4)
    a("s_branch L_tdone")
    a.label("L_t2")
    P.proj_task(a, "2", nseg=2)
    a("s_branch L_tdone")
    a.label("L_t1")
    a(f"s_mov_b32 s{P.pTB}, s{hBLK}")
    P.proj_task(a, "1", nseg=1)
    a.label("L_tdone")
    a(f"s_cmp_lg_u32 s{sW}, 0")
    a(f"s_cbranch_scc1 L_tnosig")
    a(f"s_lshl_b32 s{sTMP}, s{hBLK}, 2")
    a(f"s_add_u32 s{sTMP}, s{sTMP}, {E.D_BLK}")
    a(f"v_mov_b32 v{P.qT0}, s{sTMP}")
    a(f"v_mov_b32 v{P.qT1}, 1")
    a(f"s_mov_b64 exec, 1")
    a(f"global_atomic_add v{P.qT0}, v{P.qT1}, {sr(sDBG,2)} sc1")
    a(f"s_mov_b64 exec, -1")
    a.vm = []
    a.label("L_tnosig")
    a(f"s_add_u32 s{hQ}, s{hQ}, 32")
    a("s_branch L_task")
    a.label("L_engine")
    a(f"s_mov_b32 s{E.eE}, s{hXI}")
    a(f"s_mov_b32 s{E.eH}, s{hRK}")
    E.engine_setup(a)
    E.engine_loop(a, 6)
    a.label("L_fail")
    a("s_mov_b64 exec, 1")
    a(f"v_mov_b32 v1, 60")
    a(f"v_mov_b32 v2, 1000")
    a(f"global_store_dword v1, v2, {sr(sDBG,2)}")
    a.label("L_end")
    a("s_waitcnt vmcnt(0) lgkmcnt(0)")
    a("s_endpgm")
    body = a.finish(timed="untimed" not in opts)
    print("nop states", a.nnop, "lines", body.count("\n"))
    ref = open("standalone__memory_aug_recurrent_mem_tr__prompt.s.ref").read()
    head = ref[:ref.index("; @launch")]
    head += f"; @launch grid=(256,1,1) block=(256,1,1) lds={LDS_BYTES}\n"
    head += f""".amdgcn_target "amdgcn-amd-amdhsa--gfx950"
.text
.globl {NAME}
.p2align 8
.type {NAME},@function
{NAME}:
"""
    foot = f""".section .rodata,"a"
.p2align 6
.amdhsa_kernel {NAME}
  .amdhsa_next_free_vgpr 512
  .amdhsa_next_free_sgpr 102
  .amdhsa_accum_offset 256
  .amdhsa_group_segment_fixed_size 0
  .amdhsa_kernarg_size 80
  .amdhsa_user_sgpr_count 2
  .amdhsa_user_sgpr_kernarg_segment_ptr 1
  .amdhsa_system_sgpr_workgroup_id_x 1
.end_amdhsa_kernel
"""
    return head + body + foot

if __name__ == "__main__":
    out = sys.argv[1] if len(sys.argv) > 1 else "standalone__memory_aug_recurrent_mem_tr__prompt.s"
    opts = sys.argv[2].split(",") if len(sys.argv) > 2 else ["rs=4", "t1=1"]
    open(out, "w").write(gen("stamps" in opts, opts))
```

```python
from asmlib import *
from team6 import KF, EF, KXI, VXI, QXI, KMI, VMI, sWS, sDBG, sW, sTMP, sSPIN, SPIN_MAX, fbits
from proj import srd

EP = 0x6000000
eWO = 8; eOUT = 12
eE, eH, eSEG, eIT = 28, 29, 30, 31
eA, eB, eC2, eD = 32, 33, 34, 35
eMSK = 36
eC = 52
eEPW, eEPR = 53, 54
eJ = 55
eM32 = 56
eT = 58
eKF, eEF = 66, 67
D_BLK = 64
D_Q = 160
D_ENG = 184
D_KM = 208
gL16, gL4, gKM, gOW, gPS, gRD, gOUT = 0, 1, 2, 3, 4, 5, 6
gT0, gT1, gT2, gT3 = 8, 9, 10, 11
gSEL = 12
KX = 16
QF = 48
KMF = 64
VXF = 80
WOF = 96
L_OI = 0

def blk_of_seg(a, sseg, sdst):
    a(f"s_sub_u32 s{sTMP}, s{sseg}, 18")
    a(f"s_lshr_b32 s{sTMP}, s{sTMP}, 2")
    a(f"s_add_u32 s{sdst}, s{sTMP}, 12")
    a(f"s_add_u32 s{sTMP}, s{sseg}, 6")
    a(f"s_lshr_b32 s{sTMP}, s{sTMP}, 1")
    a(f"s_cmp_lt_u32 s{sseg}, 18")
    a(f"s_cselect_b32 s{sdst}, s{sTMP}, s{sdst}")
    a(f"s_cmp_lt_u32 s{sseg}, 6")
    a(f"s_cselect_b32 s{sdst}, s{sseg}, s{sdst}")

def wait_ctr(a, lab, soff, sthr, vt0, vt1, sleep=8):
    a(f"v_mov_b32 v{vt0}, s{soff}")
    a(f"s_mov_b32 s{sSPIN}, 0")
    a.label(lab)
    a(f"global_load_dword v{vt1}, v{vt0}, {sr(sDBG,2)} sc1")
    a(f"s_add_u32 s{sSPIN}, s{sSPIN}, 1")
    a(f"s_cmp_gt_u32 s{sSPIN}, {SPIN_MAX}")
    a(f"s_cbranch_scc1 L_fail")
    a.wait_vm0()
    a(f"v_readfirstlane_b32 s{sTMP}, v{vt1}")
    a(f"s_cmp_ge_u32 s{sTMP}, s{sthr}")
    a(f"s_cbranch_scc1 {lab}_ok")
    a(f"s_sleep {sleep}")
    a(f"s_branch {lab}")
    a.label(f"{lab}_ok")

def wait_vec(a, lab, soff, nl, sthr, sleep):
    a(f"s_mov_b32 s{sSPIN}, 0")
    a(f"s_mov_b64 exec, {hex((1 << nl) - 1)}")
    a.label(lab)
    a(f"buffer_load_dword v{gT1}, v{gL4}, {sr(sWS,4)}, s{soff} offen sc1")
    a(f"s_add_u32 s{sSPIN}, s{sSPIN}, 1")
    a(f"s_cmp_gt_u32 s{sSPIN}, {SPIN_MAX}")
    a(f"s_cbranch_scc1 L_fail")
    a.wait_vm0()
    a(f"v_cmp_gt_u32 vcc, s{sthr}, v{gT1}")
    a(f"s_cbranch_vccz {lab}_ok")
    a(f"s_sleep {sleep}")
    a(f"s_branch {lab}")
    a.label(f"{lab}_ok")
    a(f"s_mov_b64 exec, -1")

def engine_setup(a):
    srd(a, eWO, 40, 5242880); srd(a, eOUT, 56, 2621440)
    L, N, G_, R, C = 16, 17, 18, 19, 20
    a(f"v_lshrrev_b32 v{L}, 4, v{gL16}")
    a(f"v_lshrrev_b32 v{gL4}, 2, v{gL16}")
    a(f"v_and_b32 v{N}, 15, v{L}")
    a(f"v_lshrrev_b32 v{G_}, 4, v{L}")
    a(f"v_lshrrev_b32 v{R}, 2, v{N}")
    a(f"v_and_b32 v{C}, 3, v{N}")
    a(f"s_mul_i32 s{eA}, s{eH}, 163840")
    a(f"s_mul_i32 s{eB}, s{sW}, 40960")
    a(f"s_add_u32 s{eA}, s{eA}, s{eB}")
    for i in range(40):
        if i % 4 == 0:
            a(f"s_add_u32 m0, s{eB}, {i*1024}")
            a(f"s_add_u32 s{eC2}, s{eA}, {i*1024}")
        a(f"buffer_load_dwordx4 v{gL16}, {sr(eWO,4)}, s{eC2} offen offset:{(i%4)*1024} lds")
    a(f"v_and_b32 v21, 1, v{R}")
    a(f"v_lshlrev_b32 v21, 2, v21")
    a(f"v_lshrrev_b32 v22, 3, v{N}")
    a(f"v_lshl_add_u32 v21, v22, 1, v21")
    a(f"v_and_b32 v22, 1, v{N}")
    a(f"v_add_u32 v21, v21, v22")
    a(f"v_lshlrev_b32 v{gKM}, 7, v{G_}")
    a(f"v_lshl_add_u32 v{gKM}, v21, 4, v{gKM}")
    a(f"v_lshrrev_b32 v21, 1, v{G_}")
    a(f"v_and_b32 v22, 1, v{G_}")
    a(f"v_lshlrev_b32 v{gOW}, 8, v21")
    a(f"v_lshl_add_u32 v{gOW}, v{N}, 4, v{gOW}")
    a(f"v_lshl_add_u32 v{gOW}, v22, 3, v{gOW}")
    a(f"s_and_b32 s{eC2}, s{sW}, 1")
    a(f"s_lshl_b32 s{eD}, s{eC2}, 10")
    a(f"s_lshr_b32 s{sTMP}, s{sW}, 1")
    a(f"s_lshl_b32 s{sTMP}, s{sTMP}, 12")
    a(f"s_add_u32 s{eD}, s{eD}, s{sTMP}")
    a(f"v_add_u32 v{gOW}, s{eD}, v{gOW}")
    a(f"v_lshlrev_b32 v{gPS}, 6, v{N}")
    a(f"v_lshl_add_u32 v{gPS}, v{G_}, 4, v{gPS}")
    a(f"s_mov_b32 s{sTMP}, 40960")
    a(f"v_mul_lo_u32 v{gRD}, v{G_}, s{sTMP}")
    a(f"v_lshl_add_u32 v{gRD}, v{N}, 4, v{gRD}")
    a(f"s_movk_i32 s{sTMP}, 1280")
    a(f"v_mul_lo_u32 v{gOUT}, v{R}, s{sTMP}")
    a(f"v_lshl_add_u32 v{gOUT}, v{C}, 4, v{gOUT}")
    a(f"v_lshl_add_u32 v{gOUT}, v{G_}, 3, v{gOUT}")
    a(f"v_and_b32 v21, 7, v{N}")
    a(f"v_mov_b32 v22, 0x3F80")
    a(f"v_mov_b32 v23, 0x3F800000")
    for k in range(4): a(f"v_mov_b32 v{gSEL+k}, 0")
    for jj in range(8):
        a(f"v_cmp_eq_u32 vcc, {jj}, v21")
        a(f"v_cndmask_b32 v{gSEL + jj//2}, v{gSEL + jj//2}, v{22 + jj%2}, vcc")
    a(f"v_sub_u32 v21, v{R}, v{G_}")
    a(f"v_lshlrev_b32 v21, 3, v21")
    a(f"v_add_u32 v21, v21, v{C}")
    a(f"s_lshl_b32 s{sTMP}, s{eC2}, 2")
    a(f"v_add_u32 v21, s{sTMP}, v21")
    for k in range(8):
        a(f"v_cmp_le_i32 {sr(eMSK+2*k,2)}, {k}, v21")
    a(f"s_mov_b32 s{eC}, {fbits(128 ** -0.5 * 1.4426950408889634):#x}")
    a(f"s_mov_b32 s{eM32}, -1"); a(f"s_mov_b32 s{eM32+1}, 0")
    a(f"v_lshlrev_b32 v21, 3, v{G_}")
    a(f"v_add_u32 v21, v21, v{R}")
    a(f"s_movk_i32 s{sTMP}, 1280")
    a(f"v_mul_lo_u32 v21, v21, s{sTMP}")
    a(f"v_lshl_add_u32 v21, v{C}, 4, v21")
    a(f"s_mul_i32 s{sTMP}, s{sW}, 320")
    a(f"v_add_u32 v21, s{sTMP}, v21")
    a.wait_vm0()
    a("s_barrier")
    for kp in range(4):
        if kp: a(f"v_add_u32 v21, {32*1280}, v21")
        for p in range(5):
            for tile in range(2):
                f = WOF + ((p * 2 + tile) * 4 + kp) * 4
                for hh in range(2):
                    a(f"ds_read_b64_tr_b16 {vr(f + 2*hh, 2)}, v21 offset:{4*hh*1280 + p*64 + tile*8}")
    a.wait_lg0()
    a("s_barrier")
    a(f"s_lshl_b32 s{eEPR}, s{eE}, 22")
    a(f"s_add_u32 s{eEPR}, s{eEPR}, {EP:#x}")
    a(f"s_mul_i32 s{eEPW}, s{eH}, 40960")
    a(f"s_mul_i32 s{sTMP}, s{sW}, 5120")
    a(f"s_add_u32 s{eEPW}, s{eEPW}, s{sTMP}")
    a(f"s_add_u32 s{eEPW}, s{eEPW}, s{eEPR}")
    a(f"s_mov_b32 s{eSEG}, s{eE}")
    a(f"s_mov_b32 s{eIT}, 0")
    a(f"s_lshl_b32 s{eKF}, s{eH}, 7")
    a(f"s_add_u32 s{eKF}, s{eKF}, {KF:#x}")
    a(f"s_lshl_b32 s{eEF}, s{eE}, 7")
    a(f"s_add_u32 s{eEF}, s{eEF}, {EF:#x}")
    a(f"s_cmp_lg_u32 s{sW}, 0")
    a(f"s_cbranch_scc1 L_en_s1")
    a(f"s_lshl_b32 s{eA}, s{eE}, 2")
    a(f"s_add_u32 s{eA}, s{eA}, {D_ENG}")
    a(f"s_mov_b32 s{eB}, 32")
    wait_ctr(a, "L_en_i1", eA, eB, gT0, gT1)
    a(f"s_mov_b32 s{eA}, 52")
    a(f"s_mov_b32 s{eB}, 64")
    wait_ctr(a, "L_en_i2", eA, eB, gT0, gT1)
    a.label("L_en_s1")

def engine_loop(a, nE, standalone=False, mark=None):
    a.label("L_en_loop")
    a(f"s_cmp_ge_u32 s{eSEG}, 64")
    a(f"s_cbranch_scc1 L_end")
    a(f"s_cmp_lg_u32 s{sW}, 0")
    a(f"s_cbranch_scc1 L_en_go")
    blk_of_seg(a, eSEG, eA)
    a(f"s_lshl_b32 s{eA}, s{eA}, 2")
    a(f"s_add_u32 s{eA}, s{eA}, {D_BLK}")
    a(f"s_mov_b32 s{eB}, 32")
    wait_ctr(a, "L_en_w1", eA, eB, gT0, gT1, sleep=16)
    a.label("L_en_go")
    a("s_barrier")
    a(f"s_lshl_b32 s{eA}, s{eSEG}, 5")
    a(f"s_add_u32 s{eA}, s{eA}, s{eH}")
    a(f"s_lshl_b32 s{eB}, s{eA}, 11")
    a(f"s_lshl_b32 s{eA}, s{eA}, 13")
    a(f"s_add_u32 s{eT}, s{eA}, 4096")
    hk = []
    for k in range(8):
        hk.append(a(f"buffer_load_dwordx4 {vr(KX+4*k,4)}, v{gL16}, {sr(sWS,4)}, s{eA if k < 4 else eT} offen offset:{(k%4)*1024} sc1"))
    a(f"s_and_b32 s{sTMP}, s{sW}, 1")
    a(f"s_lshl_b32 s{sTMP}, s{sTMP}, 10")
    a(f"s_add_u32 s{eT+1}, s{eA}, s{sTMP}")
    a(f"s_add_u32 s{eT+1}, s{eT+1}, {QXI:#x}")
    a(f"s_add_u32 s{eT+2}, s{eT+1}, 4096")
    hq = [a(f"buffer_load_dwordx4 {vr(QF+4*k,4)}, v{gL16}, {sr(sWS,4)}, s{eT+1+k//2} offen offset:{(k%2)*2048} sc1") for k in range(4)]
    a(f"s_lshr_b32 s{sTMP}, s{sW}, 1")
    a(f"s_lshl_b32 s{eT+4}, s{sTMP}, 10")
    a(f"s_lshl_b32 s{sTMP}, s{sTMP}, 12")
    a(f"s_add_u32 s{eT+3}, s{eA}, s{sTMP}")
    a(f"s_add_u32 s{eT+3}, s{eT+3}, {VXI:#x}")
    hv = [a(f"buffer_load_dwordx4 {vr(VXF+4*k,4)}, v{gL16}, {sr(sWS,4)}, s{eT+3} offen offset:{k*1024} sc1") for k in range(4)]
    a(f"s_cmp_lg_u32 s{sW}, 0")
    a(f"s_cbranch_scc1 L_en_go2")
    a(f"s_add_u32 s{eD}, s{eSEG}, 1")
    save = list(a.vm)
    wait_vec(a, "L_en_w2", eKF, 8, eD, 6)
    a.vm = save
    a.label("L_en_go2")
    a("s_barrier")
    a(f"s_add_u32 s{eT+5}, s{eB}, {KMI:#x}")
    hm = [a(f"buffer_load_dwordx4 {vr(KMF+4*k,4)}, v{gKM}, {sr(sWS,4)}, s{eT+5} offen offset:{k*512} sc1") for k in range(4)]
    a(f"s_add_u32 s{eT+4}, s{eT+4}, s{eB}")
    a(f"s_add_u32 s{eT+4}, s{eT+4}, {VMI:#x}")
    for k in range(4): a(f"v_accvgpr_write_b32 a{97+2*k}, 0")
    hvm = [a(f"buffer_load_dword a{96+2*k}, v{gL4}, {sr(sWS,4)}, s{eT+4} offen offset:{k*256} sc1") for k in range(4)]
    SA = 104
    for k in range(4):
        a.wait(hk[2*k+1], hq[k])
        c = lambda d: "0" if k == 0 else ar(d, 4)
        a(f"v_mfma_f32_16x16x32_bf16 {ar(SA,4)}, {vr(KX+8*k,4)}, {vr(QF+4*k,4)}, {c(SA)}")
        a(f"v_mfma_f32_16x16x32_bf16 {ar(SA+4,4)}, {vr(KX+8*k+4,4)}, {vr(QF+4*k,4)}, {c(SA+4)}")
    for k in range(4):
        a.wait(hm[k])
        a(f"v_mfma_f32_16x16x32_bf16 {ar(SA+8,4)}, {vr(KMF+4*k,4)}, {vr(QF+4*k,4)}, {'0' if k == 0 else ar(SA+8,4)}")
    S = [KX + i for i in range(10)]
    a(f"v_mov_b32 v{gT2}, 0xf149f2ca")
    for i in range(10): a(f"v_accvgpr_read_b32 v{S[i]}, a{SA+i}")
    for i in range(8): a(f"v_cndmask_b32 v{S[i]}, v{gT2}, v{S[i]}, {sr(eMSK+2*i,2)}")
    M, M2 = gT0, gT1
    a(f"v_max3_f32 v{M}, v{S[0]}, v{S[1]}, v{S[2]}")
    a(f"v_max3_f32 v{M2}, v{S[3]}, v{S[4]}, v{S[5]}")
    a(f"v_max3_f32 v{M}, v{M}, v{S[6]}, v{S[7]}")
    a(f"v_max3_f32 v{M2}, v{M2}, v{S[8]}, v{S[9]}")
    a(f"v_max_f32 v{M}, v{M}, v{M2}")
    a(f"v_mov_b32 v{M2}, v{M}")
    a(f"v_permlane16_swap_b32 v{M}, v{M2}")
    a(f"v_max_f32 v{M}, v{M}, v{M2}")
    a(f"v_mov_b32 v{M2}, v{M}")
    a(f"v_permlane32_swap_b32 v{M}, v{M2}")
    a(f"v_max_f32 v{M}, v{M}, v{M2}")
    a(f"v_mul_f32 v{M}, s{eC}, v{M}")
    for s_ in S: a(f"v_fma_f32 v{s_}, v{s_}, s{eC}, -v{M}")
    for s_ in S: a(f"v_exp_f32 v{s_}, v{s_}")
    P = KX + 12; PM = KX + 16
    for k in range(5): a(f"v_cvt_pk_bf16_f32 v{P+k}, v{S[2*k]}, v{S[2*k+1]}")
    a(f"v_mov_b32 v{PM+1}, 0")
    Ls = gT0
    a(f"v_add_f32 v{Ls}, v{S[0]}, v{S[1]}")
    for i in range(2, 10): a(f"v_add_f32 v{Ls}, v{Ls}, v{S[i]}")
    DO = QF; DM = KMF
    a.wait(hv, hvm)
    for t in range(4):
        a(f"v_mfma_f32_16x16x32_bf16 {vr(DO+4*t,4)}, {vr(VXF+4*t,4)}, {vr(P,4)}, 0")
    for t in range(4):
        a(f"v_mfma_f32_16x16x16_bf16 {vr(DM+4*t,4)}, {ar(96+2*t,2)}, {vr(PM,2)}, 0")
    a(f"v_mov_b32 v{M2}, v{Ls}")
    a(f"v_permlane16_swap_b32 v{Ls}, v{M2}")
    a(f"v_add_f32 v{Ls}, v{Ls}, v{M2}")
    a(f"v_mov_b32 v{M2}, v{Ls}")
    a(f"v_permlane32_swap_b32 v{Ls}, v{M2}")
    a(f"v_add_f32 v{Ls}, v{Ls}, v{M2}")
    a(f"v_rcp_f32 v{Ls}, v{Ls}")
    for t in range(4):
        for r in range(4):
            a(f"v_add_f32 v{DO+4*t+r}, v{DO+4*t+r}, v{DM+4*t+r}")
            a(f"v_mul_f32 v{DO+4*t+r}, v{DO+4*t+r}, v{Ls}")
        a(f"v_cvt_pk_bf16_f32 v{DO+4*t}, v{DO+4*t}, v{DO+4*t+1}")
        a(f"v_cvt_pk_bf16_f32 v{DO+4*t+1}, v{DO+4*t+2}, v{DO+4*t+3}")
        a(f"ds_write_b64 v{gOW}, {vr(DO+4*t,2)} offset:{L_OI + (t>>1)*2048 + (t&1)*512}")
    a.wait_lg0()
    a("s_barrier")
    OF = KX
    ho = [a(f"ds_read_b128 {vr(OF+4*i,4)}, v{gL16} offset:{L_OI + i*1024}") for i in range(8)]
    n = 0
    for p in range(5):
        for kp in range(4):
            for aa in range(2):
                a.wait(ho[kp*2 + aa])
                for tile in range(2):
                    d = ((p * 2 + aa) * 2 + tile) * 4
                    f = WOF + ((p * 2 + tile) * 4 + kp) * 4
                    a(f"v_mfma_f32_16x16x32_bf16 {ar(d,4)}, {vr(f,4)}, {vr(OF+4*(kp*2+aa),4)}, {'0' if kp == 0 else ar(d,4)}")
    a(f"s_add_u32 s{eT}, s{eEPW}, 4096")
    a(f"s_add_u32 s{eT+1}, s{eEPW}, 20480")
    a(f"s_add_u32 s{eT+2}, s{eEPW}, {20480+4096}")
    for p in range(5):
        for aa in range(2):
            t = QF + (n % 4) * 12; n += 1
            d = (p * 2 + aa) * 8
            for r in range(8): a(f"v_accvgpr_read_b32 v{t+4+r}, a{d+r}")
            for k in range(4): a(f"v_cvt_pk_bf16_f32 v{t+k}, v{t+4+2*k}, v{t+5+2*k}")
            so = [[eEPW, eT], [eT+1, eT+2]][aa][p // 4]
            a(f"buffer_store_dwordx4 {vr(t,4)}, v{gPS}, {sr(sWS,4)}, s{so} offen offset:{(p%4)*1024}")
    a.wait_vm0()
    a("s_barrier")
    a(f"s_add_u32 s{eIT}, s{eIT}, 1")
    a(f"s_cmp_lg_u32 s{sW}, 0")
    a(f"s_cbranch_scc1 L_en_nosig")
    a(f"s_lshl_b32 s{eA}, s{eH}, 2")
    a(f"s_add_u32 s{eA}, s{eA}, s{eEF}")
    a(f"v_mov_b32 v{gT0}, s{eIT}")
    a(f"s_mov_b64 exec, 1")
    a(f"buffer_store_dword v{gT0}, v{gL4}, {sr(sWS,4)}, s{eA} offen")
    wait_vec(a, "L_en_w3", eEF, 32, eIT, 1)
    a.label("L_en_nosig")
    a("s_barrier")
    a(f"s_lshl_b32 s{eJ}, s{eH}, 2")
    a(f"s_add_u32 s{eJ}, s{eJ}, s{sW}")
    a.label("L_en_job")
    a(f"s_lshl_b32 s{eA}, s{eJ}, 8")
    a(f"s_add_u32 s{eA}, s{eA}, s{eEPR}")
    hs = []
    for i in range(8):
        hs.append(a(f"buffer_load_dwordx4 {vr(KX+4*i,4)}, v{gRD}, {sr(sWS,4)}, s{eA} offen sc1"))
        if i < 7: a(f"s_add_u32 s{eA}, s{eA}, {4*40960}")
    a(f"s_lshr_b32 s{eB}, s{eJ}, 2")
    a(f"s_cmp_ge_u32 s{eB}, 20")
    a(f"s_cselect_b32 s{eC2}, 4, 0")
    a(f"s_cselect_b32 s{eD}, 20, 0")
    a(f"s_sub_u32 s{eB}, s{eB}, s{eD}")
    a(f"s_and_b32 s{eD}, s{eJ}, 3")
    a(f"s_lshl_b32 s{eD}, s{eD}, 3")
    a(f"s_add_u32 s{eC2}, s{eC2}, s{eD}")
    a(f"s_lshl_b32 s{eD}, s{eSEG}, 5")
    a(f"s_add_u32 s{eC2}, s{eC2}, s{eD}")
    a(f"s_mul_i32 s{eC2}, s{eC2}, 1280")
    a(f"s_lshl_b32 s{eB}, s{eB}, 6")
    a(f"s_add_u32 s{eC2}, s{eC2}, s{eB}")
    D = QF
    for i in range(8):
        a.wait(hs[i])
        a(f"v_mfma_f32_16x16x32_bf16 {vr(D,4)}, {vr(gSEL,4)}, {vr(KX+4*i,4)}, {'0' if i == 0 else vr(D,4)}")
    a(f"v_cvt_pk_bf16_f32 v{D}, v{D}, v{D+1}")
    a(f"v_cvt_pk_bf16_f32 v{D+1}, v{D+2}, v{D+3}")
    a(f"s_mov_b64 exec, {sr(eM32,2)}")
    a(f"buffer_store_dwordx2 {vr(D,2)}, v{gOUT}, {sr(eOUT,4)}, s{eC2} offen")
    a(f"s_mov_b64 exec, -1")
    a(f"s_add_u32 s{eJ}, s{eJ}, 128")
    a(f"s_cmp_lt_u32 s{eJ}, 160")
    a(f"s_cbranch_scc1 L_en_job")
    if mark: mark()
    a(f"s_xor_b32 s{eEPW}, s{eEPW}, 0x200000")
    a(f"s_xor_b32 s{eEPR}, s{eEPR}, 0x200000")
    a(f"s_add_u32 s{eSEG}, s{eSEG}, {nE}")
    a(f"s_branch L_en_loop")
```

```python
from asmlib import *
import struct

KXI   = 0x0000000
VXI   = 0x1000000
QXI   = 0x2000000
KMI   = 0x3000000
VMI   = 0x3400000
PB    = 0x4000000
PST = 10240 + 128
PBX = 0x80000
IMGL  = 0x4100000
IMGR  = 0x4140000
TB    = 0x4120000
PROBE = 0x4160000
KF = 0x4170000
EF = 0x4180000
STAMP = 0x5000000
WS_BYTES = 268435456

L_IA = 0
L_IB = 10240
L_T  = 20480
L_O  = 22528
L_KV = 24576
NKV = 4
KVD = 2
LDS_BYTES = 163840

vL16, vA, vGW, vAV, vRD, vPB, vPS, vIDX = 0, 1, 2, 3, 4, 5, 6, 7
vID0 = 8; vGG = 10; vSA = 11
vXA = 188
vBLK = 190
vBA = 191
vKMW = 189
vTW, vTQ, vTK, vOW = 12, 13, 14, 15
vAG = 16
vKL, vKR, vVX = 19, 20, 21
vL4 = 22
vCK = 23
vT0, vT1, vT2, vT3 = 24, 25, 26, 27
ZQ, ZK, V = 28, 32, 36
GL = 40
AR = 52
KXR = 84
TLQ, TLK, TRQ, TRK = 116, 124, 132, 140
VXR = 148
D3 = 152
TT = 164
DO = 168
PP = 172
VP = 178
XR = 180
vSEL4 = 184
RESV0 = 192
ACC = [AR, AR + 4, AR + 8, AR + 12, AR + 16]
AO = AR + 20
RL = TLQ

sWS = 4; sRA = 8; sDBG = 16
sXCC, sH, sW, sSTEP, sSPIN = 18, 19, 20, 21, 22
sTMP = 23
sX, sR, sU = 24, 25, 26
sKX, sVX, sKM, sVM = 28, 29, 30, 31
sPB0 = 32
sHASJ = 33
sRD = 34
sJL, sJR = 42, 43
sGL, sGR = 44, 45
sTBW, sTBR = 46, 47
sMLO = 48; sMHI = 50; sMPB = 52
sTAG0, sTAG1 = 54, 55
sONE = 56
sC = 58
sSLOT = 59
sKVW, sKVR = 60, 61
sT2, sT3, sT4, sT5 = 62, 63, 64, 65
sSTAMP = 66
sM40 = 68
sGL1, sGL2 = 70, 71
sPT = 72
sKSEG = 76
sRDY = 77
sBL = 78
sKF = 79
sKVM = 67
sTM = 84
SPIN_MAX = 200000

def fbits(x):
    return struct.unpack("<I", struct.pack("<f", x))[0]

OPS = [(m, i) for m in "qkv" for i in range(10)] + [("WO", c, j) for c in range(5) for j in range(2)]
PL = {}
for n, op in enumerate(OPS):
    PL[op] = ("a", n * 8) if n < 32 else ("v", RESV0 + (n - 32) * 8)

def breg(op):
    p = PL[op]
    return ar(p[1], 8) if p[0] == "a" else vr(p[1], 8)

class Team:
    def __init__(self, a, stamps=False, opts=()):
        self.a = a
        self.stamps = stamps
        self.opts = set(opts)
    def opt(self, name, default):
        o = [x for x in self.opts if x.startswith(name + "=")]
        return int(o[0][len(name) + 1:]) if o else default
    def smf(self, op, D, A):
        self.a(f"v_smfmac_f32_16x16x64_bf16 {vr(D,4)}, {vr(A,4)}, {breg(op)}, v{vIDX}")
    def stamp(self, i):
        sel = [o for o in self.opts if o.startswith("st=")]
        names = sel[0][3:].split("/") if sel else ["0", "1", "2", "3", "4", "5", "6", "7"]
        if str(i) not in names or not self.stamps: return
        self.a(f"s_memtime {sr(sTM + 2*names.index(str(i)), 2)}")
    def srd(self, dst, karg_off, nbytes):
        a = self.a
        a(f"s_load_dwordx2 {sr(dst,2)}, s[0:1], {karg_off}")
        a(f"s_waitcnt lgkmcnt(0)")
        a(f"s_and_b32 s{dst+1}, s{dst+1}, 0xffff")
        a(f"s_mov_b32 s{dst+2}, {nbytes}")
        a(f"s_mov_b32 s{dst+3}, 0x00020000")

    def setup(self):
        a = self.a
        L, N, Gg, Tt, TH = 100, 101, 102, 103, 104
        a(f"v_and_b32 v{L}, 63, v0")
        a(f"v_and_b32 v{N}, 15, v{L}")
        a(f"v_lshrrev_b32 v{Gg}, 4, v{L}")
        a(f"v_and_b32 v{Tt}, 7, v{L}")
        a(f"v_bfe_u32 v{TH}, v{L}, 3, 1")
        a(f"v_lshlrev_b32 v{vL16}, 4, v{L}")
        a(f"v_lshlrev_b32 v{vL4}, 2, v{L}")
        a(f"v_lshlrev_b32 v{vA}, 7, v{Gg}")
        a(f"v_lshl_add_u32 v{vA}, v{Tt}, 4, v{vA}")
        a(f"s_mul_i32 s{sTMP}, s{sW}, 2560")
        a(f"v_add_u32 v{vGW}, s{sTMP}, v{vA}")
        a(f"v_lshl_add_u32 v{vAV}, v{TH}, 9, v{vA}")
        for b in range(1, 4):
            a(f"s_add_u32 s{sTMP}, s{sW}, {b}")
            a(f"s_and_b32 s{sTMP}, s{sTMP}, 3")
            a(f"s_lshl_b32 s{sTMP}, s{sTMP}, 10")
            a(f"v_add_u32 v{vAG+b-1}, s{sTMP}, v{vL16}")
        a(f"s_movk_i32 s{sTMP}, {PST}")
        a(f"v_mul_lo_u32 v{vRD}, v{Gg}, s{sTMP}")
        a(f"v_lshl_add_u32 v{vRD}, v{N}, 3, v{vRD}")
        G1, G0 = 105, 106
        a(f"v_lshrrev_b32 v{G1}, 1, v{Gg}")
        a(f"v_and_b32 v{G0}, 1, v{Gg}")
        a(f"v_and_b32 v107, 3, v{L}")
        a(f"v_lshlrev_b32 v{vPB}, 4, v107")
        a(f"v_lshlrev_b32 v{vXA}, 3, v{L}")
        a(f"v_lshl_add_u32 v{vPB}, v{G1}, 7, v{vPB}")
        a(f"v_lshl_add_u32 v{vPB}, v{G0}, 3, v{vPB}")
        a(f"s_lshl_b32 s{sTMP}, s{sW}, 10")
        a(f"v_add_u32 v{vGG}, s{sTMP}, v{vL16}")
        a(f"v_lshrrev_b32 v{vSA}, 1, v{vGG}")
        a(f"v_lshlrev_b32 v{vPS}, 8, v{G0}")
        a(f"v_lshl_add_u32 v{vPS}, v{TH}, 7, v{vPS}")
        a(f"v_lshl_add_u32 v{vPS}, v{Tt}, 4, v{vPS}")
        a(f"v_lshl_add_u32 v{vPS}, v{G1}, 3, v{vPS}")
        a(f"v_mov_b32 v107, 0x8888")
        a(f"v_mov_b32 v108, 0xDDDD")
        a(f"v_cmp_eq_u32 vcc, 0, v{TH}")
        a(f"v_cndmask_b32 v{vIDX}, v108, v107, vcc")
        a(f"v_lshlrev_b32 v107, 2, v{Gg}")
        a(f"v_sub_u32 v107, v{N}, v107")
        a(f"v_mov_b32 v108, 0x3F80")
        a(f"v_mov_b32 v109, 0x3F800000")
        a(f"v_mov_b32 v{vID0}, 0")
        a(f"v_mov_b32 v{vID0+1}, 0")
        for jj in range(4):
            a(f"v_cmp_eq_u32 vcc, {jj}, v107")
            a(f"v_cndmask_b32 v{vID0 + jj//2}, v{vID0 + jj//2}, v{108 + jj%2}, vcc")
        a(f"s_mov_b32 s{sONE}, 0x3F80"); a(f"s_mov_b32 s{sONE+1}, 0")
        a(f"v_lshlrev_b64 {vr(vSEL4,2)}, v{vL16}, {sr(sONE,2)}")
        a(f"v_lshlrev_b64 {vr(vSEL4+2,2)}, v{vL16}, {sr(sONE,2)}")
        a(f"v_lshlrev_b32 v{vTW}, 4, v{N}")
        a(f"v_lshl_add_u32 v{vTW}, v{G1}, 8, v{vTW}")
        a(f"v_lshl_add_u32 v{vTW}, v{G0}, 3, v{vTW}")
        a(f"s_lshl_b32 s{sTMP}, s{sW}, 9")
        a(f"v_add_u32 v{vTW}, s{sTMP}, v{vTW}")
        a(f"v_lshlrev_b32 v{vKMW}, 4, v{Tt}")
        a(f"v_lshl_add_u32 v{vKMW}, v{G1}, 7, v{vKMW}")
        a(f"v_lshl_add_u32 v{vKMW}, v{G0}, 3, v{vKMW}")
        a(f"v_lshlrev_b32 v107, 8, v{Gg}")
        a(f"v_lshl_add_u32 v{vTQ}, v{Tt}, 4, v107")
        a(f"v_bfe_u32 v108, v{N}, 2, 1")
        a(f"v_lshlrev_b32 v108, 2, v108")
        a(f"v_lshl_add_u32 v108, v{TH}, 1, v108")
        a(f"v_and_b32 v109, 1, v{N}")
        a(f"v_add3_u32 v108, v108, v109, 8")
        a(f"v_lshl_add_u32 v{vTK}, v108, 4, v107")
        a(f"v_lshlrev_b32 v{vOW}, 7, v{G1}")
        a(f"v_lshl_add_u32 v{vOW}, v{Tt}, 4, v{vOW}")
        a(f"v_lshl_add_u32 v{vOW}, v{G0}, 3, v{vOW}")
        a(f"s_lshl_b32 s{sTMP}, s{sW}, 8")
        a(f"v_add_u32 v{vOW}, s{sTMP}, v{vOW}")
        a(f"v_mov_b32 v{VP+1}, 0")
        a(f"v_mov_b32 v{PP+5}, 0")
        a(f"s_mov_b32 s{sMLO}, 0x00FF00FF"); a(f"s_mov_b32 s{sMLO+1}, 0x00FF00FF")
        a(f"s_mov_b32 s{sMHI}, 0xFF00FF00"); a(f"s_mov_b32 s{sMHI+1}, 0xFF00FF00")
        a(f"s_mov_b32 s{sMPB}, 0x000F000F"); a(f"s_mov_b32 s{sMPB+1}, 0x000F000F")
        a(f"s_mov_b32 s{sM40}, -1"); a(f"s_mov_b32 s{sM40+1}, 0xFF")
        a(f"s_mov_b32 s{sC}, {fbits(128 ** -0.5 * 1.4426950408889634):#x}")
        a(f"s_and_b32 s{sU}, s{sR}, 1")
        a(f"s_lshr_b32 s{sH}, s{sR}, 1")
        a(f"s_lshl_b32 s{sTMP}, s{sX}, 4")
        a(f"s_add_u32 s{sH}, s{sH}, s{sTMP}")
        a(f"s_lshl_b32 s{sKX}, s{sH}, 13")
        a(f"s_lshl_b32 s{sTMP}, s{sU}, 12")
        a(f"s_add_u32 s{sVX}, s{sKX}, s{sTMP}")
        a(f"s_lshl_b32 s{sTMP}, s{sW}, 10")
        a(f"s_add_u32 s{sVX}, s{sVX}, s{sTMP}")
        a(f"s_add_u32 s{sVX}, s{sVX}, {VXI:#x}")
        a(f"s_lshl_b32 s{sTMP}, s{sW}, 11")
        a(f"s_add_u32 s{sKX}, s{sKX}, s{sTMP}")
        a(f"s_lshl_b32 s{sKM}, s{sH}, 11")
        a(f"s_lshl_b32 s{sTMP}, s{sU}, 10")
        a(f"s_add_u32 s{sKM}, s{sKM}, s{sTMP}")
        a(f"s_lshl_b32 s{sTMP}, s{sW}, 8")
        a(f"s_add_u32 s{sVM}, s{sKM}, s{sTMP}")
        a(f"s_add_u32 s{sVM}, s{sVM}, {VMI:#x}")
        a(f"s_add_u32 s{sKM}, s{sKM}, s{sTMP}")
        a(f"s_add_u32 s{sKM}, s{sKM}, {KMI:#x}")
        a(f"s_mul_i32 s{sPB0}, s{sR}, {PST}")
        a(f"s_mul_i32 s{sTMP}, s{sW}, 2560")
        a(f"s_add_u32 s{sPB0}, s{sPB0}, s{sTMP}")
        a(f"s_mul_i32 s{sT5}, s{sX}, {PBX}")
        a(f"s_add_u32 s{sT5}, s{sT5}, {PB:#x}")
        a(f"s_add_u32 s{sPB0}, s{sPB0}, s{sT5}")
        a(f"s_lshl_b32 s{sTMP}, s{sW}, 1")
        a(f"s_lshr_b32 s{sT2}, s{sR}, 4")
        a(f"s_add_u32 s{sTMP}, s{sTMP}, s{sT2}")
        a(f"s_cmp_le_u32 s{sTMP}, 4")
        a(f"s_cselect_b32 s{sHASJ}, 1, 0")
        a(f"s_cselect_b32 s{sTMP}, s{sTMP}, 4")
        a(f"s_sub_u32 s{sTMP}, 4, s{sTMP}")
        a(f"s_bfe_u32 s{sT2}, s{sR}, 0x20002")
        a(f"s_bfe_u32 s{sT3}, s{sR}, 0x10001")
        a(f"s_and_b32 s{sT4}, s{sR}, 1")
        a(f"s_mul_i32 s{sRD}, s{sT2}, 5")
        a(f"s_add_u32 s{sRD}, s{sRD}, s{sTMP}")
        a(f"s_lshl_b32 s{sRD}, s{sRD}, 9")
        a(f"s_add_u32 s{sRD}, s{sRD}, s{sT5}")
        a(f"s_lshl_b32 s{sT5}, s{sT3}, 8")
        a(f"s_add_u32 s{sRD}, s{sRD}, s{sT5}")
        a(f"s_lshl_b32 s{sT5}, s{sT4}, 7")
        a(f"s_add_u32 s{sRD}, s{sRD}, s{sT5}")
        for i in range(1, 8):
            a(f"s_add_u32 s{sRD+i}, s{sRD+i-1}, {4*PST}")
        a(f"s_lshl_b32 s{sJL}, s{sTMP}, 11")
        a(f"s_lshl_b32 s{sT5}, s{sT2}, 9")
        a(f"s_add_u32 s{sJL}, s{sJL}, s{sT5}")
        a(f"s_lshl_b32 s{sT5}, s{sT4}, 8")
        a(f"s_add_u32 s{sJL}, s{sJL}, s{sT5}")
        a(f"s_lshl_b32 s{sT5}, s{sT3}, 7")
        a(f"s_add_u32 s{sJR}, s{sJL}, s{sT5}")
        a(f"s_and_b32 s{sT5}, s{sJR}, 0x2000")
        a(f"s_add_u32 s{sJR}, s{sJR}, s{sT5}")
        a(f"s_lshl_b32 s{sT5}, s{sT3}, 6")
        a(f"s_add_u32 s{sJL}, s{sJL}, s{sT5}")
        a(f"s_lshl_b32 s{sT5}, s{sX}, 15")
        a(f"s_add_u32 s{sGL}, s{sT5}, {IMGL:#x}")
        a(f"s_add_u32 s{sGL1}, s{sGL}, 4096")
        a(f"s_add_u32 s{sGL2}, s{sGL}, 8192")
        a(f"s_add_u32 s{sJL}, s{sJL}, s{sGL}")
        a(f"s_lshl_b32 s{sT5}, s{sX}, 16")
        a(f"s_add_u32 s{sJR}, s{sJR}, {IMGR:#x}")
        a(f"s_add_u32 s{sGR}, s{sJR}, s{sT5}")
        a(f"s_xor_b32 s{sT5}, s{sT5}, 0x10000")
        a(f"s_add_u32 s{sJR}, s{sJR}, s{sT5}")
        a(f"s_mov_b32 s{sSLOT}, 32768")
        a(f"s_lshl_b32 s{sTBW}, s{sX}, 5")
        a(f"s_add_u32 s{sTBW}, s{sTBW}, s{sR}")
        a(f"s_lshl_b32 s{sTBW}, s{sTBW}, 11")
        a(f"s_add_u32 s{sTBW}, s{sTBW}, {TB:#x}")
        a(f"s_xor_b32 s{sTBR}, s{sTBW}, 0x800")
        a(f"s_mov_b32 s{sTAG0}, 0")
        a(f"s_mov_b32 s{sTAG1}, 0")
        a(f"s_mov_b32 s{sSTEP}, 0")
        a(f"s_mov_b32 s{sKSEG}, 0")
        a(f"s_mov_b32 s{sRDY}, 0")
        a(f"s_lshl_b32 s{sKF}, s{sH}, 7")
        a(f"s_lshl_b32 s{sTMP}, s{sU}, 4")
        a(f"s_add_u32 s{sKF}, s{sKF}, s{sTMP}")
        a(f"s_lshl_b32 s{sTMP}, s{sW}, 2")
        a(f"s_add_u32 s{sKF}, s{sKF}, s{sTMP}")
        a(f"s_add_u32 s{sKF}, s{sKF}, {KF:#x}")
        a(f"v_min_u32 v{vBA}, 92, v{vL4}")
        a(f"v_add_u32 v{vBA}, 64, v{vBA}")
        if self.stamps:
            a(f"s_lshl_b32 s{sTMP}, s{sX}, 5")
            a(f"s_add_u32 s{sTMP}, s{sTMP}, s{sR}")
            a(f"s_lshl_b32 s{sTMP}, s{sTMP}, 2")
            a(f"s_add_u32 s{sTMP}, s{sTMP}, s{sW}")
            a(f"s_lshl_b32 s{sSTAMP}, s{sTMP}, 13")
            a(f"s_add_u32 s{sSTAMP}, s{sSTAMP}, {STAMP:#x}")

    def init_buffers(self):
        a = self.a
        a(f"v_mov_b64 {vr(vT0,2)}, -1")
        for c in range(5):
            a(f"buffer_store_dwordx2 {vr(vT0,2)}, v{vPS}, {sr(sWS,4)}, s{sPB0} offen offset:{c*512}")
        a(f"buffer_store_dwordx2 {vr(vT0,2)}, v{vTW}, {sr(sWS,4)}, s{sTBW} offen")
        a(f"v_mov_b32 v{vT2}, 0")
        a(f"s_mov_b64 exec, 1")
        a(f"buffer_store_dword v{vT2}, v{vT2}, {sr(sWS,4)}, s{sKF} offen sc1")
        a(f"s_mov_b64 exec, -1")
        a(f"s_cmp_eq_u32 s{sHASJ}, 0")
        a(f"s_cbranch_scc1 L_team_noinit")
        a(f"s_mov_b64 exec, {sr(sMPB,2)}")
        a(f"v_mov_b64 {vr(vT2,2)}, -1")
        a(f"s_add_u32 s{sT2}, s{sJR}, 32768")
        a(f"buffer_store_dwordx2 {vr(vT0,2)}, v{vPB}, {sr(sWS,4)}, s{sJL} offen")
        a(f"s_mov_b64 exec, 0xFFFF")
        a(f"buffer_store_dwordx2 {vr(vT0,2)}, v{vXA}, {sr(sWS,4)}, s{sJR} offen sc1")
        a(f"buffer_store_dwordx2 {vr(vT0,2)}, v{vXA}, {sr(sWS,4)}, s{sT2} offen sc1")
        a(f"s_add_u32 s{sT2}, s{sT2}, 8192")
        a(f"s_add_u32 s{sT3}, s{sJR}, 8192")
        a(f"buffer_store_dwordx2 {vr(vT0,2)}, v{vXA}, {sr(sWS,4)}, s{sT2} offen sc1")
        a(f"buffer_store_dwordx2 {vr(vT0,2)}, v{vXA}, {sr(sWS,4)}, s{sT3} offen sc1")
        a(f"s_mov_b64 exec, -1")
        a.label("L_team_noinit")

    def arrive(self, dbg_off):
        a = self.a
        a.wait_all()
        a("s_barrier")
        a(f"s_cmp_lg_u32 s{sW}, 0")
        a(f"s_cbranch_scc1 L_ta_done")
        a(f"s_mov_b64 exec, 1")
        a(f"s_or_b32 s{sTMP}, s{sX}, s{sR}")
        a(f"s_cmp_lg_u32 s{sTMP}, 0")
        a(f"s_cbranch_scc1 L_noprobe")
        a(f"s_mov_b32 s{sT2}, 0")
        a(f"s_mov_b32 s{sT3}, 0")
        for rep in range(3):
            for hf in range(2):
                a(f"v_mov_b32 v{vT0}, {PROBE + hf*8192 + rep*256 + (rep%2)*4096:#x}")
                a(f"buffer_store_dword v{vT0}, v{vT0}, {sr(sWS,4)}, 0 offen sc1")
                a.wait_vm0()
                a(f"s_memtime {sr(sPT,2)}")
                a(f"s_waitcnt lgkmcnt(0)")
                a(f"buffer_load_dword v{vT1}, v{vT0}, {sr(sWS,4)}, 0 offen sc1")
                a.wait_vm0()
                a(f"s_memtime {sr(sPT+2,2)}")
                a(f"s_waitcnt lgkmcnt(0)")
                a(f"s_sub_u32 s{sTMP}, s{sPT+2}, s{sPT}")
                if rep: a(f"s_add_u32 s{sT2+hf}, s{sT2+hf}, s{sTMP}")
        a(f"s_cmp_lt_u32 s{sT3}, s{sT2}")
        a(f"s_cselect_b32 s{sTMP}, 0x2000, 0")
        if "far" in self.opts: a(f"s_xor_b32 s{sTMP}, s{sTMP}, 0x2000")
        a(f"v_mov_b32 v{vT0}, {dbg_off + 4}")
        a(f"v_mov_b32 v{vT1}, s{sTMP}")
        a(f"global_store_dword v{vT0}, v{vT1}, {sr(sDBG,2)} sc1")
        a.wait_vm0()
        a.label("L_noprobe")
        a(f"v_mov_b32 v{vT0}, {dbg_off}")
        a(f"v_mov_b32 v{vT1}, 1")
        a(f"global_atomic_add v{vT0}, v{vT1}, {sr(sDBG,2)} sc1")
        a(f"s_mov_b64 exec, -1")
        a.wait_vm0()
        a.label("L_ta_done")

    def wait_team(self, dbg_off):
        a = self.a
        a(f"v_mov_b32 v{vT0}, {dbg_off}")
        a(f"s_mov_b32 s{sSPIN}, 0")
        a.label(f"L_tw_poll")
        a(f"global_load_dword v{vT1}, v{vT0}, {sr(sDBG,2)} sc1")
        a(f"s_add_u32 s{sSPIN}, s{sSPIN}, 1")
        a(f"s_cmp_gt_u32 s{sSPIN}, {SPIN_MAX}")
        a(f"s_cbranch_scc1 L_fail")
        a.wait_vm0()
        a(f"v_readfirstlane_b32 s{sTMP}, v{vT1}")
        a(f"s_cmp_lt_u32 s{sTMP}, 64")
        a(f"s_cbranch_scc1 L_tw_poll")
        a(f"global_load_dword v{vT1}, v{vT0}, {sr(sDBG,2)} offset:4 sc1")
        a.wait_vm0()
        a(f"v_readfirstlane_b32 s{sTMP}, v{vT1}")
        a(f"s_and_b32 s{sTMP}, s{sTMP}, 0x2000")
        a(f"s_add_u32 s{sJR}, s{sJR}, s{sTMP}")
        a(f"s_add_u32 s{sGR}, s{sGR}, s{sTMP}")

    def load_weights(self):
        a = self.a
        TA = 40
        OUT = 104
        vW, vWo, vSN, vSO, vPSEL = 112, 113, 114, 115, 116
        vSB = 117
        vAD = [124, 125, 126, 127]
        NB = 5; SZ = 32768
        a(f"v_lshrrev_b32 v{vT0}, 7, v{vL16}")
        a(f"v_and_b32 v{vT1}, 0x70, v{vL16}")
        a(f"v_lshl_add_u32 v{vW}, v{vT0}, 13, v{vT1}")
        a(f"v_lshrrev_b32 v{vT0}, 8, v{vL16}")
        a(f"v_and_b32 v{vT1}, 0xF0, v{vL16}")
        a(f"s_movk_i32 s{sTMP}, 1280")
        a(f"v_mul_lo_u32 v{vWo}, v{vT0}, s{sTMP}")
        a(f"v_add_u32 v{vWo}, v{vWo}, v{vT1}")
        a(f"v_lshrrev_b32 v{vT2}, 5, v{vT1}")
        a(f"v_lshlrev_b32 v{vSN}, 2, v{vT2}")
        a(f"v_lshrrev_b32 v{vT2}, 1, v{vT0}")
        a(f"v_lshl_add_u32 v{vSN}, v{vT2}, 11, v{vSN}")
        a(f"v_and_b32 v{vT2}, 1, v{vT0}")
        a(f"v_lshl_add_u32 v{vSN}, v{vT2}, 9, v{vSN}")
        a(f"s_lshl_b32 s{sTMP}, s{sW}, 5")
        a(f"v_add_u32 v{vSN}, s{sTMP}, v{vSN}")
        a(f"v_mov_b32 v{vT2}, 0x05040100")
        a(f"v_mov_b32 v{vT3}, 0x07060302")
        a(f"v_and_b32 v{vPSEL}, 16, v{vL16}")
        a(f"v_cmp_eq_u32 vcc, 0, v{vPSEL}")
        a(f"v_cndmask_b32 v{vPSEL}, v{vT3}, v{vT2}, vcc")
        for b in range(4):
            a(f"s_add_u32 s{sTMP}, s{sW}, {b}")
            a(f"s_and_b32 s{sTMP}, s{sTMP}, 3")
            a(f"s_lshl_b32 s{sTMP}, s{sTMP}, 13")
            a(f"v_add_u32 v{vSB+b}, s{sTMP}, v{vSN}")
        a(f"v_lshrrev_b32 v{vT1}, 2, v{vT1}")
        a(f"v_lshl_add_u32 v{vSO}, v{vT0}, 10, v{vT1}")
        a(f"s_lshl_b32 s{sTMP}, s{sW}, 6")
        a(f"v_add_u32 v{vSO}, s{sTMP}, v{vSO}")
        sBQ, sBS, sBO, sLD = sT2, sT3, sT4, sT5
        a(f"s_lshl_b32 s{sBS}, s{sH}, 8")
        a(f"s_lshl_b32 s{sTMP}, s{sU}, 7")
        a(f"s_add_u32 s{sBS}, s{sBS}, s{sTMP}")
        a(f"s_mul_i32 s{sTMP}, s{sW}, {64*8192}")
        a(f"s_add_u32 s{sBQ}, s{sBS}, s{sTMP}")
        a(f"s_mul_i32 s{sTMP}, s{sW}, {32*8192}")
        a(f"s_add_u32 s{sBS}, s{sBS}, s{sTMP}")
        a(f"s_mul_i32 s{sBO}, s{sH}, 163840")
        a(f"s_mul_i32 s{sTMP}, s{sU}, {64*1280}")
        a(f"s_add_u32 s{sBO}, s{sBO}, s{sTMP}")
        a(f"s_mul_i32 s{sTMP}, s{sW}, {16*1280}")
        a(f"s_add_u32 s{sBO}, s{sBO}, s{sTMP}")
        a(f"s_lshl_b32 s{sLD}, s{sW}, 12")
        stages = [(m, i) for m in "qkv" for i in range(3)] + [("o", c) for c in range(5)]
        karg = {"q": 16, "k": 24, "v": 32, "o": 40}
        srds = {"q": 8, "k": 12, "v": 8, "o": 12}
        loaded = set()
        hd = {}
        def dma(n):
            kind, i = stages[n]
            if kind not in loaded:
                self.srd(srds[kind], karg[kind], 5242880); loaded.add(kind)
            buf = (n % NB) * SZ
            hs = []
            big = kind != "o" and i < 2
            for m in range(8 if big else 4):
                if big:
                    a(f"s_lshl_b32 m0, s{sLD}, 1")
                    a(f"s_add_u32 m0, m0, {buf + m*1024}")
                else:
                    a(f"s_add_u32 m0, s{sLD}, {buf + m*1024}")
                if kind == "o":
                    a(f"s_add_u32 s{sTMP}, s{sBO}, {4*m*1280 + i*256}")
                    hs.append(a(f"buffer_load_dwordx4 v{vWo}, {sr(srds[kind],4)}, s{sTMP} offen lds"))
                elif big:
                    a(f"s_add_u32 s{sTMP}, s{sBQ}, {(256*i + 8*m) * 8192}")
                    hs.append(a(f"buffer_load_dwordx4 v{vW}, {sr(srds[kind],4)}, s{sTMP} offen lds"))
                else:
                    a(f"s_add_u32 s{sTMP}, s{sBS}, {(512 + 8*m) * 8192}")
                    hs.append(a(f"buffer_load_dwordx4 v{vW}, {sr(srds[kind],4)}, s{sTMP} offen lds"))
            hd[n] = hs
        def combine(op, lo, hi):
            p = PL[op]
            for r in range(8):
                d = p[1] + r if p[0] == "v" else OUT + r
                a(f"v_perm_b32 v{d}, v{hi+r}, v{lo+r}, v{vPSEL}")
            if p[0] == "a":
                for r in range(8): a(f"v_accvgpr_write_b32 a{p[1]+r}, v{OUT+r}")
        AH = NB - 1
        for n in range(AH): dma(n)
        for n, (kind, i) in enumerate(stages):
            a.wait(hd[n])
            a.wait_lg0()
            a("s_barrier")
            if n + AH < len(stages): dma(n + AH)
            buf = (n % NB) * SZ
            if kind in "qkv":
                nb = 4 if i < 2 else 2
                hs = {}
                for b in range(nb):
                    if i < 2: a(f"v_add_u32 v{vAD[b]}, {buf}, v{vSB+b}")
                    else: a(f"v_add_u32 v{vAD[b]}, {buf + b*8192}, v{vSN}")
                for b in range(nb):
                    for hf in range(2):
                        for r in range(8):
                            hs[b] = a(f"ds_read_b32 v{TA + 16*b + 8*hf + r}, v{vAD[b]} offset:{(32*(r>>2) + (r&3) + 8*hf)*128}")
                    if b >= 1:
                        a.wait(hs[b-1])
                        combine((kind, 2*(b-1) + i if i < 2 else 8 + b - 1), TA + 16*(b-1), TA + 16*(b-1) + 8)
                b = nb
                a.wait(hs[b-1])
                combine((kind, 2*(b-1) + i if i < 2 else 8 + b - 1), TA + 16*(b-1), TA + 16*(b-1) + 8)
            else:
                a(f"v_add_u32 v{vAD[0]}, {buf}, v{vSO}")
                for j in range(2):
                    p = PL[("WO", i, j)]
                    for r in range(8):
                        a(f"ds_read_b32 {p[0]}{p[1]+r}, v{vAD[0]} offset:{(32*j + (r&3) + 16*(r>>2))*256}")
        a.wait_all()
        a("s_barrier")

    def kv_ready(self, lab):
        a = self.a
        from engine import blk_of_seg, D_BLK
        a(f"s_min_u32 s{sT2}, s{sKSEG}, 63")
        blk_of_seg(a, sT2, sBL)
        a(f"s_add_u32 s{sKSEG}, s{sKSEG}, 1")
        a(f"s_bitcmp1_b32 s{sRDY}, s{sBL}")
        a(f"s_cbranch_scc1 {lab}_ok")
        a(f"s_mov_b32 s{sSPIN}, 0")
        a.label(lab)
        a(f"global_load_dword v{vBLK}, v{vBA}, {sr(sDBG,2)} sc1")
        a(f"s_add_u32 s{sSPIN}, s{sSPIN}, 1")
        a(f"s_cmp_gt_u32 s{sSPIN}, {SPIN_MAX}")
        a(f"s_cbranch_scc1 L_fail")
        a(f"s_waitcnt vmcnt(0)")
        a(f"v_cmp_le_u32 vcc, 32, v{vBLK}")
        a(f"s_nop 3")
        a(f"s_mov_b32 s{sRDY}, vcc_lo")
        a(f"s_bitcmp1_b32 s{sRDY}, s{sBL}")
        a(f"s_cbranch_scc1 {lab}_ok")
        a(f"s_sleep 4")
        a(f"s_branch {lab}")
        a.label(f"{lab}_ok")
    def kv_dma(self):
        a = self.a
        if "full" in self.opts:
            self.nkv = getattr(self, "nkv", 0) + 1
            save = list(a.vm)
            self.kv_ready(f"L_kvr{self.nkv}")
            a.vm = save
        f = "nt"
        a(f"s_add_u32 m0, s{sKVM}, s{sKVW}")
        a(f"s_lshr_b32 s{sTMP}, s{sKVM}, 1")
        a(f"buffer_load_dwordx4 v{vL16}, {sr(sWS,4)}, s{sKX} offen sc1 lds")
        a(f"buffer_load_dwordx4 v{vL16}, {sr(sWS,4)}, s{sKX} offen offset:1024 sc1 lds")
        a(f"s_add_u32 s{sTMP}, s{sTMP}, s{sKVW}")
        a(f"s_add_u32 m0, s{sTMP}, 8192")
        a(f"s_add_u32 s{sKVW}, s{sKVW}, 12288")
        a(f"buffer_load_dwordx4 v{vL16}, {sr(sWS,4)}, s{sVX} offen sc1 lds")
        a(f"s_cmp_eq_u32 s{sKVW}, {L_KV + NKV*12288}")
        a(f"s_cselect_b32 s{sKVW}, {L_KV}, s{sKVW}")
        if "samekv" not in self.opts:
            a(f"s_add_u32 s{sKX}, s{sKX}, {32*8192}")
            a(f"s_add_u32 s{sVX}, s{sVX}, {32*8192}")

    def prologue(self):
        a = self.a
        a(f"s_lshl_b32 s{sKVM}, s{sW}, 11")
        a(f"s_mov_b32 s{sKVW}, {L_KV}")
        a(f"s_mov_b32 s{sKVR}, {L_KV}")
        for _ in range(KVD): self.kv_dma()
        self.srd(sRA, 8, 10240)
        a(f"s_movk_i32 s{sTMP}, 1280")
        a(f"v_bfe_u32 v{vT0}, v{vGG}, 4, 3")
        a(f"v_mul_lo_u32 v{vT0}, v{vT0}, s{sTMP}")
        a(f"v_lshrrev_b32 v{vT1}, 7, v{vGG}")
        a(f"v_lshl_add_u32 v{vT0}, v{vT1}, 4, v{vT0}")
        a(f"buffer_load_dwordx4 {vr(GL,4)}, v{vT0}, {sr(sRA,4)}, 0 offen")
        a(f"buffer_load_dwordx4 {vr(GL+4,4)}, v{vT0}, {sr(sRA,4)}, 0 offen offset:512")
        a(f"v_bfe_u32 v{vT2}, v{vSA}, 4, 3")
        a(f"v_mul_lo_u32 v{vT2}, v{vT2}, s{sTMP}")
        a(f"v_lshrrev_b32 v{vT1}, 7, v{vSA}")
        a(f"v_lshl_add_u32 v{vT2}, v{vT1}, 4, v{vT2}")
        a(f"v_and_b32 v{vT1}, 8, v{vSA}")
        a(f"v_add_u32 v{vT2}, v{vT2}, v{vT1}")
        a(f"buffer_load_dwordx2 {vr(GL+8,2)}, v{vT2}, {sr(sRA,4)}, 0 offen offset:1024")
        for r in range(ZQ, ZQ + 12, 2): a(f"v_mov_b64 {vr(r,2)}, 0")
        a.wait_all()

    def poll(self, lab, issue, regs, tag, thr=None, sleep=0):
        a = self.a
        a(f"s_mov_b32 s{sSPIN}, 0")
        a.label(lab)
        issue()
        a(f"s_add_u32 s{sSPIN}, s{sSPIN}, 1")
        a(f"s_cmp_gt_u32 s{sSPIN}, {SPIN_MAX}")
        a(f"s_cbranch_scc1 L_fail")
        a(f"s_waitcnt vmcnt({thr if thr is not None else self.opt('thr', 30)})")
        if sleep: a(f"s_sleep {sleep}")
        for n, r in enumerate(regs): self.ck(r, tag, n == 0)
        a(f"v_and_b32 v{vCK}, 1, v{vCK}")
        a(f"v_cmp_ne_u32 vcc, 0, v{vCK}")
        a(f"s_cbranch_vccnz {lab}")
    def bpoll(self, lab, issue, first, regs, per, tag):
        a = self.a
        a(f"s_mov_b32 s{sSPIN}, 0")
        a(f"s_branch {lab}_c")
        save = list(a.vm)
        a.label(lab)
        issue()
        a.vm = save
        a.label(f"{lab}_c")
        a(f"s_add_u32 s{sSPIN}, s{sSPIN}, 1")
        a(f"s_cmp_gt_u32 s{sSPIN}, {SPIN_MAX}")
        a(f"s_cbranch_scc1 L_fail")
        assert a.vm[-len(first):] == first
        for n, r in enumerate(regs):
            a.wait(first[n // per])
            self.ck(r, tag, n == 0)
        a(f"v_and_b32 v{vCK}, 1, v{vCK}")
        a(f"v_cmp_ne_u32 vcc, 0, v{vCK}")
        a(f"s_cbranch_vccnz {lab}")
    def poison(self, regs, tag):
        self.a(f"s_xor_b32 s{sTMP}, s{tag}, 1")
        for r in regs: self.a(f"v_mov_b32 v{r}, s{sTMP}")
    def ck(self, reg, tag, first):
        if first: self.a(f"v_xor_b32 v{vCK}, s{tag}, v{reg}")
        else: self.a(f"v_bitop3_b32 v{vCK}, v{vCK}, v{reg}, s{tag} bitop3:0xF6")

    def step(self, exit_label):
        a = self.a
        TREG = [r + 1 for r in [TRQ, TRQ + 2, TRK, TRK + 2, TRQ + 4, TRQ + 6, TRK + 4, TRK + 6]]
        RREG = [RL + 2*i + 1 for i in range(8)]
        GREG = [GL + 2*i + 1 for i in range(5)]
        areg = lambda k: GL + 4 * k if k < 2 else AR + 4 * (k - 2)
        self.stamp(0)
        a(f"ds_write_b128 v{vGG}, {vr(GL,4)} offset:{L_IA}")
        self.smf(("q", 0), ZQ, areg(0))
        a(f"ds_write_b128 v{vGG}, {vr(GL+4,4)} offset:{L_IA+4096}")
        self.smf(("k", 0), ZK, areg(0))
        a(f"ds_write_b64 v{vSA}, {vr(GL+8,2)} offset:{L_IA+8192}")
        self.smf(("q", 1), ZQ, areg(1))
        self.smf(("k", 1), ZK, areg(1))
        a(f"s_lshl_b32 s{sTMP}, s{sU}, 12")
        a(f"s_add_u32 s{sT2}, s{sTMP}, s{sKVR}")
        a(f"v_add_u32 v{vKL}, s{sT2}, v{vL16}")
        a.wait_lg0()
        a("s_barrier")
        self.stamp("b1")
        ah = {}
        for k in range(2, 10):
            if k < 8: ah[k] = a(f"ds_read_b128 {vr(areg(k),4)}, v{vAG + k//2 - 1} offset:{L_IA + (k%2)*4096}")
            else: ah[k] = a(f"ds_read_b128 {vr(areg(k),4)}, v{vL16} offset:{L_IA + k*1024}")
        self.smf(("v", 0), V, areg(0))
        a(f"s_xor_b32 s{sTMP}, s{sTMP}, 0x1000")
        a(f"s_add_u32 s{sT2}, s{sTMP}, s{sKVR}")
        a(f"v_add_u32 v{vKR}, s{sT2}, v{vL16}")
        self.smf(("v", 1), V, areg(1))
        a(f"s_lshr_b32 s{sTMP}, s{sKVM}, 1")
        a(f"s_add_u32 s{sT2}, s{sTMP}, s{sKVR}")
        a(f"v_add_u32 v{vVX}, s{sT2}, v{vL16}")
        for k in range(2, 10):
            a.wait(ah[k])
            self.smf(("q", k), ZQ, areg(k))
            kk = k - 2
            a(f"ds_read_b128 {vr(KXR+4*kk,4)}, v{vKL if kk < 4 else vKR} offset:{(kk%4)*1024}")
            self.smf(("k", k), ZK, areg(k))
        self.stamp(1)
        vs = {"done": 2}
        def vfill(n):
            for _ in range(n):
                k = vs["done"]
                if k >= 10: return
                self.smf(("v", k), V, areg(k))
                vs["done"] += 1
        vfill(2)
        for r in range(4): a(f"v_permlane32_swap_b32 v{ZQ+r}, v{ZK+r}")
        a(f"v_pk_add_f32 {vr(ZQ,2)}, {vr(ZQ,2)}, {vr(ZK,2)}")
        a(f"v_pk_add_f32 {vr(ZQ+2,2)}, {vr(ZQ+2,2)}, {vr(ZK+2,2)}")
        a(f"v_cvt_pk_bf16_f32 v{TT}, v{ZQ}, v{ZQ+1}")
        a(f"v_cvt_pk_bf16_f32 v{TT+1}, v{ZQ+2}, v{ZQ+3}")
        a(f"ds_read_b128 {vr(VXR,4)}, v{vVX} offset:8192")
        a(f"v_mfma_f32_16x16x16_bf16 {vr(ZK,4)}, {vr(TT,2)}, {vr(vID0,2)}, 0")
        vfill(2)
        a(f"v_cvt_pk_bf16_f32 v{TT+1}, v{ZK+2}, v{ZK+3}")
        a(f"v_cvt_pk_bf16_f32 v{TT+2}, v{ZK}, v{ZK+1}")
        a(f"v_and_or_b32 v{TT+3}, v{TT+1}, -2, s{sTAG0}")
        a(f"buffer_store_dwordx2 {vr(TT+2,2)}, v{vTW}, {sr(sWS,4)}, s{sTBW} offen")
        a(f"v_mov_b32 v{TT}, v{TT+2}")
        a(f"ds_write_b64 v{vTW}, {vr(TT,2)} offset:{L_T}")
        self.stamp("ts")
        vfill(2)
        a.wait_lg0()
        a("s_barrier")
        self.stamp(2)
        hq = [a(f"ds_read_b128 {vr(TLQ+4*k,4)}, v{vTQ} offset:{L_T + k*1024}") for k in range(2)]
        hkk = [a(f"ds_read_b128 {vr(TLK+4*k,4)}, v{vTK} offset:{L_T + k*1024}") for k in range(2)]
        def tissue():
            return [a(f"buffer_load_dwordx4 {vr(TRQ,4)}, v{vTQ}, {sr(sWS,4)}, s{sTBR} offen sc1"),
                    a(f"buffer_load_dwordx4 {vr(TRK,4)}, v{vTK}, {sr(sWS,4)}, s{sTBR} offen sc1"),
                    a(f"buffer_load_dwordx4 {vr(TRQ+4,4)}, v{vTQ}, {sr(sWS,4)}, s{sTBR} offen offset:1024 sc1"),
                    a(f"buffer_load_dwordx4 {vr(TRK+4,4)}, v{vTK}, {sr(sWS,4)}, s{sTBR} offen offset:1024 sc1")]
        vfill(2)
        if self.opt("t1", 0) == 0: ths = tissue()
        def smm(Q, K, kx, first):
            c = lambda d: "0" if first else vr(d, 4)
            a(f"v_mfma_f32_16x16x32_bf16 {vr(D3,4)}, {vr(kx,4)}, {vr(Q,4)}, {c(D3)}")
            a(f"v_mfma_f32_16x16x32_bf16 {vr(D3+4,4)}, {vr(kx+4,4)}, {vr(Q,4)}, {c(D3+4)}")
            a(f"v_mfma_f32_16x16x32_bf16 {vr(D3+8,4)}, {vr(K,4)}, {vr(Q,4)}, {c(D3+8)}")
        a.wait(hq, hkk)
        smm(TLQ, TLK, KXR, True)
        if self.opt("t1", 0) == 1: ths = tissue()
        smm(TLQ + 4, TLK + 4, KXR + 8, False)
        a(f"v_permlane32_swap_b32 v{V}, v{V+2}")
        a(f"v_permlane32_swap_b32 v{V+1}, v{V+3}")
        a(f"v_pk_add_f32 {vr(V,2)}, {vr(V,2)}, {vr(V+2,2)}")
        a(f"v_cvt_pk_bf16_f32 v{VP}, v{V}, v{V+1}")
        for c in range(5):
            a(f"v_mov_b64 {vr(ACC[c],2)}, 0")
            a(f"v_mov_b64 {vr(ACC[c]+2,2)}, 0")
        a(f"v_mov_b64 {vr(V,2)}, 0")
        a(f"v_mov_b64 {vr(V+2,2)}, 0")
        a(f"v_mov_b64 {vr(ZK,2)}, 0")
        a(f"v_mov_b64 {vr(ZK+2,2)}, 0")
        a(f"s_add_u32 s{sKVR}, s{sKVR}, 12288")
        a(f"s_cmp_eq_u32 s{sKVR}, {L_KV + NKV*12288}")
        a(f"s_cselect_b32 s{sKVR}, {L_KV}, s{sKVR}")
        self.poison(RREG, sTAG0) if False else None
        a(f"v_mov_b64 {vr(XR,2)}, 0")
        a(f"s_mov_b64 exec, 0xFFFF")
        self.poison([XR+1], sTAG1)
        a(f"s_mov_b64 exec, -1")
        self.bpoll("L_tpoll", tissue, ths, TREG, 2, sTAG0)
        if self.stamps: a(f"s_mov_b32 s{sT5}, s{sSPIN}")
        self.stamp(3)
        smm(TRQ, TRK, KXR + 16, False)
        smm(TRQ + 4, TRK + 4, KXR + 24, False)
        if "nokv" not in self.opts and self.opt("kvpos", 1) == 1: self.kv_dma()
        a(f"s_mov_b64 exec, {sr(sMHI,2)}")
        if "nokm" not in self.opts: a(f"buffer_store_dwordx2 {vr(TT,2)}, v{vKMW}, {sr(sWS,4)}, s{sKM} offen sc1")
        a(f"s_mov_b64 exec, -1")
        if "nokm" not in self.opts: a(f"buffer_store_dword v{VP}, v{vL4}, {sr(sWS,4)}, s{sVM} offen sc1")
        if "full" in self.opts:
            a(f"v_mov_b32 v{vBLK}, s{sSTEP}")
            a(f"s_mov_b64 exec, 1")
            a(f"buffer_store_dword v{vBLK}, v{vL4}, {sr(sWS,4)}, s{sKF} offen sc1")
            a(f"s_mov_b64 exec, -1")
        a(f"s_cmp_eq_u32 s{sSTEP}, 63")
        a(f"s_cbranch_scc1 {exit_label}")
        S = [ZQ, ZQ+1, ZQ+2, ZQ+3, vT1]
        for r in range(4):
            a(f"v_cndmask_b32 v{S[r]}, v{D3+4+r}, v{D3+r}, {sr(sMLO,2)}")
        M, M2 = vT0, vT3
        a(f"v_max3_f32 v{M}, v{S[0]}, v{S[1]}, v{S[2]}")
        a(f"v_cndmask_b32 v{S[4]}, v{D3+9}, v{D3+8}, {sr(sMLO,2)}")
        a(f"v_max3_f32 v{M}, v{M}, v{S[3]}, v{S[4]}")
        a(f"s_add_u32 s{sKM}, s{sKM}, {32*2048}")
        a(f"s_add_u32 s{sVM}, s{sVM}, {32*2048}")
        a(f"v_max_f32_dpp v{M}, v{M}, v{M} row_ror:8 row_mask:0xf bank_mask:0xf")
        a(f"v_mov_b32 v{M2}, v{M}")
        a(f"v_permlane16_swap_b32 v{M}, v{M2}")
        a(f"v_max_f32 v{M}, v{M}, v{M2}")
        a(f"v_mov_b32 v{M2}, v{M}")
        a(f"v_permlane32_swap_b32 v{M}, v{M2}")
        a(f"v_max_f32 v{M}, v{M}, v{M2}")
        a(f"v_mul_f32 v{M}, s{sC}, v{M}")
        for s_ in S: a(f"v_fma_f32 v{s_}, v{s_}, s{sC}, -v{M}")
        for s_ in S: a(f"v_exp_f32 v{s_}, v{s_}")
        P = PP; PM = PP + 4
        Ls = vT0
        a(f"v_cvt_pk_bf16_f32 v{P}, v{S[0]}, v{S[1]}")
        a(f"v_cvt_pk_bf16_f32 v{P+1}, v{S[2]}, v{S[3]}")
        a(f"v_mov_b32_dpp v{vT2}, v{S[4]} row_ror:8 row_mask:0xf bank_mask:0xf")
        a(f"v_mov_b32_dpp v{P+2}, v{P} row_ror:8 row_mask:0xf bank_mask:0xf")
        a(f"v_mov_b32_dpp v{P+3}, v{P+1} row_ror:8 row_mask:0xf bank_mask:0xf")
        a(f"v_cvt_pk_bf16_f32 v{PM}, v{S[4]}, v{vT2}")
        a(f"v_add_f32 v{Ls}, v{S[0]}, v{S[1]}")
        a(f"v_mfma_f32_16x16x32_bf16 {vr(DO,4)}, {vr(VXR,4)}, {vr(P,4)}, 0")
        a(f"v_add_f32 v{M2}, v{S[2]}, v{S[3]}")
        a(f"v_add_f32 v{Ls}, v{Ls}, v{S[4]}")
        a(f"v_mfma_f32_16x16x16_bf16 {vr(D3,4)}, {vr(VP,2)}, {vr(PM,2)}, 0")
        self.stamp(4)
        a(f"v_add_f32 v{Ls}, v{Ls}, v{M2}")
        a(f"v_mov_b64 {vr(ZQ,2)}, 0")
        a(f"v_mov_b64 {vr(ZQ+2,2)}, 0")
        a(f"v_add_f32_dpp v{Ls}, v{Ls}, v{Ls} row_ror:8 row_mask:0xf bank_mask:0xf")
        a(f"v_mov_b32 v{M2}, v{Ls}")
        a(f"v_permlane16_swap_b32 v{Ls}, v{M2}")
        a(f"v_add_f32 v{Ls}, v{Ls}, v{M2}")
        a(f"v_mov_b32 v{M2}, v{Ls}")
        a(f"v_permlane32_swap_b32 v{Ls}, v{M2}")
        a(f"v_add_f32 v{Ls}, v{Ls}, v{M2}")
        a(f"v_rcp_f32 v{Ls}, v{Ls}")
        a(f"v_pk_add_f32 {vr(DO,2)}, {vr(DO,2)}, {vr(D3,2)}")
        a(f"v_pk_add_f32 {vr(DO+2,2)}, {vr(DO+2,2)}, {vr(D3+2,2)}")
        a(f"s_mov_b64 exec, {sr(sMLO,2)}")
        for r in range(4): a(f"v_mul_f32 v{DO+r}, v{DO+r}, v{Ls}")
        a(f"v_cvt_pk_bf16_f32 v{DO}, v{DO}, v{DO+1}")
        a(f"v_cvt_pk_bf16_f32 v{DO+1}, v{DO+2}, v{DO+3}")
        a(f"ds_write_b64 v{vOW}, {vr(DO,2)} offset:{L_O}")
        if "dbgo" in self.opts:
            a(f"s_sub_u32 s{sTMP}, s{sKM}, {32*2048 + KMI - 0x6000000}")
            a(f"buffer_store_dwordx2 {vr(DO,2)}, v{vKMW}, {sr(sWS,4)}, s{sTMP} offen sc1")
            a(f"s_add_u32 s{sTMP}, s{sTMP}, 0x1000000")
            a(f"buffer_store_dwordx2 {vr(TT,2)}, v{vKMW}, {sr(sWS,4)}, s{sTMP} offen sc1")
        a(f"s_mov_b64 exec, -1")
        if "nokv" not in self.opts and self.opt("kvpos", 1) == 0: self.kv_dma()
        self.stamp("pb3")
        a.wait_lg0()
        a("s_barrier")
        self.stamp("b3")
        oh = [a(f"ds_read_b128 {vr(AO+4*j,4)}, v{vA} offset:{L_O + j*512}") for j in range(2)]
        def publish(c):
            A_ = ACC[c]
            a(f"v_cvt_pk_bf16_f32 v{A_}, v{A_}, v{A_+1}")
            a(f"v_cvt_pk_bf16_f32 v{A_+1}, v{A_+2}, v{A_+3}")
            a(f"v_and_or_b32 v{A_+1}, v{A_+1}, -2, s{sTAG0}")
            a(f"buffer_store_dwordx2 {vr(A_,2)}, v{vPS}, {sr(sWS,4)}, s{sPB0} offen offset:{c*512}")
        for c in range(5):
            for j in range(2):
                a.wait(oh[j])
                self.smf(("WO", c, j), ACC[c], AO + 4 * j)
            if c >= 1: publish(c - 1)
        publish(4)
        self.stamp(5)
        a(f"s_cmp_eq_u32 s{sHASJ}, 0")
        a(f"s_cbranch_scc1 L_red_skip")
        D = D3; DB = D3 + 4
        def rissue():
            return [a(f"buffer_load_dwordx2 {vr(RL+2*i,2)}, v{vRD}, {sr(sWS,4)}, s{sRD+i} offen sc1") for i in range(8)]
        if self.opt("rs", 2): a(f"s_sleep {self.opt('rs', 2)}")
        a(f"s_mov_b32 s{sSPIN}, 0")
        a.label("L_red")
        hs = rissue()
        a(f"s_add_u32 s{sSPIN}, s{sSPIN}, 1")
        a(f"s_cmp_gt_u32 s{sSPIN}, {SPIN_MAX}")
        a(f"s_cbranch_scc1 L_fail")
        for i in range(4):
            a.wait(hs[2*i+1])
            self.ck(RL + 4*i + 1, sTAG0, i == 0)
            self.ck(RL + 4*i + 3, sTAG0, False)
            a(f"v_mfma_f32_16x16x32_bf16 {vr(DB,4)}, {vr(vSEL4,4)}, {vr(RL+4*i,4)}, {vr(DB,4) if i else 0}")
        a(f"v_and_b32 v{vCK}, 1, v{vCK}")
        a(f"v_cmp_ne_u32 vcc, 0, v{vCK}")
        a(f"s_cbranch_vccnz L_red")
        if self.stamps: a(f"s_mov_b32 s{sT4}, s{sSPIN}")
        a(f"v_mfma_f32_16x16x32_bf16 {vr(D,4)}, {vr(RL,4)}, {vr(vSEL4,4)}, 0")
        a(f"v_cvt_pk_bf16_f32 v{DB}, v{DB}, v{DB+1}")
        a(f"v_cvt_pk_bf16_f32 v{DB+1}, v{DB+2}, v{DB+3}")
        a(f"v_and_or_b32 v{DB+1}, v{DB+1}, -2, s{sTAG1}")
        a(f"s_mov_b64 exec, 0xFFFF")
        a(f"buffer_store_dwordx2 {vr(DB,2)}, v{vXA}, {sr(sWS,4)}, s{sJR} offen sc1")
        a(f"s_mov_b64 exec, -1")
        self.stamp("p")
        for i in range(1, 4):
            a(f"v_mfma_f32_16x16x32_bf16 {vr(D,4)}, {vr(RL+4*i,4)}, {vr(vSEL4,4)}, {vr(D,4)}")
        if self.opt("xd", 2): a(f"s_sleep {self.opt('xd', 2)}")
        a(f"s_mov_b64 exec, 0xFFFF")
        self.poll("L_x", lambda: a(f"buffer_load_dwordx2 {vr(XR,2)}, v{vXA}, {sr(sWS,4)}, s{sGR} offen sc1"), [XR+1], sTAG1, thr=self.opt("xthr", 30), sleep=self.opt("xs", 1))
        a(f"s_mov_b64 exec, -1")
        if self.stamps: a(f"s_mov_b32 s{sT3}, s{sSPIN}")
        a(f"v_mfma_f32_16x16x16_bf16 {vr(D,4)}, {vr(XR,2)}, {vr(vSEL4,2)}, {vr(D,4)}")
        a(f"s_mov_b64 exec, {sr(sMPB,2)}")
        a(f"v_cvt_pk_bf16_f32 v{D}, v{D}, v{D+1}")
        a(f"v_cvt_pk_bf16_f32 v{D+1}, v{D+2}, v{D+3}")
        a(f"v_and_or_b32 v{D+1}, v{D+1}, -2, s{sTAG0}")
        a(f"buffer_store_dwordx2 {vr(D,2)}, v{vPB}, {sr(sWS,4)}, s{sJL} offen")
        a(f"s_mov_b64 exec, -1")
        a.label("L_red_skip")
        self.stamp(6)
        a("s_barrier")
        self.stamp("b0")
        def gissue():
            return [a(f"buffer_load_dwordx4 {vr(GL,4)}, v{vGG}, {sr(sWS,4)}, s{sGL} offen sc1"),
                    a(f"buffer_load_dwordx4 {vr(GL+4,4)}, v{vGG}, {sr(sWS,4)}, s{sGL1} offen sc1"),
                    a(f"buffer_load_dwordx2 {vr(GL+8,2)}, v{vSA}, {sr(sWS,4)}, s{sGL2} offen sc1")]
        if self.opt("ad", 1): a(f"s_sleep {self.opt('ad', 1)}")
        self.bpoll("L_ga", gissue, gissue(), GREG, 2, sTAG0)
        self.stamp(7)
        a(f"s_add_u32 s{sSTEP}, s{sSTEP}, 1")
        a(f"s_and_b32 s{sTAG0}, s{sSTEP}, 1")
        a(f"s_bfe_u32 s{sTAG1}, s{sSTEP}, 0x10001")
        for r in (sJR, sGR): a(f"s_add_u32 s{r}, s{r}, s{sSLOT}")
        a(f"s_sub_u32 s{sSLOT}, 0, s{sSLOT}")
        if self.stamps:
            a.wait_lg0()
            for i in range(8):
                a(f"v_mov_b32 v{KXR+i}, s{sTM+2*i}")
            for i, r in enumerate([sT5, sT4, sT3, sSPIN]):
                a(f"v_mov_b32 v{KXR+8+i}, s{r}")
            a(f"v_mov_b32 v{vT1}, 0")
            a(f"s_mov_b64 exec, 1")
            for i in range(3):
                a(f"buffer_store_dwordx4 {vr(KXR+4*i,4)}, v{vT1}, {sr(sWS,4)}, s{sSTAMP} offen offset:{16*i}")
            a(f"s_mov_b64 exec, -1")
            a(f"s_add_u32 s{sSTAMP}, s{sSTAMP}, 128")

def team_code(a, stamps, opts, exit_label="L_end"):
    t = Team(a, stamps, opts)
    t.setup()
    t.init_buffers()
    t.arrive(52)
    if stamps: a(f"s_memtime {sr(sTM+16,2)}")
    t.load_weights()
    t.wait_team(52)
    if stamps:
        a(f"s_memtime {sr(sTM,2)}")
        a.wait_lg0()
        a(f"s_sub_u32 s{sTMP}, s{sTM}, s{sTM+16}")
        a(f"v_mov_b32 v{vT0}, s{sTMP}")
        a(f"v_mov_b32 v{vT1}, 0")
        a(f"buffer_store_dword v{vT0}, v{vT1}, {sr(sWS,4)}, s{sSTAMP} offen offset:64")
        a.wait_vm0()
    if "rt" in opts:
        import gen_full
        gen_full.mark(a, 5, True, 40, 41)
    t.prologue()
    if "rt" in opts: gen_full.mark(a, 1, True, 60, 61)
    a.label("L_loop")
    t.step(exit_label)
    a("s_branch L_loop")

def election(a):
    a("s_cmp_ge_u32 s2, 256")
    a("s_cbranch_scc1 L_end")
    a(f"s_load_dwordx2 {sr(sDBG,2)}, s[0:1], 64")
    a(f"s_load_dwordx2 {sr(sWS,2)}, s[0:1], 72")
    a(f"s_getreg_b32 s{sXCC}, hwreg(HW_REG_XCC_ID)")
    a(f"s_and_b32 s{sXCC}, s{sXCC}, 7")
    a(f"v_lshrrev_b32 v1, 6, v0")
    a(f"v_readfirstlane_b32 s{sW}, v1")
    a("s_waitcnt lgkmcnt(0)")
    a(f"s_and_b32 s{sWS+1}, s{sWS+1}, 0xffff")
    a(f"s_mov_b32 s{sWS+2}, {WS_BYTES}")
    a(f"s_mov_b32 s{sWS+3}, 0x00020000")
    a(f"v_mov_b32 v5, 0")
    a(f"s_cmp_lg_u32 s{sW}, 0")
    a("s_cbranch_scc1 L_el_done")
    a("s_mov_b64 exec, 1")
    a(f"s_lshl_b32 s{sTMP}, s{sXCC}, 2")
    a(f"v_mov_b32 v1, s{sTMP}")
    a(f"v_mov_b32 v2, 1")
    a(f"global_atomic_add v3, v1, v2, {sr(sDBG,2)} sc0 sc1")
    a.wait_vm0()
    a(f"v_readfirstlane_b32 s{sR}, v3")
    a(f"s_lshr_b32 s{sT2}, s{sXCC}, 1")
    a(f"s_cmp_lg_u32 s{sR}, 31")
    a("s_cbranch_scc1 L_el_poll0")
    a(f"s_lshl_b32 s{sTMP}, s{sT2}, 2")
    a(f"s_add_u32 s{sTMP}, s{sTMP}, 36")
    a(f"v_mov_b32 v1, s{sTMP}")
    a(f"global_atomic_add v3, v1, v2, {sr(sDBG,2)} sc0 sc1")
    a.wait_vm0()
    a(f"v_readfirstlane_b32 s{sTMP}, v3")
    a(f"s_cmp_lg_u32 s{sTMP}, 1")
    a("s_cbranch_scc1 L_el_poll0")
    a(f"s_add_u32 s{sTMP}, s{sT2}, 1")
    a(f"v_mov_b32 v1, 32")
    a(f"v_mov_b32 v2, s{sTMP}")
    a(f"v_mov_b32 v3, 0")
    a(f"global_atomic_cmpswap v1, v[2:3], {sr(sDBG,2)} sc1")
    a.label("L_el_poll0")
    a(f"v_mov_b32 v1, 32")
    a(f"s_mov_b32 s{sSPIN}, 0")
    a.label("L_el_poll")
    a(f"global_load_dword v2, v1, {sr(sDBG,2)} sc1")
    a(f"s_add_u32 s{sSPIN}, s{sSPIN}, 1")
    a(f"s_mov_b32 s{sTMP}, 0")
    a(f"s_cmp_gt_u32 s{sSPIN}, {SPIN_MAX}")
    a("s_cbranch_scc1 L_el_got")
    a.wait_vm0()
    a(f"v_readfirstlane_b32 s{sTMP}, v2")
    a(f"s_cmp_eq_u32 s{sTMP}, 0")
    a("s_cbranch_scc1 L_el_poll")
    a.label("L_el_got")
    a.wait_vm0()
    a(f"s_add_u32 s{sT2}, s{sT2}, 1")
    a(f"s_cmp_eq_u32 s{sTMP}, s{sT2}")
    a(f"s_cselect_b32 s{sR}, s{sR}, 255")
    a(f"s_min_u32 s{sR}, s{sR}, 255")
    a(f"v_mov_b32 v2, s{sR}")
    a(f"ds_write_b32 v5, v2")
    a.wait_lg0()
    a("s_mov_b64 exec, -1")
    a.label("L_el_done")
    a("s_barrier")
    a(f"ds_read_b32 v2, v5")
    a.wait_lg0()
    a(f"v_readfirstlane_b32 s{sR}, v2")
    a("s_barrier")
    a(f"s_and_b32 s{sX}, s{sXCC}, 1")
    a(f"s_cmp_ge_u32 s{sR}, 32")
    a("s_cbranch_scc1 L_end")
```

```python
import sys
from asmlib import *
import team6 as T
from team6 import *
import proj as P
import engine as E

NAME = "standalone__memory_aug_recurrent_mem_tr__prompt_kernel"

RT = 0x5800000
def mark(a, idx, on, v0=250, v1=251):
    if not on: return
    a("s_memrealtime s[98:99]")
    a("s_waitcnt lgkmcnt(0)")
    a(f"s_lshl_b32 s100, s2, 7")
    a(f"s_add_u32 s100, s100, {RT:#x}")
    a(f"v_mov_b32 v{v0}, s98")
    a(f"v_mov_b32 v{v1}, 0")
    if isinstance(idx, str):
        a(f"s_lshl_b32 s101, {idx}, 2")
        a(f"s_add_u32 s100, s100, s101")
        a(f"buffer_store_dword v{v0}, v{v1}, {sr(sWS,4)}, s100 offen offset:32")
    else:
        a(f"buffer_store_dword v{v0}, v{v1}, {sr(sWS,4)}, s100 offen offset:{idx*4}")
    a("s_waitcnt vmcnt(0)")

def gen(stamps=False, opts=()):
    rt = "rt" in opts
    a = Asm()
    opts = list(opts) + ["full"]
    el = Asm(); election(el)
    for it in el.lines:
        t = it if isinstance(it, str) else it.text
        if t.startswith(f"s_cselect_b32 s{sR}, s{sR}, 255"):
            a(f"s_cselect_b32 s{sT3}, 0, 0x100")
            a(f"s_min_u32 s{sR}, s{sR}, 255")
            a(f"s_or_b32 s{sR}, s{sR}, s{sT3}")
            a(f"s_lshl_b32 s{sTMP}, s{sTMP}, 12")
            a(f"s_or_b32 s{sR}, s{sR}, s{sTMP}")
            continue
        if t.startswith(f"s_min_u32 s{sR}, s{sR}, 255"): continue
        if t.startswith(f"s_cmp_ge_u32 s{sR}, 32"): break
        if isinstance(it, str): a.raw(it)
        else: a(t)
    a.vm = []; a.lg = []
    mark(a, 0, rt)
    a(f"s_lshr_b32 s{sT4}, s{sR}, 12")
    a(f"s_and_b32 s{sR}, s{sR}, 0x1FF")
    a(f"s_cmp_eq_u32 s{sT4}, 0")
    a(f"s_cbranch_scc1 L_fail")
    a(f"s_cmp_ge_u32 s{sR}, 32")
    a(f"s_cbranch_scc1 L_helper")
    team_code(a, stamps, opts, exit_label="L_team_exit")
    a.label("L_team_exit")
    a.wait_all()
    mark(a, 2, rt, 40, 41)
    a(f"v_mov_b32 v{vT0}, 64")
    a(f"s_mov_b64 exec, 1")
    a(f"buffer_store_dword v{vT0}, v{vL4}, {sr(sWS,4)}, s{sKF} offen sc1")
    a("s_branch L_end")
    a.label("L_helper")
    hXI, hRK, hNH, hH0, hMUL, hQ, hBLK = 70, 71, 72, 73, 74, 75, 76
    a(f"s_and_b32 s{hRK}, s{sR}, 0xFF")
    a(f"s_bitcmp1_b32 s{sR}, 8")
    a(f"s_cbranch_scc0 L_end")
    a(f"s_lshl_b32 s{sTMP}, s{sT4}, 1")
    a(f"s_cmp_ge_u32 s{sXCC}, s{sTMP}")
    a(f"s_cselect_b32 s{sTMP}, 2, 0")
    a(f"s_sub_u32 s{hXI}, s{sXCC}, s{sTMP}")
    a(f"s_cmp_lt_u32 s{hXI}, 2")
    a(f"s_cselect_b32 s{hNH}, 6, 5")
    a(f"s_movk_i32 s{hMUL}, 205")
    a(f"s_cselect_b32 s{hMUL}, 171, s{hMUL}")
    a(f"s_cselect_b32 s{sTMP}, 0, 2")
    a(f"s_mul_i32 s{hH0}, s{hXI}, s{hNH}")
    a(f"s_add_u32 s{hH0}, s{hH0}, s{sTMP}")
    a(f"s_cmp_lg_u32 s{sW}, 0")
    a(f"s_cbranch_scc1 L_h0")
    a(f"s_cmp_ge_u32 s{hRK}, 32")
    a(f"s_cbranch_scc1 L_h0")
    a(f"s_lshl_b32 s{sTMP}, s{hXI}, 7")
    a(f"s_lshl_b32 s{hQ}, s{hRK}, 2")
    a(f"s_add_u32 s{sTMP}, s{sTMP}, s{hQ}")
    a(f"s_add_u32 s{sTMP}, s{sTMP}, {EF:#x}")
    a(f"v_mov_b32 v1, 0")
    a(f"v_mov_b32 v3, 1")
    a(f"s_mov_b64 exec, 1")
    a(f"buffer_store_dword v1, v1, {sr(sWS,4)}, s{sTMP} offen")
    a(f"s_lshl_b32 s{sTMP}, s{hXI}, 2")
    a(f"s_add_u32 s{sTMP}, s{sTMP}, {E.D_ENG}")
    a(f"v_mov_b32 v2, s{sTMP}")
    a.wait_vm0()
    a(f"global_atomic_add v2, v3, {sr(sDBG,2)} sc1")
    a(f"s_mov_b64 exec, -1")
    a.vm = []
    a.label("L_h0")
    P.proj_setup(a)
    a(f"s_mov_b32 s{hQ}, s{hRK}")
    a.label("L_task")
    a(f"s_mul_i32 s{hBLK}, s{hQ}, s{hMUL}")
    a(f"s_lshr_b32 s{hBLK}, s{hBLK}, 10")
    a(f"s_cmp_ge_u32 s{hBLK}, 24")
    a(f"s_cbranch_scc1 L_engine")
    a(f"s_mul_i32 s{sTMP}, s{hBLK}, s{hNH}")
    a(f"s_sub_u32 s{P.pH}, s{hQ}, s{sTMP}")
    a(f"s_add_u32 s{P.pH}, s{P.pH}, s{hH0}")
    a(f"s_cmp_lt_u32 s{hBLK}, 6")
    a(f"s_cbranch_scc1 L_t1")
    a(f"s_lshl_b32 s{P.pTB}, s{hBLK}, 1")
    a(f"s_sub_u32 s{P.pTB}, s{P.pTB}, 6")
    a(f"s_cmp_lt_u32 s{hBLK}, 12")
    a(f"s_cbranch_scc1 L_t2")
    a(f"s_lshl_b32 s{P.pTB}, s{hBLK}, 2")
    a(f"s_sub_u32 s{P.pTB}, s{P.pTB}, 30")
    a(f"s_cmp_eq_u32 s{hBLK}, 23")
    a(f"s_cbranch_scc1 L_t2")
    P.proj_task(a, "4", nseg=4)
    a("s_branch L_tdone")
    a.label("L_t2")
    P.proj_task(a, "2", nseg=2)
    a("s_branch L_tdone")
    a.label("L_t1")
    a(f"s_mov_b32 s{P.pTB}, s{hBLK}")
    P.proj_task(a, "1", nseg=1)
    a.label("L_tdone")
    a(f"s_cmp_lg_u32 s{sW}, 0")
    a(f"s_cbranch_scc1 L_tnosig")
    a(f"s_lshl_b32 s{sTMP}, s{hBLK}, 2")
    a(f"s_add_u32 s{sTMP}, s{sTMP}, {E.D_BLK}")
    a(f"v_mov_b32 v{P.qT0}, s{sTMP}")
    a(f"v_mov_b32 v{P.qT1}, 1")
    a(f"s_mov_b64 exec, 1")
    a(f"global_atomic_add v{P.qT0}, v{P.qT1}, {sr(sDBG,2)} sc1")
    a(f"s_mov_b64 exec, -1")
    a.vm = []
    a.label("L_tnosig")
    if rt:
        a(f"s_lshr_b32 s97, s{hQ}, 5")
        a(f"s_add_u32 s97, s97, 16")
        mark(a, "s97", rt)
    a(f"s_add_u32 s{hQ}, s{hQ}, 32")
    a("s_branch L_task")
    a.label("L_engine")
    mark(a, 3, rt)
    a(f"s_cmp_ge_u32 s{hRK}, 32")
    a(f"s_cbranch_scc1 L_end")
    a(f"s_mov_b32 s{E.eE}, s{hXI}")
    a(f"s_mov_b32 s{E.eH}, s{hRK}")
    E.engine_setup(a)
    mark(a, 4, rt, 8, 9)
    E.engine_loop(a, 6, mark=(lambda: mark(a, f"s{E.eIT}", rt, 8, 9)))
    a.label("L_fail")
    a("s_mov_b64 exec, 1")
    a(f"v_mov_b32 v1, 60")
    a(f"v_mov_b32 v2, 1000")
    a(f"global_store_dword v1, v2, {sr(sDBG,2)}")
    a.label("L_end")
    a("s_waitcnt vmcnt(0) lgkmcnt(0)")
    a("s_endpgm")
    body = a.finish(timed="untimed" not in opts)
    print("nop states", a.nnop, "lines", body.count("\n"))
    ref = open("standalone__memory_aug_recurrent_mem_tr__prompt.s.ref").read()
    head = ref[:ref.index("; @launch")]
    head += f"; @launch grid=(256,1,1) block=(256,1,1) lds={LDS_BYTES}\n"
    head += f""".amdgcn_target "amdgcn-amd-amdhsa--gfx950"
.text
.globl {NAME}
.p2align 8
.type {NAME},@function
{NAME}:
"""
    foot = f""".section .rodata,"a"
.p2align 6
.amdhsa_kernel {NAME}
  .amdhsa_next_free_vgpr 512
  .amdhsa_next_free_sgpr 102
  .amdhsa_accum_offset 256
  .amdhsa_group_segment_fixed_size 0
  .amdhsa_kernarg_size 80
  .amdhsa_user_sgpr_count 2
  .amdhsa_user_sgpr_kernarg_segment_ptr 1
  .amdhsa_system_sgpr_workgroup_id_x 1
.end_amdhsa_kernel
"""
    return head + body + foot

if __name__ == "__main__":
    out = sys.argv[1] if len(sys.argv) > 1 else "standalone__memory_aug_recurrent_mem_tr__prompt.s"
    opts = sys.argv[2].split(",") if len(sys.argv) > 2 else ["rs=4", "t1=1"]
    open(out, "w").write(gen("stamps" in opts, opts))
```

```python
from asmlib import *
from team9 import KF, EF, KXI, VXI, QXI, KMI, VMI, sWS, sDBG, sW, sTMP, sSPIN, SPIN_MAX, fbits
from proj import srd

EP = 0x6000000
eWO = 8; eOUT = 12
eE, eH, eSEG, eIT = 28, 29, 30, 31
eA, eB, eC2, eD = 32, 33, 34, 35
eMSK = 36
eC = 52
eEPW, eEPR = 53, 54
eJ = 55
eM32 = 56
eT = 58
eKF, eEF = 66, 67
D_BLK = 64
D_Q = 160
D_ENG = 184
D_KM = 208
gL16, gL4, gKM, gOW, gPS, gRD, gOUT = 0, 1, 2, 3, 4, 5, 6
gT0, gT1, gT2, gT3 = 8, 9, 10, 11
gSEL = 12
KX = 16
QF = 48
KMF = 64
VXF = 80
WOF = 96
L_OI = 0

def blk_of_seg(a, sseg, sdst):
    a(f"s_sub_u32 s{sTMP}, s{sseg}, 18")
    a(f"s_lshr_b32 s{sTMP}, s{sTMP}, 2")
    a(f"s_add_u32 s{sdst}, s{sTMP}, 12")
    a(f"s_add_u32 s{sTMP}, s{sseg}, 6")
    a(f"s_lshr_b32 s{sTMP}, s{sTMP}, 1")
    a(f"s_cmp_lt_u32 s{sseg}, 18")
    a(f"s_cselect_b32 s{sdst}, s{sTMP}, s{sdst}")
    a(f"s_cmp_lt_u32 s{sseg}, 6")
    a(f"s_cselect_b32 s{sdst}, s{sseg}, s{sdst}")

def wait_ctr(a, lab, soff, sthr, vt0, vt1, sleep=8):
    a(f"v_mov_b32 v{vt0}, s{soff}")
    a(f"s_mov_b32 s{sSPIN}, 0")
    a.label(lab)
    a(f"global_load_dword v{vt1}, v{vt0}, {sr(sDBG,2)} sc1")
    a(f"s_add_u32 s{sSPIN}, s{sSPIN}, 1")
    a(f"s_cmp_gt_u32 s{sSPIN}, {SPIN_MAX}")
    a(f"s_cbranch_scc1 L_fail")
    a.wait_vm0()
    a(f"v_readfirstlane_b32 s{sTMP}, v{vt1}")
    a(f"s_cmp_ge_u32 s{sTMP}, s{sthr}")
    a(f"s_cbranch_scc1 {lab}_ok")
    a(f"s_sleep {sleep}")
    a(f"s_branch {lab}")
    a.label(f"{lab}_ok")

def wait_vec(a, lab, soff, nl, sthr, sleep):
    a(f"s_mov_b32 s{sSPIN}, 0")
    a(f"s_mov_b64 exec, {hex((1 << nl) - 1)}")
    a.label(lab)
    a(f"buffer_load_dword v{gT1}, v{gL4}, {sr(sWS,4)}, s{soff} offen sc1")
    a(f"s_add_u32 s{sSPIN}, s{sSPIN}, 1")
    a(f"s_cmp_gt_u32 s{sSPIN}, {SPIN_MAX}")
    a(f"s_cbranch_scc1 L_fail")
    a.wait_vm0()
    a(f"v_cmp_gt_u32 vcc, s{sthr}, v{gT1}")
    a(f"s_cbranch_vccz {lab}_ok")
    a(f"s_sleep {sleep}")
    a(f"s_branch {lab}")
    a.label(f"{lab}_ok")
    a(f"s_mov_b64 exec, -1")

def engine_setup(a):
    srd(a, eWO, 40, 5242880); srd(a, eOUT, 56, 2621440)
    L, N, G_, R, C = 16, 17, 18, 19, 20
    a(f"v_lshrrev_b32 v{L}, 4, v{gL16}")
    a(f"v_lshrrev_b32 v{gL4}, 2, v{gL16}")
    a(f"v_and_b32 v{N}, 15, v{L}")
    a(f"v_lshrrev_b32 v{G_}, 4, v{L}")
    a(f"v_lshrrev_b32 v{R}, 2, v{N}")
    a(f"v_and_b32 v{C}, 3, v{N}")
    a(f"s_mul_i32 s{eA}, s{eH}, 163840")
    a(f"s_mul_i32 s{eB}, s{sW}, 40960")
    a(f"s_add_u32 s{eA}, s{eA}, s{eB}")
    for i in range(40):
        if i % 4 == 0:
            a(f"s_add_u32 m0, s{eB}, {i*1024}")
            a(f"s_add_u32 s{eC2}, s{eA}, {i*1024}")
        a(f"buffer_load_dwordx4 v{gL16}, {sr(eWO,4)}, s{eC2} offen offset:{(i%4)*1024} lds")
    a(f"v_and_b32 v21, 1, v{R}")
    a(f"v_lshlrev_b32 v21, 2, v21")
    a(f"v_lshrrev_b32 v22, 3, v{N}")
    a(f"v_lshl_add_u32 v21, v22, 1, v21")
    a(f"v_and_b32 v22, 1, v{N}")
    a(f"v_add_u32 v21, v21, v22")
    a(f"v_lshlrev_b32 v{gKM}, 7, v{G_}")
    a(f"v_lshl_add_u32 v{gKM}, v21, 4, v{gKM}")
    a(f"v_lshrrev_b32 v21, 1, v{G_}")
    a(f"v_and_b32 v22, 1, v{G_}")
    a(f"v_lshlrev_b32 v{gOW}, 8, v21")
    a(f"v_lshl_add_u32 v{gOW}, v{N}, 4, v{gOW}")
    a(f"v_lshl_add_u32 v{gOW}, v22, 3, v{gOW}")
    a(f"s_and_b32 s{eC2}, s{sW}, 1")
    a(f"s_lshl_b32 s{eD}, s{eC2}, 10")
    a(f"s_lshr_b32 s{sTMP}, s{sW}, 1")
    a(f"s_lshl_b32 s{sTMP}, s{sTMP}, 12")
    a(f"s_add_u32 s{eD}, s{eD}, s{sTMP}")
    a(f"v_add_u32 v{gOW}, s{eD}, v{gOW}")
    a(f"v_lshlrev_b32 v{gPS}, 6, v{N}")
    a(f"v_lshl_add_u32 v{gPS}, v{G_}, 4, v{gPS}")
    a(f"s_mov_b32 s{sTMP}, 40960")
    a(f"v_mul_lo_u32 v{gRD}, v{G_}, s{sTMP}")
    a(f"v_lshl_add_u32 v{gRD}, v{N}, 4, v{gRD}")
    a(f"s_movk_i32 s{sTMP}, 1280")
    a(f"v_mul_lo_u32 v{gOUT}, v{R}, s{sTMP}")
    a(f"v_lshl_add_u32 v{gOUT}, v{C}, 4, v{gOUT}")
    a(f"v_lshl_add_u32 v{gOUT}, v{G_}, 3, v{gOUT}")
    a(f"v_and_b32 v21, 7, v{N}")
    a(f"v_mov_b32 v22, 0x3F80")
    a(f"v_mov_b32 v23, 0x3F800000")
    for k in range(4): a(f"v_mov_b32 v{gSEL+k}, 0")
    for jj in range(8):
        a(f"v_cmp_eq_u32 vcc, {jj}, v21")
        a(f"v_cndmask_b32 v{gSEL + jj//2}, v{gSEL + jj//2}, v{22 + jj%2}, vcc")
    a(f"v_sub_u32 v21, v{R}, v{G_}")
    a(f"v_lshlrev_b32 v21, 3, v21")
    a(f"v_add_u32 v21, v21, v{C}")
    a(f"s_lshl_b32 s{sTMP}, s{eC2}, 2")
    a(f"v_add_u32 v21, s{sTMP}, v21")
    for k in range(8):
        a(f"v_cmp_le_i32 {sr(eMSK+2*k,2)}, {k}, v21")
    a(f"s_mov_b32 s{eC}, {fbits(128 ** -0.5 * 1.4426950408889634):#x}")
    a(f"s_mov_b32 s{eM32}, -1"); a(f"s_mov_b32 s{eM32+1}, 0")
    a(f"v_lshlrev_b32 v21, 3, v{G_}")
    a(f"v_add_u32 v21, v21, v{R}")
    a(f"s_movk_i32 s{sTMP}, 1280")
    a(f"v_mul_lo_u32 v21, v21, s{sTMP}")
    a(f"v_lshl_add_u32 v21, v{C}, 4, v21")
    a(f"s_mul_i32 s{sTMP}, s{sW}, 320")
    a(f"v_add_u32 v21, s{sTMP}, v21")
    a.wait_vm0()
    a("s_barrier")
    for kp in range(4):
        if kp: a(f"v_add_u32 v21, {32*1280}, v21")
        for p in range(5):
            for tile in range(2):
                f = WOF + ((p * 2 + tile) * 4 + kp) * 4
                for hh in range(2):
                    a(f"ds_read_b64_tr_b16 {vr(f + 2*hh, 2)}, v21 offset:{4*hh*1280 + p*64 + tile*8}")
    a.wait_lg0()
    a("s_barrier")
    a(f"s_lshl_b32 s{eEPR}, s{eE}, 22")
    a(f"s_add_u32 s{eEPR}, s{eEPR}, {EP:#x}")
    a(f"s_mul_i32 s{eEPW}, s{eH}, 40960")
    a(f"s_mul_i32 s{sTMP}, s{sW}, 5120")
    a(f"s_add_u32 s{eEPW}, s{eEPW}, s{sTMP}")
    a(f"s_add_u32 s{eEPW}, s{eEPW}, s{eEPR}")
    a(f"s_mov_b32 s{eSEG}, s{eE}")
    a(f"s_mov_b32 s{eIT}, 0")
    a(f"s_lshl_b32 s{eKF}, s{eH}, 7")
    a(f"s_lshl_b32 s{sTMP}, s{eE}, 12")
    a(f"s_add_u32 s{eKF}, s{eKF}, s{sTMP}")
    a(f"s_add_u32 s{eKF}, s{eKF}, {KF:#x}")
    a(f"s_lshl_b32 s{eEF}, s{eE}, 7")
    a(f"s_add_u32 s{eEF}, s{eEF}, {EF:#x}")
    a(f"s_cmp_lg_u32 s{sW}, 0")
    a(f"s_cbranch_scc1 L_en_s1")
    a(f"s_lshl_b32 s{eA}, s{eE}, 2")
    a(f"s_add_u32 s{eA}, s{eA}, {D_ENG}")
    a(f"s_mov_b32 s{eB}, 32")
    wait_ctr(a, "L_en_i1", eA, eB, gT0, gT1)
    a(f"s_mov_b32 s{eA}, 52")
    a(f"s_mov_b32 s{eB}, 64")
    wait_ctr(a, "L_en_i2", eA, eB, gT0, gT1)
    a.label("L_en_s1")

def engine_loop(a, nE, standalone=False, mark=None):
    a.label("L_en_loop")
    a(f"s_cmp_ge_u32 s{eSEG}, 64")
    a(f"s_cbranch_scc1 L_end")
    a(f"s_cmp_lg_u32 s{sW}, 0")
    a(f"s_cbranch_scc1 L_en_go")
    blk_of_seg(a, eSEG, eA)
    a(f"s_lshl_b32 s{eA}, s{eA}, 2")
    a(f"s_add_u32 s{eA}, s{eA}, {D_BLK}")
    a(f"s_mov_b32 s{eB}, 32")
    wait_ctr(a, "L_en_w1", eA, eB, gT0, gT1, sleep=16)
    a.label("L_en_go")
    a("s_barrier")
    a(f"s_lshl_b32 s{eA}, s{eSEG}, 5")
    a(f"s_add_u32 s{eA}, s{eA}, s{eH}")
    a(f"s_lshl_b32 s{eB}, s{eA}, 11")
    a(f"s_lshl_b32 s{eA}, s{eA}, 13")
    a(f"s_add_u32 s{eT}, s{eA}, 4096")
    hk = []
    for k in range(8):
        hk.append(a(f"buffer_load_dwordx4 {vr(KX+4*k,4)}, v{gL16}, {sr(sWS,4)}, s{eA if k < 4 else eT} offen offset:{(k%4)*1024} sc1"))
    a(f"s_and_b32 s{sTMP}, s{sW}, 1")
    a(f"s_lshl_b32 s{sTMP}, s{sTMP}, 10")
    a(f"s_add_u32 s{eT+1}, s{eA}, s{sTMP}")
    a(f"s_add_u32 s{eT+1}, s{eT+1}, {QXI:#x}")
    a(f"s_add_u32 s{eT+2}, s{eT+1}, 4096")
    hq = [a(f"buffer_load_dwordx4 {vr(QF+4*k,4)}, v{gL16}, {sr(sWS,4)}, s{eT+1+k//2} offen offset:{(k%2)*2048} sc1") for k in range(4)]
    a(f"s_lshr_b32 s{sTMP}, s{sW}, 1")
    a(f"s_lshl_b32 s{eT+4}, s{sTMP}, 10")
    a(f"s_lshl_b32 s{sTMP}, s{sTMP}, 12")
    a(f"s_add_u32 s{eT+3}, s{eA}, s{sTMP}")
    a(f"s_add_u32 s{eT+3}, s{eT+3}, {VXI:#x}")
    hv = [a(f"buffer_load_dwordx4 {vr(VXF+4*k,4)}, v{gL16}, {sr(sWS,4)}, s{eT+3} offen offset:{k*1024} sc1") for k in range(4)]
    a(f"s_cmp_lg_u32 s{sW}, 0")
    a(f"s_cbranch_scc1 L_en_go2")
    a(f"s_add_u32 s{eD}, s{eSEG}, 1")
    save = list(a.vm)
    wait_vec(a, "L_en_w2", eKF, 2, eD, 6)
    a.vm = save
    a.label("L_en_go2")
    a("s_barrier")
    a(f"s_add_u32 s{eT+5}, s{eB}, {KMI:#x}")
    hm = [a(f"buffer_load_dwordx4 {vr(KMF+4*k,4)}, v{gKM}, {sr(sWS,4)}, s{eT+5} offen offset:{k*512} sc1") for k in range(4)]
    a(f"s_add_u32 s{eT+4}, s{eT+4}, s{eB}")
    a(f"s_add_u32 s{eT+4}, s{eT+4}, {VMI:#x}")
    for k in range(4): a(f"v_accvgpr_write_b32 a{97+2*k}, 0")
    hvm = [a(f"buffer_load_dword a{96+2*k}, v{gL4}, {sr(sWS,4)}, s{eT+4} offen offset:{k*256} sc1") for k in range(4)]
    SA = 104
    for k in range(4):
        a.wait(hk[2*k+1], hq[k])
        c = lambda d: "0" if k == 0 else ar(d, 4)
        a(f"v_mfma_f32_16x16x32_bf16 {ar(SA,4)}, {vr(KX+8*k,4)}, {vr(QF+4*k,4)}, {c(SA)}")
        a(f"v_mfma_f32_16x16x32_bf16 {ar(SA+4,4)}, {vr(KX+8*k+4,4)}, {vr(QF+4*k,4)}, {c(SA+4)}")
    for k in range(4):
        a.wait(hm[k])
        a(f"v_mfma_f32_16x16x32_bf16 {ar(SA+8,4)}, {vr(KMF+4*k,4)}, {vr(QF+4*k,4)}, {'0' if k == 0 else ar(SA+8,4)}")
    S = [KX + i for i in range(10)]
    a(f"v_mov_b32 v{gT2}, 0xf149f2ca")
    for i in range(10): a(f"v_accvgpr_read_b32 v{S[i]}, a{SA+i}")
    for i in range(8): a(f"v_cndmask_b32 v{S[i]}, v{gT2}, v{S[i]}, {sr(eMSK+2*i,2)}")
    M, M2 = gT0, gT1
    a(f"v_max3_f32 v{M}, v{S[0]}, v{S[1]}, v{S[2]}")
    a(f"v_max3_f32 v{M2}, v{S[3]}, v{S[4]}, v{S[5]}")
    a(f"v_max3_f32 v{M}, v{M}, v{S[6]}, v{S[7]}")
    a(f"v_max3_f32 v{M2}, v{M2}, v{S[8]}, v{S[9]}")
    a(f"v_max_f32 v{M}, v{M}, v{M2}")
    a(f"v_mov_b32 v{M2}, v{M}")
    a(f"v_permlane16_swap_b32 v{M}, v{M2}")
    a(f"v_max_f32 v{M}, v{M}, v{M2}")
    a(f"v_mov_b32 v{M2}, v{M}")
    a(f"v_permlane32_swap_b32 v{M}, v{M2}")
    a(f"v_max_f32 v{M}, v{M}, v{M2}")
    a(f"v_mul_f32 v{M}, s{eC}, v{M}")
    for s_ in S: a(f"v_fma_f32 v{s_}, v{s_}, s{eC}, -v{M}")
    for s_ in S: a(f"v_exp_f32 v{s_}, v{s_}")
    P = KX + 12; PM = KX + 16
    for k in range(5): a(f"v_cvt_pk_bf16_f32 v{P+k}, v{S[2*k]}, v{S[2*k+1]}")
    a(f"v_mov_b32 v{PM+1}, 0")
    Ls = gT0
    a(f"v_add_f32 v{Ls}, v{S[0]}, v{S[1]}")
    for i in range(2, 10): a(f"v_add_f32 v{Ls}, v{Ls}, v{S[i]}")
    DO = QF; DM = KMF
    a.wait(hv, hvm)
    for t in range(4):
        a(f"v_mfma_f32_16x16x32_bf16 {vr(DO+4*t,4)}, {vr(VXF+4*t,4)}, {vr(P,4)}, 0")
    for t in range(4):
        a(f"v_mfma_f32_16x16x16_bf16 {vr(DM+4*t,4)}, {ar(96+2*t,2)}, {vr(PM,2)}, 0")
    a(f"v_mov_b32 v{M2}, v{Ls}")
    a(f"v_permlane16_swap_b32 v{Ls}, v{M2}")
    a(f"v_add_f32 v{Ls}, v{Ls}, v{M2}")
    a(f"v_mov_b32 v{M2}, v{Ls}")
    a(f"v_permlane32_swap_b32 v{Ls}, v{M2}")
    a(f"v_add_f32 v{Ls}, v{Ls}, v{M2}")
    a(f"v_rcp_f32 v{Ls}, v{Ls}")
    for t in range(4):
        for r in range(4):
            a(f"v_add_f32 v{DO+4*t+r}, v{DO+4*t+r}, v{DM+4*t+r}")
            a(f"v_mul_f32 v{DO+4*t+r}, v{DO+4*t+r}, v{Ls}")
        a(f"v_cvt_pk_bf16_f32 v{DO+4*t}, v{DO+4*t}, v{DO+4*t+1}")
        a(f"v_cvt_pk_bf16_f32 v{DO+4*t+1}, v{DO+4*t+2}, v{DO+4*t+3}")
        a(f"ds_write_b64 v{gOW}, {vr(DO+4*t,2)} offset:{L_OI + (t>>1)*2048 + (t&1)*512}")
    a.wait_lg0()
    a("s_barrier")
    OF = KX
    ho = [a(f"ds_read_b128 {vr(OF+4*i,4)}, v{gL16} offset:{L_OI + i*1024}") for i in range(8)]
    n = 0
    for p in range(5):
        for kp in range(4):
            for aa in range(2):
                a.wait(ho[kp*2 + aa])
                for tile in range(2):
                    d = ((p * 2 + aa) * 2 + tile) * 4
                    f = WOF + ((p * 2 + tile) * 4 + kp) * 4
                    a(f"v_mfma_f32_16x16x32_bf16 {ar(d,4)}, {vr(f,4)}, {vr(OF+4*(kp*2+aa),4)}, {'0' if kp == 0 else ar(d,4)}")
    a(f"s_add_u32 s{eT}, s{eEPW}, 4096")
    a(f"s_add_u32 s{eT+1}, s{eEPW}, 20480")
    a(f"s_add_u32 s{eT+2}, s{eEPW}, {20480+4096}")
    for p in range(5):
        for aa in range(2):
            t = QF + (n % 4) * 12; n += 1
            d = (p * 2 + aa) * 8
            for r in range(8): a(f"v_accvgpr_read_b32 v{t+4+r}, a{d+r}")
            for k in range(4): a(f"v_cvt_pk_bf16_f32 v{t+k}, v{t+4+2*k}, v{t+5+2*k}")
            so = [[eEPW, eT], [eT+1, eT+2]][aa][p // 4]
            a(f"buffer_store_dwordx4 {vr(t,4)}, v{gPS}, {sr(sWS,4)}, s{so} offen offset:{(p%4)*1024}")
    a.wait_vm0()
    a("s_barrier")
    a(f"s_add_u32 s{eIT}, s{eIT}, 1")
    a(f"s_cmp_lg_u32 s{sW}, 0")
    a(f"s_cbranch_scc1 L_en_nosig")
    a(f"s_lshl_b32 s{eA}, s{eH}, 2")
    a(f"s_add_u32 s{eA}, s{eA}, s{eEF}")
    a(f"v_mov_b32 v{gT0}, s{eIT}")
    a(f"s_mov_b64 exec, 1")
    a(f"buffer_store_dword v{gT0}, v{gL4}, {sr(sWS,4)}, s{eA} offen")
    wait_vec(a, "L_en_w3", eEF, 32, eIT, 1)
    a.label("L_en_nosig")
    a("s_barrier")
    a(f"s_lshl_b32 s{eJ}, s{eH}, 2")
    a(f"s_add_u32 s{eJ}, s{eJ}, s{sW}")
    a.label("L_en_job")
    a(f"s_lshl_b32 s{eA}, s{eJ}, 8")
    a(f"s_add_u32 s{eA}, s{eA}, s{eEPR}")
    hs = []
    for i in range(8):
        hs.append(a(f"buffer_load_dwordx4 {vr(KX+4*i,4)}, v{gRD}, {sr(sWS,4)}, s{eA} offen sc1"))
        if i < 7: a(f"s_add_u32 s{eA}, s{eA}, {4*40960}")
    a(f"s_lshr_b32 s{eB}, s{eJ}, 2")
    a(f"s_cmp_ge_u32 s{eB}, 20")
    a(f"s_cselect_b32 s{eC2}, 4, 0")
    a(f"s_cselect_b32 s{eD}, 20, 0")
    a(f"s_sub_u32 s{eB}, s{eB}, s{eD}")
    a(f"s_and_b32 s{eD}, s{eJ}, 3")
    a(f"s_lshl_b32 s{eD}, s{eD}, 3")
    a(f"s_add_u32 s{eC2}, s{eC2}, s{eD}")
    a(f"s_lshl_b32 s{eD}, s{eSEG}, 5")
    a(f"s_add_u32 s{eC2}, s{eC2}, s{eD}")
    a(f"s_mul_i32 s{eC2}, s{eC2}, 1280")
    a(f"s_lshl_b32 s{eB}, s{eB}, 6")
    a(f"s_add_u32 s{eC2}, s{eC2}, s{eB}")
    D = QF
    for i in range(8):
        a.wait(hs[i])
        a(f"v_mfma_f32_16x16x32_bf16 {vr(D,4)}, {vr(gSEL,4)}, {vr(KX+4*i,4)}, {'0' if i == 0 else vr(D,4)}")
    a(f"v_cvt_pk_bf16_f32 v{D}, v{D}, v{D+1}")
    a(f"v_cvt_pk_bf16_f32 v{D+1}, v{D+2}, v{D+3}")
    a(f"s_mov_b64 exec, {sr(eM32,2)}")
    a(f"buffer_store_dwordx2 {vr(D,2)}, v{gOUT}, {sr(eOUT,4)}, s{eC2} offen")
    a(f"s_mov_b64 exec, -1")
    a(f"s_add_u32 s{eJ}, s{eJ}, 128")
    a(f"s_cmp_lt_u32 s{eJ}, 160")
    a(f"s_cbranch_scc1 L_en_job")
    if mark: mark()
    a(f"s_xor_b32 s{eEPW}, s{eEPW}, 0x200000")
    a(f"s_xor_b32 s{eEPR}, s{eEPR}, 0x200000")
    a(f"s_add_u32 s{eSEG}, s{eSEG}, {nE}")
    a(f"s_branch L_en_loop")
```

```python
from asmlib import *
import struct

KXI   = 0x0000000
VXI   = 0x1000000
QXI   = 0x2000000
KMI   = 0x3000000
VMI   = 0x3400000
PB    = 0x4000000
PST = 10240 + 128
PBX = 0x80000
IMGL  = 0x41A0000
IMGR  = 0x4400000
TB    = 0x4120000
PROBE = 0x4160000
KF = 0x4170000
EF = 0x4180000
STAMP = 0x5000000
WS_BYTES = 268435456

L_IA = 0
L_IB = 10240
L_T  = 20480
L_O  = 22528
L_V  = 23552
L_KV = 24576
NKV = 4
KVD = 2
LDS_BYTES = 163840

vL16, vA, vGW, vAV, vRD, vPB, vPS, vIDX = 0, 1, 2, 3, 4, 5, 6, 7
vID0 = 8; vGG = 10; vSA = 11
vXA = 188
vBLK = 190
vBA = 191
vKMW = 189
vTW, vTQ, vTK, vOW = 12, 13, 14, 15
vG1, vG2 = 16, 17
vKL, vKR, vVX = 19, 20, 21
vL4 = 22
vCK = 23
vT0, vT1, vT2, vT3 = 24, 25, 26, 27
ZQ, ZK, V = 28, 32, 36
GL = 40
AR = 52
KXR = 84
TLQ, TLK, TRQ, TRK = 116, 124, 132, 140
AU = 84
GB = 104
VXR = 148
D3 = 152
TT = 164
DO = 168
PP = 172
VP = 178
vAG = 180
vBP = 183
vSEL4 = 184
RESV0 = 192
ACC = [AR, AR + 4, AR + 8, AR + 12, AR + 16]
AO = AR + 20
RL = TLQ
vVW = 50
EX = 168
vG0 = 2
vS10, vS01 = 3, 18

sWS = 4; sRA = 8; sDBG = 16
sXCC, sH, sW, sSTEP, sSPIN = 18, 19, 20, 21, 22
sTMP = 23
sX, sR, sU = 24, 25, 26
sKX, sVX, sKM, sVM = 28, 29, 30, 31
sPB0 = 32
sHASJ = 33
sRD = 34
sJL, sJR = 42, 43
sGL, sGR = 44, 45
sTBW, sTBR = 46, 47
sMLO = 48; sMHI = 50; sMPB = 52
sTAG0, sTAG1 = 54, 55
sONE = 56
sC = 58
sSLOT = 59
sKVW, sKVR = 60, 61
sT2, sT3, sT4, sT5 = 62, 63, 64, 65
sSTAMP = 66
sM40 = 68
sGL1, sGL2 = 70, 71
sPT = 72
sKSEG = 76
sRDY = 77
sBL = 78
sKF = 79
sKE = 80
sKVM = 67
sTM = 84
SPIN_MAX = 200000

def fbits(x):
    return struct.unpack("<I", struct.pack("<f", x))[0]

OPS = [(m, i) for m in "qkv" for i in range(10)] + [("WO", c, j) for c in range(5) for j in range(2)]
PL = {}
for n, op in enumerate(OPS):
    PL[op] = ("a", n * 8) if n < 32 else ("v", RESV0 + (n - 32) * 8)

def breg(op):
    p = PL[op]
    return ar(p[1], 8) if p[0] == "a" else vr(p[1], 8)

class Team:
    def __init__(self, a, stamps=False, opts=()):
        self.a = a
        self.stamps = stamps
        self.opts = set(opts)
    def opt(self, name, default):
        o = [x for x in self.opts if x.startswith(name + "=")]
        return int(o[0][len(name) + 1:]) if o else default
    def smf(self, op, D, A):
        self.a(f"v_smfmac_f32_16x16x64_bf16 {vr(D,4)}, {vr(A,4)}, {breg(op)}, v{vIDX}")
    def stamp(self, i):
        sel = [o for o in self.opts if o.startswith("st=")]
        names = sel[0][3:].split("/") if sel else ["0", "1", "2", "3", "4", "5", "6", "7"]
        if str(i) not in names or not self.stamps: return
        self.a(f"s_memtime {sr(sTM + 2*names.index(str(i)), 2)}")
    def srd(self, dst, karg_off, nbytes):
        a = self.a
        a(f"s_load_dwordx2 {sr(dst,2)}, s[0:1], {karg_off}")
        a(f"s_waitcnt lgkmcnt(0)")
        a(f"s_and_b32 s{dst+1}, s{dst+1}, 0xffff")
        a(f"s_mov_b32 s{dst+2}, {nbytes}")
        a(f"s_mov_b32 s{dst+3}, 0x00020000")

    def setup(self):
        a = self.a
        L, N, Gg, Tt, TH = 100, 101, 102, 103, 104
        a(f"v_and_b32 v{L}, 63, v0")
        a(f"v_and_b32 v{N}, 15, v{L}")
        a(f"v_lshrrev_b32 v{Gg}, 4, v{L}")
        a(f"v_and_b32 v{Tt}, 7, v{L}")
        a(f"v_bfe_u32 v{TH}, v{L}, 3, 1")
        a(f"v_lshlrev_b32 v{vL16}, 4, v{L}")
        a(f"v_lshlrev_b32 v{vL4}, 2, v{L}")
        a(f"v_lshlrev_b32 v{vA}, 7, v{Gg}")
        a(f"v_lshl_add_u32 v{vA}, v{Tt}, 4, v{vA}")
        for b in range(1, 4):
            a(f"s_add_u32 s{sTMP}, s{sW}, {b}")
            a(f"s_and_b32 s{sTMP}, s{sTMP}, 3")
            a(f"s_lshl_b32 s{sTMP}, s{sTMP}, 10")
            a(f"v_add_u32 v{vAG+b-1}, s{sTMP}, v{vL16}")
        a(f"v_mov_b32 v{vS10}, 0x3F80")
        a(f"v_mov_b32 v{vS01}, 0x3F800000")
        a(f"v_lshlrev_b32 v{vBP}, 5, v{TH}")
        a(f"v_and_b32 v107, 1, v{L}")
        a(f"v_lshl_add_u32 v{vBP}, v107, 4, v{vBP}")
        a(f"v_bfe_u32 v107, v{L}, 1, 2")
        a(f"v_add_u32 v{vBP}, v{vBP}, v107")
        a(f"v_lshlrev_b32 v{vBP}, 2, v{vBP}")
        a(f"s_movk_i32 s{sTMP}, {PST}")
        a(f"v_mul_lo_u32 v{vRD}, v{Gg}, s{sTMP}")
        a(f"v_lshl_add_u32 v{vRD}, v{N}, 3, v{vRD}")
        G1, G0 = 105, 106
        a(f"v_lshrrev_b32 v{G1}, 1, v{Gg}")
        a(f"v_and_b32 v{G0}, 1, v{Gg}")
        a(f"v_and_b32 v107, 3, v{L}")
        a(f"v_lshlrev_b32 v{vPB}, 4, v107")
        a(f"v_lshlrev_b32 v{vXA}, 3, v{L}")
        a(f"v_lshl_add_u32 v{vPB}, v{G1}, 7, v{vPB}")
        a(f"v_lshl_add_u32 v{vPB}, v{G0}, 3, v{vPB}")
        a(f"s_lshl_b32 s{sTMP}, s{sW}, 10")
        a(f"v_add_u32 v{vGG}, s{sTMP}, v{vL16}")
        a(f"v_lshrrev_b32 v{vSA}, 1, v{vGG}")
        a(f"v_lshlrev_b32 v{vPS}, 8, v{G0}")
        a(f"v_lshl_add_u32 v{vPS}, v{TH}, 7, v{vPS}")
        a(f"v_lshl_add_u32 v{vPS}, v{Tt}, 4, v{vPS}")
        a(f"v_lshl_add_u32 v{vPS}, v{G1}, 3, v{vPS}")
        a(f"v_mov_b32 v107, 0x8888")
        a(f"v_mov_b32 v108, 0xDDDD")
        a(f"v_cmp_eq_u32 vcc, 0, v{TH}")
        a(f"v_cndmask_b32 v{vIDX}, v108, v107, vcc")
        a(f"v_lshlrev_b32 v107, 2, v{Gg}")
        a(f"v_sub_u32 v107, v{N}, v107")
        a(f"v_mov_b32 v108, 0x3F80")
        a(f"v_mov_b32 v109, 0x3F800000")
        a(f"v_mov_b32 v{vID0}, 0")
        a(f"v_mov_b32 v{vID0+1}, 0")
        for jj in range(4):
            a(f"v_cmp_eq_u32 vcc, {jj}, v107")
            a(f"v_cndmask_b32 v{vID0 + jj//2}, v{vID0 + jj//2}, v{108 + jj%2}, vcc")
        a(f"s_mov_b32 s{sONE}, 0x3F80"); a(f"s_mov_b32 s{sONE+1}, 0")
        a(f"v_lshlrev_b64 {vr(vSEL4,2)}, v{vL16}, {sr(sONE,2)}")
        a(f"v_lshlrev_b64 {vr(vSEL4+2,2)}, v{vL16}, {sr(sONE,2)}")
        a(f"v_lshlrev_b32 v{vTW}, 4, v{N}")
        a(f"v_lshl_add_u32 v{vTW}, v{G1}, 8, v{vTW}")
        a(f"v_lshl_add_u32 v{vTW}, v{G0}, 3, v{vTW}")
        a(f"s_lshl_b32 s{sTMP}, s{sW}, 9")
        a(f"v_add_u32 v{vTW}, s{sTMP}, v{vTW}")
        a(f"v_lshrrev_b32 v107, 3, v{L}")
        a(f"v_lshlrev_b32 v{vKMW}, 8, v107")
        a(f"v_lshl_add_u32 v{vKMW}, v{Tt}, 4, v{vKMW}")
        a(f"v_lshlrev_b32 v107, 8, v{Gg}")
        a(f"v_lshl_add_u32 v{vTQ}, v{Tt}, 4, v107")
        a(f"v_bfe_u32 v108, v{N}, 2, 1")
        a(f"v_lshlrev_b32 v108, 2, v108")
        a(f"v_lshl_add_u32 v108, v{TH}, 1, v108")
        a(f"v_and_b32 v109, 1, v{N}")
        a(f"v_add3_u32 v108, v108, v109, 8")
        a(f"v_lshl_add_u32 v{vTK}, v108, 4, v107")
        a(f"v_lshlrev_b32 v{vOW}, 7, v{G1}")
        a(f"v_lshl_add_u32 v{vOW}, v{Tt}, 4, v{vOW}")
        a(f"v_lshl_add_u32 v{vOW}, v{G0}, 3, v{vOW}")
        a(f"s_lshl_b32 s{sTMP}, s{sW}, 8")
        a(f"v_add_u32 v{vOW}, s{sTMP}, v{vOW}")
        a(f"v_mov_b32 v{VP+1}, 0")
        a(f"v_mov_b32 v{PP+5}, 0")
        a(f"s_mov_b32 s{sMLO}, 0x00FF00FF"); a(f"s_mov_b32 s{sMLO+1}, 0x00FF00FF")
        a(f"s_mov_b32 s{sMHI}, 0xFF00FF00"); a(f"s_mov_b32 s{sMHI+1}, 0xFF00FF00")
        a(f"s_mov_b32 s{sMPB}, 0x000F000F"); a(f"s_mov_b32 s{sMPB+1}, 0x000F000F")
        a(f"s_mov_b32 s{sM40}, 0x33333333"); a(f"s_mov_b32 s{sM40+1}, 0x33333333")
        a(f"s_mov_b32 s{sC}, {fbits(128 ** -0.5 * 1.4426950408889634):#x}")
        a(f"s_and_b32 s{sU}, s{sR}, 1")
        a(f"s_lshr_b32 s{sH}, s{sR}, 1")
        a(f"s_lshl_b32 s{sTMP}, s{sX}, 4")
        a(f"s_add_u32 s{sH}, s{sH}, s{sTMP}")
        a(f"s_lshl_b32 s{sKX}, s{sH}, 13")
        a(f"s_lshl_b32 s{sTMP}, s{sU}, 12")
        a(f"s_add_u32 s{sTMP}, s{sTMP}, {VXI:#x}")
        a(f"s_lshl_b32 s{sT2}, s{sW}, 12")
        a(f"s_cmp_eq_u32 s{sW}, 2")
        a(f"s_cselect_b32 s{sTMP}, s{sTMP}, s{sT2}")
        a(f"s_add_u32 s{sKX}, s{sKX}, s{sTMP}")
        a(f"s_lshl_b32 s{sKM}, s{sH}, 11")
        a(f"s_lshl_b32 s{sTMP}, s{sU}, 10")
        a(f"s_add_u32 s{sKM}, s{sKM}, s{sTMP}")
        a(f"s_add_u32 s{sVM}, s{sKM}, {VMI:#x}")
        a(f"s_add_u32 s{sKM}, s{sKM}, {KMI:#x}")
        a(f"s_mul_i32 s{sPB0}, s{sR}, {PST}")
        a(f"s_mul_i32 s{sTMP}, s{sW}, 2560")
        a(f"s_add_u32 s{sPB0}, s{sPB0}, s{sTMP}")
        a(f"s_mul_i32 s{sT5}, s{sX}, {PBX}")
        a(f"s_add_u32 s{sT5}, s{sT5}, {PB:#x}")
        a(f"s_add_u32 s{sPB0}, s{sPB0}, s{sT5}")
        a(f"s_lshl_b32 s{sTMP}, s{sW}, 1")
        a(f"s_lshr_b32 s{sT2}, s{sR}, 4")
        a(f"s_add_u32 s{sTMP}, s{sTMP}, s{sT2}")
        a(f"s_cmp_le_u32 s{sTMP}, 4")
        a(f"s_cselect_b32 s{sHASJ}, 1, 0")
        a(f"s_cselect_b32 s{sTMP}, s{sTMP}, 4")
        a(f"s_sub_u32 s{sTMP}, 4, s{sTMP}")
        a(f"s_bfe_u32 s{sT2}, s{sR}, 0x20002")
        a(f"s_bfe_u32 s{sT3}, s{sR}, 0x10001")
        a(f"s_and_b32 s{sT4}, s{sR}, 1")
        a(f"s_mul_i32 s{sRD}, s{sT2}, 5")
        a(f"s_add_u32 s{sRD}, s{sRD}, s{sTMP}")
        a(f"s_lshl_b32 s{sRD}, s{sRD}, 9")
        a(f"s_add_u32 s{sRD}, s{sRD}, s{sT5}")
        a(f"s_lshl_b32 s{sT5}, s{sT3}, 8")
        a(f"s_add_u32 s{sRD}, s{sRD}, s{sT5}")
        a(f"s_lshl_b32 s{sT5}, s{sT4}, 7")
        a(f"s_add_u32 s{sRD}, s{sRD}, s{sT5}")
        for i in range(1, 8):
            a(f"s_add_u32 s{sRD+i}, s{sRD+i-1}, {4*PST}")
        a(f"s_lshl_b32 s{sJL}, s{sTMP}, 11")
        a(f"s_lshl_b32 s{sT5}, s{sT2}, 9")
        a(f"s_add_u32 s{sJL}, s{sJL}, s{sT5}")
        a(f"s_lshl_b32 s{sT5}, s{sT4}, 8")
        a(f"s_add_u32 s{sJL}, s{sJL}, s{sT5}")
        a(f"s_lshl_b32 s{sT5}, s{sT3}, 7")
        a(f"s_add_u32 s{sJL}, s{sJL}, s{sT5}")
        a(f"s_and_b32 s{sT5}, s{sJL}, 0x2000")
        a(f"s_add_u32 s{sJL}, s{sJL}, s{sT5}")
        a(f"s_lshl_b32 s{sT5}, s{sX}, 16")
        a(f"s_add_u32 s{sGL}, s{sT5}, {IMGL:#x}")
        a(f"s_lshl_b32 s{sT5}, s{sX}, 22")
        a(f"s_add_u32 s{sGR}, s{sT5}, {IMGR:#x}")
        a(f"s_xor_b32 s{sT5}, s{sT5}, 0x400000")
        a(f"s_add_u32 s{sJR}, s{sJL}, s{sT5}")
        a(f"s_add_u32 s{sJR}, s{sJR}, {IMGR:#x}")
        a(f"s_add_u32 s{sJL}, s{sJL}, s{sGL}")
        a(f"s_mov_b32 s{sSLOT}, 32768")
        for src, dst in ((vGG, vG0), (vSA, vG2)):
            a(f"v_and_b32 v107, 0xFFFFFF3F, v{src}")
            a(f"v_bfe_u32 v108, v{src}, 6, 1")
            a(f"v_lshl_add_u32 v107, v108, 7, v107")
            a(f"v_bfe_u32 v108, v{src}, 7, 1")
            a(f"v_lshl_add_u32 v{dst}, v108, 6, v107")
        a(f"v_add_u32 v{vG1}, 4096, v{vG0}")
        a(f"v_add_u32 v{vG2}, 16384, v{vG2}")
        a(f"s_lshl_b32 s{sTBW}, s{sX}, 5")
        a(f"s_add_u32 s{sTBW}, s{sTBW}, s{sR}")
        a(f"s_lshl_b32 s{sTBW}, s{sTBW}, 11")
        a(f"s_add_u32 s{sTBW}, s{sTBW}, {TB:#x}")
        a(f"s_xor_b32 s{sTBR}, s{sTBW}, 0x800")
        a(f"s_mov_b32 s{sTAG0}, 0")
        a(f"s_mov_b32 s{sTAG1}, 0")
        a(f"s_mov_b32 s{sSTEP}, 0")
        a(f"s_mov_b32 s{sKSEG}, 0")
        a(f"s_mov_b32 s{sRDY}, 0")
        a(f"s_lshl_b32 s{sKF}, s{sH}, 7")
        a(f"s_lshl_b32 s{sTMP}, s{sU}, 2")
        a(f"s_add_u32 s{sKF}, s{sKF}, s{sTMP}")
        a(f"s_add_u32 s{sKF}, s{sKF}, {KF:#x}")
        a(f"v_min_u32 v{vBA}, 92, v{vL4}")
        a(f"v_add_u32 v{vBA}, 64, v{vBA}")
        if self.stamps:
            a(f"s_lshl_b32 s{sTMP}, s{sX}, 5")
            a(f"s_add_u32 s{sTMP}, s{sTMP}, s{sR}")
            a(f"s_lshl_b32 s{sTMP}, s{sTMP}, 2")
            a(f"s_add_u32 s{sTMP}, s{sTMP}, s{sW}")
            a(f"s_lshl_b32 s{sSTAMP}, s{sTMP}, 13")
            a(f"s_add_u32 s{sSTAMP}, s{sSTAMP}, {STAMP:#x}")

    def init_buffers(self):
        a = self.a
        a(f"v_mov_b64 {vr(vT0,2)}, -1")
        for c in range(5):
            a(f"buffer_store_dwordx2 {vr(vT0,2)}, v{vPS}, {sr(sWS,4)}, s{sPB0} offen offset:{c*512}")
        a(f"buffer_store_dwordx2 {vr(vT0,2)}, v{vTW}, {sr(sWS,4)}, s{sTBW} offen")
        a(f"v_mov_b32 v{vT2}, 0")
        a(f"s_mov_b64 exec, 1")
        for e in range(6):
            a(f"s_add_u32 s{sT2}, s{sKF}, {e*4096}")
            a(f"buffer_store_dword v{vT2}, v{vT2}, {sr(sWS,4)}, s{sT2} offen sc1")
        a(f"s_movk_i32 s{sKE}, {5*4096}")
        a(f"s_mov_b64 exec, -1")
        a(f"s_lshl_b32 s{sT2}, s{sR}, 2")
        a(f"s_add_u32 s{sT2}, s{sT2}, s{sW}")
        a(f"s_bfe_u32 s{sT3}, s{sT2}, 0x10002")
        a(f"s_xor_b32 s{sT3}, s{sT3}, 1")
        for r in range(4): a(f"v_mov_b32 v{ZQ+r}, s{sT3}")
        a(f"s_lshr_b32 s{sT3}, s{sT2}, 1")
        a(f"s_lshl_b32 s{sT3}, s{sT3}, 15")
        a(f"s_and_b32 s{sT2}, s{sT2}, 1")
        a(f"s_lshl_b32 s{sT2}, s{sT2}, 13")
        a(f"s_add_u32 s{sT2}, s{sT2}, s{sT3}")
        a(f"s_add_u32 s{sT2}, s{sT2}, s{sGR}")
        for k in range(10):
            if k % 4 == 0: a(f"s_add_u32 s{sT3}, s{sT2}, {[0, 4096, 16384][k // 4]}")
            a(f"buffer_store_dwordx4 {vr(ZQ,4)}, v{vL16}, {sr(sWS,4)}, s{sT3} offen offset:{(k%4)*1024} sc1")
        a(f"s_cmp_eq_u32 s{sHASJ}, 0")
        a(f"s_cbranch_scc1 L_team_noinit")
        a(f"s_mov_b64 exec, 0xFFFF")
        for off in (0, 32768):
            a(f"s_add_u32 s{sT2}, s{sJL}, {off}")
            a(f"buffer_store_dwordx2 {vr(vT0,2)}, v{vXA}, {sr(sWS,4)}, s{sT2} offen")
        a(f"s_mov_b64 exec, -1")
        a.label("L_team_noinit")

    def signal(self, dbg_off):
        a = self.a
        a(f"s_cmp_lg_u32 s{sW}, 0")
        a(f"s_cbranch_scc1 L_ta_done")
        a(f"s_mov_b64 exec, 1")
        a(f"v_mov_b32 v{vT0}, {dbg_off}")
        a(f"v_mov_b32 v{vT1}, 1")
        save = list(a.vm)
        a(f"global_atomic_add v{vT0}, v{vT1}, {sr(sDBG,2)} sc1")
        a.vm = save
        a(f"s_mov_b64 exec, -1")
        a.label("L_ta_done")

    def wait_team(self, dbg_off):
        a = self.a
        a(f"v_mov_b32 v{vT0}, {dbg_off}")
        a(f"s_mov_b32 s{sSPIN}, 0")
        a(f"s_mov_b64 exec, 1")
        a.label(f"L_tw_poll")
        a(f"global_load_dwordx2 {vr(vT2,2)}, v{vT0}, {sr(sDBG,2)} sc1")
        a(f"s_add_u32 s{sSPIN}, s{sSPIN}, 1")
        a(f"s_cmp_gt_u32 s{sSPIN}, {SPIN_MAX}")
        a(f"s_cbranch_scc1 L_fail")
        a.wait_vm0()
        a(f"v_readfirstlane_b32 s{sTMP}, v{vT2}")
        a(f"s_cmp_lt_u32 s{sTMP}, 64")
        a(f"s_cbranch_scc1 L_tw_poll")
        a(f"v_readfirstlane_b32 s{sTMP}, v{vT3}")
        a(f"s_cmp_lg_u32 s{sTMP}, 0")
        a(f"s_cbranch_scc1 L_tw_have")
        a(f"v_mov_b32 v{vT2}, 1")
        a(f"v_mov_b32 v{vT3}, 0")
        a(f"global_atomic_cmpswap v{vT1}, v{vT0}, {vr(vT2,2)}, {sr(sDBG,2)} offset:4 sc0 sc1")
        a.wait_vm0()
        a(f"v_readfirstlane_b32 s{sTMP}, v{vT1}")
        a.label("L_tw_have")
        a(f"s_mov_b64 exec, -1")
        a(f"s_and_b32 s{sTMP}, s{sTMP}, 0x2000")
        a(f"s_add_u32 s{sJR}, s{sJR}, s{sTMP}")
        a(f"s_add_u32 s{sGR}, s{sGR}, s{sTMP}")

    def load_weights(self):
        a = self.a
        TA = 40
        OUT = 104
        vW, vWo, vSN, vSO, vPSEL = 112, 113, 114, 115, 116
        vSB = 117
        vAD = [124, 125, 126, 127]
        NB = 5; SZ = 32768
        a(f"v_lshrrev_b32 v{vT0}, 7, v{vL16}")
        a(f"v_and_b32 v{vT1}, 0x70, v{vL16}")
        a(f"v_lshl_add_u32 v{vW}, v{vT0}, 13, v{vT1}")
        a(f"v_lshrrev_b32 v{vT0}, 8, v{vL16}")
        a(f"v_and_b32 v{vT1}, 0xF0, v{vL16}")
        a(f"s_movk_i32 s{sTMP}, 1280")
        a(f"v_mul_lo_u32 v{vWo}, v{vT0}, s{sTMP}")
        a(f"v_add_u32 v{vWo}, v{vWo}, v{vT1}")
        a(f"v_lshrrev_b32 v{vT2}, 5, v{vT1}")
        a(f"v_lshlrev_b32 v{vSN}, 2, v{vT2}")
        a(f"v_lshrrev_b32 v{vT2}, 1, v{vT0}")
        a(f"v_lshl_add_u32 v{vSN}, v{vT2}, 11, v{vSN}")
        a(f"v_and_b32 v{vT2}, 1, v{vT0}")
        a(f"v_lshl_add_u32 v{vSN}, v{vT2}, 9, v{vSN}")
        a(f"s_lshl_b32 s{sTMP}, s{sW}, 5")
        a(f"v_add_u32 v{vSN}, s{sTMP}, v{vSN}")
        a(f"v_mov_b32 v{vT2}, 0x05040100")
        a(f"v_mov_b32 v{vT3}, 0x07060302")
        a(f"v_and_b32 v{vPSEL}, 16, v{vL16}")
        a(f"v_cmp_eq_u32 vcc, 0, v{vPSEL}")
        a(f"v_cndmask_b32 v{vPSEL}, v{vT3}, v{vT2}, vcc")
        for b in range(4):
            a(f"s_add_u32 s{sTMP}, s{sW}, {b}")
            a(f"s_and_b32 s{sTMP}, s{sTMP}, 3")
            a(f"s_lshl_b32 s{sTMP}, s{sTMP}, 13")
            a(f"v_add_u32 v{vSB+b}, s{sTMP}, v{vSN}")
        a(f"v_lshrrev_b32 v{vT1}, 2, v{vT1}")
        a(f"v_lshl_add_u32 v{vSO}, v{vT0}, 10, v{vT1}")
        a(f"s_lshl_b32 s{sTMP}, s{sW}, 6")
        a(f"v_add_u32 v{vSO}, s{sTMP}, v{vSO}")
        sBQ, sBS, sBO, sLD = sT2, sT3, sT4, sT5
        a(f"s_lshl_b32 s{sBS}, s{sH}, 8")
        a(f"s_lshl_b32 s{sTMP}, s{sU}, 7")
        a(f"s_add_u32 s{sBS}, s{sBS}, s{sTMP}")
        a(f"s_mul_i32 s{sTMP}, s{sW}, {64*8192}")
        a(f"s_add_u32 s{sBQ}, s{sBS}, s{sTMP}")
        a(f"s_mul_i32 s{sTMP}, s{sW}, {32*8192}")
        a(f"s_add_u32 s{sBS}, s{sBS}, s{sTMP}")
        a(f"s_mul_i32 s{sBO}, s{sH}, 163840")
        a(f"s_mul_i32 s{sTMP}, s{sU}, {64*1280}")
        a(f"s_add_u32 s{sBO}, s{sBO}, s{sTMP}")
        a(f"s_mul_i32 s{sTMP}, s{sW}, {16*1280}")
        a(f"s_add_u32 s{sBO}, s{sBO}, s{sTMP}")
        a(f"s_lshl_b32 s{sLD}, s{sW}, 12")
        stages = [(m, i) for m in "qkv" for i in range(3)] + [("o", c) for c in range(5)]
        karg = {"q": 16, "k": 24, "v": 32, "o": 40}
        srds = {"q": 8, "k": 12, "v": 8, "o": 12}
        loaded = set()
        hd = {}
        def dma(n):
            kind, i = stages[n]
            if kind not in loaded:
                self.srd(srds[kind], karg[kind], 5242880); loaded.add(kind)
            buf = (n % NB) * SZ
            hs = []
            big = kind != "o" and i < 2
            for m in range(8 if big else 4):
                if big:
                    a(f"s_lshl_b32 m0, s{sLD}, 1")
                    a(f"s_add_u32 m0, m0, {buf + m*1024}")
                else:
                    a(f"s_add_u32 m0, s{sLD}, {buf + m*1024}")
                if kind == "o":
                    a(f"s_add_u32 s{sTMP}, s{sBO}, {4*m*1280 + i*256}")
                    hs.append(a(f"buffer_load_dwordx4 v{vWo}, {sr(srds[kind],4)}, s{sTMP} offen lds"))
                elif big:
                    a(f"s_add_u32 s{sTMP}, s{sBQ}, {(256*i + 8*m) * 8192}")
                    hs.append(a(f"buffer_load_dwordx4 v{vW}, {sr(srds[kind],4)}, s{sTMP} offen lds"))
                else:
                    a(f"s_add_u32 s{sTMP}, s{sBS}, {(512 + 8*m) * 8192}")
                    hs.append(a(f"buffer_load_dwordx4 v{vW}, {sr(srds[kind],4)}, s{sTMP} offen lds"))
            hd[n] = hs
        def combine(op, lo, hi):
            p = PL[op]
            for r in range(8):
                d = p[1] + r if p[0] == "v" else OUT + r
                a(f"v_perm_b32 v{d}, v{hi+r}, v{lo+r}, v{vPSEL}")
            if p[0] == "a":
                for r in range(8): a(f"v_accvgpr_write_b32 a{p[1]+r}, v{OUT+r}")
        AH = NB - 1
        for n in range(AH): dma(n)
        for n, (kind, i) in enumerate(stages):
            a.wait(hd[n])
            a.wait_lg0()
            a("s_barrier")
            if n + AH < len(stages): dma(n + AH)
            if n == 0: self.signal(52)
            buf = (n % NB) * SZ
            if kind in "qkv":
                nb = 4 if i < 2 else 2
                hs = {}
                for b in range(nb):
                    if i < 2: a(f"v_add_u32 v{vAD[b]}, {buf}, v{vSB+b}")
                    else: a(f"v_add_u32 v{vAD[b]}, {buf + b*8192}, v{vSN}")
                for b in range(nb):
                    for hf in range(2):
                        for r in range(8):
                            hs[b] = a(f"ds_read_b32 v{TA + 16*b + 8*hf + r}, v{vAD[b]} offset:{(32*(r>>2) + (r&3) + 8*hf)*128}")
                    if b >= 1:
                        a.wait(hs[b-1])
                        combine((kind, 2*(b-1) + i if i < 2 else 8 + b - 1), TA + 16*(b-1), TA + 16*(b-1) + 8)
                b = nb
                a.wait(hs[b-1])
                combine((kind, 2*(b-1) + i if i < 2 else 8 + b - 1), TA + 16*(b-1), TA + 16*(b-1) + 8)
            else:
                a(f"v_add_u32 v{vAD[0]}, {buf}, v{vSO}")
                for j in range(2):
                    p = PL[("WO", i, j)]
                    for r in range(8):
                        a(f"ds_read_b32 {p[0]}{p[1]+r}, v{vAD[0]} offset:{(32*j + (r&3) + 16*(r>>2))*256}")
        a.wait_all()
        a("s_barrier")

    def kv_ready(self, lab):
        a = self.a
        from engine import blk_of_seg, D_BLK
        a(f"s_min_u32 s{sT2}, s{sKSEG}, 63")
        blk_of_seg(a, sT2, sBL)
        a(f"s_add_u32 s{sKSEG}, s{sKSEG}, 1")
        a(f"s_bitcmp1_b32 s{sRDY}, s{sBL}")
        a(f"s_cbranch_scc1 {lab}_ok")
        a(f"s_mov_b32 s{sSPIN}, 0")
        a.label(lab)
        a(f"global_load_dword v{vBLK}, v{vBA}, {sr(sDBG,2)} sc1")
        a(f"s_add_u32 s{sSPIN}, s{sSPIN}, 1")
        a(f"s_cmp_gt_u32 s{sSPIN}, {SPIN_MAX}")
        a(f"s_cbranch_scc1 L_fail")
        a(f"s_waitcnt vmcnt(0)")
        a(f"v_cmp_le_u32 vcc, 32, v{vBLK}")
        a(f"s_nop 3")
        a(f"s_mov_b32 s{sRDY}, vcc_lo")
        a(f"s_bitcmp1_b32 s{sRDY}, s{sBL}")
        a(f"s_cbranch_scc1 {lab}_ok")
        a(f"s_sleep 4")
        a(f"s_branch {lab}")
        a.label(f"{lab}_ok")
    def kv_check(self):
        a = self.a
        if "full" in self.opts:
            self.nkv = getattr(self, "nkv", 0) + 1
            save = list(a.vm)
            self.kv_ready(f"L_kvr{self.nkv}")
            a.vm = save
    def kv_dma(self):
        a = self.a
        a(f"s_lshl_b32 s{sTMP}, s{sKVM}, 1")
        a(f"s_add_u32 m0, s{sTMP}, s{sKVW}")
        a(f"s_add_u32 s{sKVW}, s{sKVW}, 12288")
        for k in range(4):
            a(f"buffer_load_dwordx4 v{vL16}, {sr(sWS,4)}, s{sKX} offen offset:{k*1024} sc1 lds")
        a(f"s_cmp_eq_u32 s{sKVW}, {L_KV + NKV*12288}")
        a(f"s_cselect_b32 s{sKVW}, {L_KV}, s{sKVW}")
        a(f"s_add_u32 s{sKX}, s{sKX}, {32*8192}")

    def prologue(self):
        a = self.a
        a(f"s_lshl_b32 s{sTMP}, s{sW}, 8")
        a(f"v_add_u32 v{vVW}, s{sTMP}, v{vL4}")
        a(f"s_lshl_b32 s{sKVM}, s{sW}, 11")
        a(f"s_mov_b32 s{sKVW}, {L_KV}")
        a(f"s_mov_b32 s{sKVR}, {L_KV}")
        for _ in range(KVD): self.kv_check()
        a(f"s_cmp_eq_u32 s{sW}, 3")
        a(f"s_cbranch_scc1 L_pro3")
        for _ in range(KVD): self.kv_dma()
        a.label("L_pro3")
        self.srd(sRA, 8, 10240)
        a(f"s_movk_i32 s{sTMP}, 1280")
        a(f"v_bfe_u32 v{vT0}, v{vGG}, 4, 3")
        a(f"v_mul_lo_u32 v{vT0}, v{vT0}, s{sTMP}")
        a(f"v_lshrrev_b32 v{vT1}, 7, v{vGG}")
        a(f"v_lshl_add_u32 v{vT0}, v{vT1}, 4, v{vT0}")
        a(f"buffer_load_dwordx4 {vr(GL,4)}, v{vT0}, {sr(sRA,4)}, 0 offen")
        a(f"buffer_load_dwordx4 {vr(GL+4,4)}, v{vT0}, {sr(sRA,4)}, 0 offen offset:512")
        a(f"v_bfe_u32 v{vT2}, v{vSA}, 4, 3")
        a(f"v_mul_lo_u32 v{vT2}, v{vT2}, s{sTMP}")
        a(f"v_lshrrev_b32 v{vT1}, 7, v{vSA}")
        a(f"v_lshl_add_u32 v{vT2}, v{vT1}, 4, v{vT2}")
        a(f"v_and_b32 v{vT1}, 8, v{vSA}")
        a(f"v_add_u32 v{vT2}, v{vT2}, v{vT1}")
        a(f"buffer_load_dwordx2 {vr(GL+8,2)}, v{vT2}, {sr(sRA,4)}, 0 offen offset:1024")
        for r in range(ZQ, ZQ + 12, 2): a(f"v_mov_b64 {vr(r,2)}, 0")
        for r in range(TRQ, TRQ + 16, 2): a(f"v_mov_b64 {vr(r,2)}, 0")
        a.wait_all()

    def poll(self, lab, issue, regs, tag, thr=None, sleep=0):
        a = self.a
        a(f"s_mov_b32 s{sSPIN}, 0")
        a.label(lab)
        issue()
        a(f"s_add_u32 s{sSPIN}, s{sSPIN}, 1")
        a(f"s_cmp_gt_u32 s{sSPIN}, {SPIN_MAX}")
        a(f"s_cbranch_scc1 L_fail")
        a(f"s_waitcnt vmcnt({thr if thr is not None else self.opt('thr', 30)})")
        if sleep: a(f"s_sleep {sleep}")
        for n, r in enumerate(regs): self.ck(r, tag, n == 0)
        a(f"v_and_b32 v{vCK}, 1, v{vCK}")
        a(f"v_cmp_ne_u32 vcc, 0, v{vCK}")
        a(f"s_cbranch_vccnz {lab}")
    def bpoll(self, lab, issue, first, regs, per, tag):
        a = self.a
        a(f"s_mov_b32 s{sSPIN}, 0")
        a(f"s_branch {lab}_c")
        save = list(a.vm)
        a.label(lab)
        issue()
        a.vm = save
        a.label(f"{lab}_c")
        a(f"s_add_u32 s{sSPIN}, s{sSPIN}, 1")
        a(f"s_cmp_gt_u32 s{sSPIN}, {SPIN_MAX}")
        a(f"s_cbranch_scc1 L_fail")
        assert a.vm[-len(first):] == first
        for n, r in enumerate(regs):
            a.wait(first[n // per])
            self.ck(r, tag, n == 0)
        a(f"v_and_b32 v{vCK}, 1, v{vCK}")
        a(f"v_cmp_ne_u32 vcc, 0, v{vCK}")
        a(f"s_cbranch_vccnz {lab}")
    def poison(self, regs, tag):
        self.a(f"s_xor_b32 s{sTMP}, s{tag}, 1")
        for r in regs: self.a(f"v_mov_b32 v{r}, s{sTMP}")
    def ck(self, reg, tag, first):
        if first: self.a(f"v_xor_b32 v{vCK}, s{tag}, v{reg}")
        else: self.a(f"v_bitop3_b32 v{vCK}, v{vCK}, v{reg}, s{tag} bitop3:0xF6")

    def step(self, exit_label):
        a = self.a
        def ex_read():
            return [a(f"ds_read_b128 {vr(EX,4)}, v{vKMW} offset:{L_T + 128}"), a(f"ds_read_b128 {vr(EX+4,4)}, v{vL16} offset:{L_V}")]
        def ex_store():
            if "nokm" not in self.opts:
                a(f"buffer_store_dwordx4 {vr(EX,4)}, v{vL16}, {sr(sWS,4)}, s{sKM} offen sc1")
                a(f"buffer_store_dwordx4 {vr(EX+4,4)}, v{vL16}, {sr(sWS,4)}, s{sVM} offen sc1")
            a(f"s_add_u32 s{sKM}, s{sKM}, {32*2048}")
            a(f"s_add_u32 s{sVM}, s{sVM}, {32*2048}")
        def flag(val):
            a(f"v_mov_b32 v{vBLK}, {val}")
            a(f"s_mov_b64 exec, 1")
            a(f"s_add_u32 s{sTMP}, s{sKF}, s{sKE}")
            a(f"buffer_store_dword v{vBLK}, v{vL4}, {sr(sWS,4)}, s{sTMP} offen sc1")
            a(f"s_mov_b64 exec, -1")
            a(f"s_add_u32 s{sKE}, s{sKE}, 4096")
            a(f"s_cmp_eq_u32 s{sKE}, {6*4096}")
            a(f"s_cselect_b32 s{sKE}, 0, s{sKE}")
        def slow_ops():
            save = list(a.vm)
            a(f"s_cmp_eq_u32 s{sW}, 3")
            a(f"s_cbranch_scc1 L_so3")
            if "nokv" not in self.opts: self.kv_dma()
            a(f"s_branch L_so_done")
            a.label("L_so3")
            a(f"s_cmp_eq_u32 s{sSTEP}, 0")
            a(f"s_cbranch_scc1 L_so_done")
            ex_store()
            if "full" in self.opts:
                a(f"s_sub_u32 s{sT2}, s{sSTEP}, 1")
                flag(f"s{sT2}")
            a.label("L_so_done")
            a.vm = save
        def last():
            a.wait_lg0()
            a("s_barrier")
            a(f"s_cmp_lg_u32 s{sW}, 3")
            a(f"s_cbranch_scc1 {exit_label}")
            a(f"s_nop 4")
            a.wait(ex_read())
            ex_store()
            a.wait_vm0()
            if "full" in self.opts:
                flag(64); flag(64)
        self.exports = last
        TREG = [r + 1 for r in [TRQ, TRQ + 2, TRK, TRK + 2, TRQ + 4, TRQ + 6, TRK + 4, TRK + 6]]
        if "tmask" in self.opts: TREG = [r + 1 for r in [TRQ, TRQ + 2, TRQ + 4, TRQ + 6, TRK, TRK + 2, TRK + 4, TRK + 6]]
        RREG = [RL + 2*i + 1 for i in range(8)]
        GREG = [GL + 2*i + 1 for i in range(5)]
        areg = lambda k: GL + 4 * k if k < 2 else AR + 4 * (k - 2)
        self.stamp(0)
        a(f"ds_write_b128 v{vGG}, {vr(GL,4)} offset:{L_IA}")
        self.smf(("q", 0), ZQ, areg(0))
        a(f"ds_write_b128 v{vGG}, {vr(GL+4,4)} offset:{L_IA+4096}")
        self.smf(("k", 0), ZK, areg(0))
        a(f"ds_write_b64 v{vSA}, {vr(GL+8,2)} offset:{L_IA+8192}")
        self.smf(("q", 1), ZQ, areg(1))
        self.smf(("k", 1), ZK, areg(1))
        a(f"s_lshl_b32 s{sTMP}, s{sU}, 12")
        a(f"s_add_u32 s{sT2}, s{sTMP}, s{sKVR}")
        a(f"v_add_u32 v{vKL}, s{sT2}, v{vL16}")
        a.wait_lg0()
        a("s_barrier")
        self.stamp("b1")
        ah = {}
        for k in range(2, 10):
            if k < 8: ah[k] = a(f"ds_read_b128 {vr(areg(k),4)}, v{vAG + k//2 - 1} offset:{L_IA + (k%2)*4096}")
            else: ah[k] = a(f"ds_read_b128 {vr(areg(k),4)}, v{vL16} offset:{L_IA + k*1024}")
        self.smf(("v", 0), V, areg(0))
        a(f"s_xor_b32 s{sTMP}, s{sTMP}, 0x1000")
        a(f"s_add_u32 s{sT2}, s{sTMP}, s{sKVR}")
        a(f"v_add_u32 v{vKR}, s{sT2}, v{vL16}")
        self.smf(("v", 1), V, areg(1))
        a(f"s_lshr_b32 s{sTMP}, s{sKVM}, 1")
        a(f"s_add_u32 s{sT2}, s{sTMP}, s{sKVR}")
        a(f"v_add_u32 v{vVX}, s{sT2}, v{vL16}")
        for k in range(2, 10):
            a.wait(ah[k])
            self.smf(("q", k), ZQ, areg(k))
            kk = k - 2
            if kk == 5: a(f"s_waitcnt vmcnt(0)")
            a(f"ds_read_b128 {vr(KXR+4*kk,4)}, v{vKL if kk < 4 else vKR} offset:{(kk%4)*1024}")
            self.smf(("k", k), ZK, areg(k))
            if "tmask" in self.opts: a(f"v_mov_b32 v{TREG[kk]}, s{sTAG0}")
        self.stamp(1)
        vs = {"done": 2}
        def vfill(n):
            for _ in range(n):
                k = vs["done"]
                if k >= 10: return
                self.smf(("v", k), V, areg(k))
                vs["done"] += 1
        vfill(2)
        for r in range(4): a(f"v_permlane32_swap_b32 v{ZQ+r}, v{ZK+r}")
        a(f"v_pk_add_f32 {vr(ZQ,2)}, {vr(ZQ,2)}, {vr(ZK,2)}")
        a(f"v_pk_add_f32 {vr(ZQ+2,2)}, {vr(ZQ+2,2)}, {vr(ZK+2,2)}")
        a(f"v_cvt_pk_bf16_f32 v{TT}, v{ZQ}, v{ZQ+1}")
        a(f"v_cvt_pk_bf16_f32 v{TT+1}, v{ZQ+2}, v{ZQ+3}")
        a(f"ds_read_b128 {vr(VXR,4)}, v{vVX} offset:8192")
        a(f"v_mfma_f32_16x16x16_bf16 {vr(ZK,4)}, {vr(TT,2)}, {vr(vID0,2)}, 0")
        vfill(2)
        a(f"v_cvt_pk_bf16_f32 v{TT+1}, v{ZK+2}, v{ZK+3}")
        a(f"v_cvt_pk_bf16_f32 v{TT+2}, v{ZK}, v{ZK+1}")
        a(f"v_and_or_b32 v{TT+3}, v{TT+1}, -2, s{sTAG0}")
        a(f"buffer_store_dwordx2 {vr(TT+2,2)}, v{vTW}, {sr(sWS,4)}, s{sTBW} offen")
        a(f"v_mov_b32 v{TT}, v{TT+2}")
        a(f"ds_write_b64 v{vTW}, {vr(TT,2)} offset:{L_T}")
        self.stamp("ts")
        vfill(2)
        a.wait_lg0()
        a("s_barrier")
        self.stamp(2)
        hq = [a(f"ds_read_b128 {vr(TLQ+4*k,4)}, v{vTQ} offset:{L_T + k*1024}") for k in range(2)]
        hkk = [a(f"ds_read_b128 {vr(TLK+4*k,4)}, v{vTK} offset:{L_T + k*1024}") for k in range(2)]
        def tissue():
            if "tmask" not in self.opts:
                return [a(f"buffer_load_dwordx4 {vr(TRQ,4)}, v{vTQ}, {sr(sWS,4)}, s{sTBR} offen sc1"),
                        a(f"buffer_load_dwordx4 {vr(TRK,4)}, v{vTK}, {sr(sWS,4)}, s{sTBR} offen sc1"),
                        a(f"buffer_load_dwordx4 {vr(TRQ+4,4)}, v{vTQ}, {sr(sWS,4)}, s{sTBR} offen offset:1024 sc1"),
                        a(f"buffer_load_dwordx4 {vr(TRK+4,4)}, v{vTK}, {sr(sWS,4)}, s{sTBR} offen offset:1024 sc1")]
            a(f"s_mov_b64 exec, {sr(sMLO,2)}")
            h0 = a(f"buffer_load_dwordx4 {vr(TRQ,4)}, v{vTQ}, {sr(sWS,4)}, s{sTBR} offen sc1")
            h2 = a(f"buffer_load_dwordx4 {vr(TRQ+4,4)}, v{vTQ}, {sr(sWS,4)}, s{sTBR} offen offset:1024 sc1")
            a(f"s_mov_b64 exec, {sr(sM40,2)}")
            h1 = a(f"buffer_load_dwordx4 {vr(TRK,4)}, v{vTK}, {sr(sWS,4)}, s{sTBR} offen sc1")
            h3 = a(f"buffer_load_dwordx4 {vr(TRK+4,4)}, v{vTK}, {sr(sWS,4)}, s{sTBR} offen offset:1024 sc1")
            a(f"s_mov_b64 exec, -1")
            return [h0, h2, h1, h3]
        vfill(2)
        if self.opt("t1", 0) == 0: ths = tissue()
        def smm(Q, K, kx, first):
            c = lambda d: "0" if first else vr(d, 4)
            a(f"v_mfma_f32_16x16x32_bf16 {vr(D3,4)}, {vr(kx,4)}, {vr(Q,4)}, {c(D3)}")
            a(f"v_mfma_f32_16x16x32_bf16 {vr(D3+4,4)}, {vr(kx+4,4)}, {vr(Q,4)}, {c(D3+4)}")
            a(f"v_mfma_f32_16x16x32_bf16 {vr(D3+8,4)}, {vr(K,4)}, {vr(Q,4)}, {c(D3+8)}")
        a.wait(hq, hkk)
        smm(TLQ, TLK, KXR, True)
        if self.opt("t1", 0) == 1: ths = tissue()
        smm(TLQ + 4, TLK + 4, KXR + 8, False)
        a(f"v_permlane32_swap_b32 v{V}, v{V+2}")
        a(f"v_permlane32_swap_b32 v{V+1}, v{V+3}")
        a(f"v_pk_add_f32 {vr(V,2)}, {vr(V,2)}, {vr(V+2,2)}")
        a(f"v_cvt_pk_bf16_f32 v{VP}, v{V}, v{V+1}")
        a(f"ds_write_b32 v{vVW}, v{VP} offset:{L_V}")
        for c in range(5):
            a(f"v_mov_b64 {vr(ACC[c],2)}, 0")
            a(f"v_mov_b64 {vr(ACC[c]+2,2)}, 0")
        a(f"v_mov_b64 {vr(V,2)}, 0")
        a(f"v_mov_b64 {vr(V+2,2)}, 0")
        a(f"v_mov_b64 {vr(ZQ,2)}, 0")
        a(f"v_mov_b64 {vr(ZQ+2,2)}, 0")
        a(f"v_mov_b64 {vr(ZK,2)}, 0")
        a(f"v_mov_b64 {vr(ZK+2,2)}, 0")
        a(f"s_add_u32 s{sKVR}, s{sKVR}, 12288")
        a(f"s_cmp_eq_u32 s{sKVR}, {L_KV + NKV*12288}")
        a(f"s_cselect_b32 s{sKVR}, {L_KV}, s{sKVR}")
        self.kv_check()
        self.bpoll("L_tpoll", tissue, ths, TREG, 2, sTAG0)
        if self.stamps: a(f"s_mov_b32 s{sT5}, s{sSPIN}")
        self.stamp(3)
        smm(TRQ, TRK, KXR + 16, False)
        smm(TRQ + 4, TRK + 4, KXR + 24, False)
        slow_ops()
        a(f"s_cmp_eq_u32 s{sSTEP}, 63")
        a(f"s_cbranch_scc1 L_last")
        M, M2 = vT0, vT3
        S = [D3, D3+1, D3+2, D3+3, D3+8]
        for r in range(4):
            a(f"v_mov_b32_dpp v{D3+r}, v{D3+4+r} row_ror:8 row_mask:0xf bank_mask:0xc")
        a(f"v_max3_f32 v{M}, v{S[0]}, v{S[1]}, v{S[2]}")
        a(f"v_mov_b32_dpp v{D3+8}, v{D3+9} row_ror:8 row_mask:0xf bank_mask:0xc")
        a(f"v_max3_f32 v{M}, v{M}, v{S[3]}, v{S[4]}")
        a(f"v_max_f32_dpp v{M}, v{M}, v{M} row_ror:8 row_mask:0xf bank_mask:0xf")
        a(f"v_mov_b32 v{M2}, v{M}")
        a(f"v_permlane16_swap_b32 v{M}, v{M2}")
        a(f"v_max_f32 v{M}, v{M}, v{M2}")
        a(f"v_mov_b32 v{M2}, v{M}")
        a(f"v_permlane32_swap_b32 v{M}, v{M2}")
        a(f"v_max_f32 v{M}, v{M}, v{M2}")
        a(f"v_mul_f32 v{M}, s{sC}, v{M}")
        for s_ in S: a(f"v_fma_f32 v{s_}, v{s_}, s{sC}, -v{M}")
        for s_ in S: a(f"v_exp_f32 v{s_}, v{s_}")
        P = PP; PM = PP + 4
        Ls = vT0
        a(f"v_cvt_pk_bf16_f32 v{P}, v{S[0]}, v{S[1]}")
        a(f"v_cvt_pk_bf16_f32 v{P+1}, v{S[2]}, v{S[3]}")
        a(f"v_mov_b32_dpp v{vT2}, v{S[4]} row_ror:8 row_mask:0xf bank_mask:0xf")
        a(f"v_mov_b32_dpp v{P+2}, v{P} row_ror:8 row_mask:0xf bank_mask:0xf")
        a(f"v_mov_b32_dpp v{P+3}, v{P+1} row_ror:8 row_mask:0xf bank_mask:0xf")
        a(f"v_cvt_pk_bf16_f32 v{PM}, v{S[4]}, v{vT2}")
        a(f"v_add_f32 v{Ls}, v{S[0]}, v{S[1]}")
        a(f"v_mfma_f32_16x16x32_bf16 {vr(DO,4)}, {vr(VXR,4)}, {vr(P,4)}, 0")
        a(f"v_add_f32 v{M2}, v{S[2]}, v{S[3]}")
        a(f"v_add_f32 v{Ls}, v{Ls}, v{S[4]}")
        a(f"v_mfma_f32_16x16x16_bf16 {vr(D3+4,4)}, {vr(VP,2)}, {vr(PM,2)}, 0")
        self.stamp(4)
        a(f"v_add_f32 v{Ls}, v{Ls}, v{M2}")
        a(f"v_add_f32_dpp v{Ls}, v{Ls}, v{Ls} row_ror:8 row_mask:0xf bank_mask:0xf")
        a(f"v_mov_b32 v{M2}, v{Ls}")
        a(f"v_permlane16_swap_b32 v{Ls}, v{M2}")
        a(f"v_add_f32 v{Ls}, v{Ls}, v{M2}")
        a(f"v_mov_b32 v{M2}, v{Ls}")
        a(f"v_permlane32_swap_b32 v{Ls}, v{M2}")
        a(f"v_add_f32 v{Ls}, v{Ls}, v{M2}")
        a(f"v_rcp_f32 v{Ls}, v{Ls}")
        a(f"v_pk_add_f32 {vr(DO,2)}, {vr(DO,2)}, {vr(D3+4,2)}")
        a(f"v_pk_add_f32 {vr(DO+2,2)}, {vr(DO+2,2)}, {vr(D3+6,2)}")
        a(f"s_mov_b64 exec, {sr(sMLO,2)}")
        for r in range(4): a(f"v_mul_f32 v{DO+r}, v{DO+r}, v{Ls}")
        a(f"v_cvt_pk_bf16_f32 v{DO}, v{DO}, v{DO+1}")
        a(f"v_cvt_pk_bf16_f32 v{DO+1}, v{DO+2}, v{DO+3}")
        a(f"ds_write_b64 v{vOW}, {vr(DO,2)} offset:{L_O}")
        a(f"s_mov_b64 exec, -1")
        self.stamp("pb3")
        a.wait_lg0()
        a("s_barrier")
        self.stamp("b3")
        oh = [a(f"ds_read_b128 {vr(AO+4*j,4)}, v{vA} offset:{L_O + j*512}") for j in range(2)]
        def publish(c):
            A_ = ACC[c]
            a(f"v_cvt_pk_bf16_f32 v{A_}, v{A_}, v{A_+1}")
            a(f"v_cvt_pk_bf16_f32 v{A_+1}, v{A_+2}, v{A_+3}")
            a(f"v_and_or_b32 v{A_+1}, v{A_+1}, -2, s{sTAG0}")
            a(f"buffer_store_dwordx2 {vr(A_,2)}, v{vPS}, {sr(sWS,4)}, s{sPB0} offen offset:{c*512}")
        for c in range(5):
            for j in range(2):
                a.wait(oh[j])
                self.smf(("WO", c, j), ACC[c], AO + 4 * j)
            if c >= 1: publish(c - 1)
        publish(4)
        self.stamp(5)
        a(f"s_cmp_eq_u32 s{sHASJ}, 0")
        a(f"s_cbranch_scc1 L_red_skip")
        D = D3; DB = D3 + 4
        def rissue():
            return [a(f"buffer_load_dwordx2 {vr(RL+2*i,2)}, v{vRD}, {sr(sWS,4)}, s{sRD+i} offen sc1") for i in range(8)]
        a(f"s_cmp_eq_u32 s{sW}, 2")
        a(f"s_cbranch_scc1 L_rs_done")
        if self.opt("rs1", 2): a(f"s_sleep {self.opt('rs1', 2)}")
        a(f"s_cmp_eq_u32 s{sW}, 1")
        a(f"s_cbranch_scc1 L_rs_done")
        if self.opt("rs0", 2): a(f"s_sleep {self.opt('rs0', 2)}")
        a.label("L_rs_done")
        if self.opt("rs2", 0): a(f"s_sleep {self.opt('rs2', 0)}")
        a(f"s_mov_b32 s{sSPIN}, 0")
        a.label("L_red")
        hs = rissue()
        a(f"s_add_u32 s{sSPIN}, s{sSPIN}, 1")
        a(f"s_cmp_gt_u32 s{sSPIN}, {SPIN_MAX}")
        a(f"s_cbranch_scc1 L_fail")
        for i in range(4):
            a.wait(hs[2*i+1])
            self.ck(RL + 4*i + 1, sTAG0, i == 0)
            self.ck(RL + 4*i + 3, sTAG0, False)
            a(f"v_mfma_f32_16x16x32_bf16 {vr(D,4)}, {vr(RL+4*i,4)}, {vr(vSEL4,4)}, {vr(D,4) if i else 0}")
        a(f"v_and_b32 v{vCK}, 1, v{vCK}")
        a(f"v_cmp_ne_u32 vcc, 0, v{vCK}")
        a(f"s_cbranch_vccnz L_red")
        if self.stamps: a(f"s_mov_b32 s{sT4}, s{sSPIN}")
        a(f"v_cvt_pk_bf16_f32 v{D}, v{D}, v{D+1}")
        a(f"v_cvt_pk_bf16_f32 v{D+1}, v{D+2}, v{D+3}")
        a(f"ds_bpermute_b32 v{DB}, v{vBP}, v{D}")
        a(f"v_and_or_b32 v{D+1}, v{D+1}, -2, s{sTAG1}")
        a(f"ds_bpermute_b32 v{DB+1}, v{vBP}, v{D+1}")
        a(f"s_mov_b64 exec, 0xFFFF")
        a.wait_lg0()
        a(f"buffer_store_dwordx2 {vr(DB,2)}, v{vXA}, {sr(sWS,4)}, s{sJR} offen sc1")
        a(f"buffer_store_dwordx2 {vr(DB,2)}, v{vXA}, {sr(sWS,4)}, s{sJL} offen")
        a(f"s_mov_b64 exec, -1")
        a.label("L_red_skip")
        a(f"s_cmp_lg_u32 s{sW}, 3")
        a(f"s_cbranch_scc1 L_nex")
        ex_read()
        a.wait_lg0()
        a.label("L_nex")
        self.stamp(6)
        a("s_barrier")
        self.stamp("b0")
        GREGB = [GB + 2*i + 1 for i in range(5)]
        def gissue(R, sb):
            return lambda: [a(f"buffer_load_dwordx4 {vr(R,4)}, v{vG0}, {sr(sWS,4)}, s{sb} offen sc1"),
                    a(f"buffer_load_dwordx4 {vr(R+4,4)}, v{vG1}, {sr(sWS,4)}, s{sb} offen sc1"),
                    a(f"buffer_load_dwordx2 {vr(R+8,2)}, v{vG2}, {sr(sWS,4)}, s{sb} offen sc1")]
        self.poison(GREG + GREGB, sTAG1)
        if self.opt("ad", 4): a(f"s_sleep {self.opt('ad', 4)}")
        gissue(GL, sGL)()
        if self.opt("bd", 3): a(f"s_sleep {self.opt('bd', 3)}")
        def both():
            gissue(GB, sGR)()
        gissue(GB, sGR)()
        a(f"s_waitcnt vmcnt(3)")
        for n, r in enumerate(GREG): self.ck(r, sTAG1, n == 0)
        a(f"v_and_b32 v{vCK}, 1, v{vCK}")
        a(f"v_cmp_ne_u32 vcc, 0, v{vCK}")
        a(f"s_mov_b32 s{sSPIN}, 0")
        a(f"s_cbranch_vccz L_ga_ok")
        self.poll("L_ga", gissue(GL, sGL), GREG, sTAG1, thr=0)
        a.label("L_ga_ok")
        if self.stamps: a(f"s_mov_b32 s{sT3}, s{sSPIN}")
        self.stamp("ga")
        x2 = self.opt("x2", 1)
        if x2: gissue(GB, sGR)()
        for i in range(10):
            a(f"v_lshlrev_b32 v{AU+2*i}, 16, v{GL+i}")
            a(f"v_and_b32 v{AU+2*i+1}, 0xFFFF0000, v{GL+i}")
        a(f"s_waitcnt vmcnt({3 if x2 else 0})")
        for n, r in enumerate(GREGB): self.ck(r, sTAG1, n == 0)
        a(f"v_and_b32 v{vCK}, 1, v{vCK}")
        a(f"v_cmp_ne_u32 vcc, 0, v{vCK}")
        a(f"s_mov_b32 s{sSPIN}, 0")
        a(f"s_cbranch_vccz L_gb_ok")
        self.poll("L_gb", gissue(GB, sGR), GREGB, sTAG1, thr=self.opt("gthr", 3))
        a.label("L_gb_ok")
        self.stamp("gb")
        for i in range(10):
            a(f"v_dot2_f32_bf16 v{AU+2*i}, v{GB+i}, v{vS10}, v{AU+2*i}")
            a(f"v_dot2_f32_bf16 v{AU+2*i+1}, v{GB+i}, v{vS01}, v{AU+2*i+1}")
        for i in range(10):
            a(f"v_cvt_pk_bf16_f32 v{GL+i}, v{AU+2*i}, v{AU+2*i+1}")
        self.stamp(7)
        a(f"s_add_u32 s{sSTEP}, s{sSTEP}, 1")
        a(f"s_and_b32 s{sTAG0}, s{sSTEP}, 1")
        a(f"s_bfe_u32 s{sTAG1}, s{sSTEP}, 0x10001")
        for r in (sJL, sGL): a(f"s_add_u32 s{r}, s{r}, s{sSLOT}")
        for r in (sJR, sGR): a(f"s_add_u32 s{r}, s{r}, 32768")
        a(f"s_sub_u32 s{sSLOT}, 0, s{sSLOT}")
        if self.stamps:
            a.wait_lg0()
            for i in range(8):
                a(f"v_mov_b32 v{TLQ+i}, s{sTM+2*i}")
            for i, r in enumerate([sT5, sT4, sT3, sSPIN]):
                a(f"v_mov_b32 v{TLQ+8+i}, s{r}")
            a(f"v_mov_b32 v{vT1}, 0")
            a(f"s_mov_b64 exec, 1")
            for i in range(3):
                a(f"buffer_store_dwordx4 {vr(TLQ+4*i,4)}, v{vT1}, {sr(sWS,4)}, s{sSTAMP} offen offset:{16*i}")
            a(f"s_mov_b64 exec, -1")
            a(f"s_add_u32 s{sSTAMP}, s{sSTAMP}, 128")

def team_code(a, stamps, opts, exit_label="L_end"):
    t = Team(a, stamps, opts)
    t.setup()
    t.init_buffers()
    if "full" not in opts:
        a(f"s_or_b32 s{sTMP}, s{sX}, s{sR}")
        a(f"s_or_b32 s{sTMP}, s{sTMP}, s{sW}")
        a(f"s_cmp_lg_u32 s{sTMP}, 0")
        a(f"s_cbranch_scc1 L_noprobe")
        probe(a, vT0, opts)
        a.label("L_noprobe")
    if stamps: a(f"s_memtime {sr(sTM+16,2)}")
    t.load_weights()
    t.wait_team(52)
    if stamps:
        a(f"s_memtime {sr(sTM,2)}")
        a.wait_lg0()
        a(f"s_sub_u32 s{sTMP}, s{sTM}, s{sTM+16}")
        a(f"v_mov_b32 v{vT0}, s{sTMP}")
        a(f"v_mov_b32 v{vT1}, 0")
        a(f"buffer_store_dword v{vT0}, v{vT1}, {sr(sWS,4)}, s{sSTAMP} offen offset:64")
        a.wait_vm0()
    if "rt" in opts:
        import gen_full
        gen_full.mark(a, 5, True, 40, 41)
    t.prologue()
    if "rt" in opts: gen_full.mark(a, 1, True, 60, 61)
    a.label("L_loop")
    t.step(exit_label)
    a("s_branch L_loop")
    a.label("L_last")
    t.exports()
    a(f"s_branch {exit_label}")

def election(a):
    a("s_cmp_ge_u32 s2, 256")
    a("s_cbranch_scc1 L_end")
    a(f"s_load_dwordx2 {sr(sDBG,2)}, s[0:1], 64")
    a(f"s_load_dwordx2 {sr(sWS,2)}, s[0:1], 72")
    a(f"s_getreg_b32 s{sXCC}, hwreg(HW_REG_XCC_ID)")
    a(f"s_and_b32 s{sXCC}, s{sXCC}, 7")
    a(f"v_lshrrev_b32 v1, 6, v0")
    a(f"v_readfirstlane_b32 s{sW}, v1")
    a("s_waitcnt lgkmcnt(0)")
    a(f"s_and_b32 s{sWS+1}, s{sWS+1}, 0xffff")
    a(f"s_mov_b32 s{sWS+2}, {WS_BYTES}")
    a(f"s_mov_b32 s{sWS+3}, 0x00020000")
    a(f"v_mov_b32 v5, 0")
    a(f"s_cmp_lg_u32 s{sW}, 0")
    a("s_cbranch_scc1 L_el_done")
    a("s_mov_b64 exec, 1")
    a(f"s_lshl_b32 s{sTMP}, s{sXCC}, 2")
    a(f"v_mov_b32 v1, s{sTMP}")
    a(f"v_mov_b32 v2, 1")
    a(f"global_atomic_add v3, v1, v2, {sr(sDBG,2)} sc0 sc1")
    a.wait_vm0()
    a(f"v_readfirstlane_b32 s{sR}, v3")
    a(f"s_lshr_b32 s{sT2}, s{sXCC}, 1")
    a(f"s_cmp_lg_u32 s{sR}, 31")
    a("s_cbranch_scc1 L_el_poll0")
    a(f"s_lshl_b32 s{sTMP}, s{sT2}, 2")
    a(f"s_add_u32 s{sTMP}, s{sTMP}, 36")
    a(f"v_mov_b32 v1, s{sTMP}")
    a(f"global_atomic_add v3, v1, v2, {sr(sDBG,2)} sc0 sc1")
    a.wait_vm0()
    a(f"v_readfirstlane_b32 s{sTMP}, v3")
    a(f"s_cmp_lg_u32 s{sTMP}, 1")
    a("s_cbranch_scc1 L_el_poll0")
    a(f"s_add_u32 s{sTMP}, s{sT2}, 1")
    a(f"v_mov_b32 v1, 32")
    a(f"v_mov_b32 v2, s{sTMP}")
    a(f"v_mov_b32 v3, 0")
    a(f"global_atomic_cmpswap v1, v[2:3], {sr(sDBG,2)} sc1")
    a.label("L_el_poll0")
    a(f"v_mov_b32 v1, 32")
    a(f"s_mov_b32 s{sSPIN}, 0")
    a.label("L_el_poll")
    a(f"global_load_dword v2, v1, {sr(sDBG,2)} sc1")
    a(f"s_add_u32 s{sSPIN}, s{sSPIN}, 1")
    a(f"s_mov_b32 s{sTMP}, 0")
    a(f"s_cmp_gt_u32 s{sSPIN}, {SPIN_MAX}")
    a("s_cbranch_scc1 L_el_got")
    a.wait_vm0()
    a(f"v_readfirstlane_b32 s{sTMP}, v2")
    a(f"s_cmp_eq_u32 s{sTMP}, 0")
    a("s_cbranch_scc1 L_el_poll")
    a.label("L_el_got")
    a.wait_vm0()
    a(f"s_add_u32 s{sT2}, s{sT2}, 1")
    a(f"s_cmp_eq_u32 s{sTMP}, s{sT2}")
    a(f"s_cselect_b32 s{sR}, s{sR}, 255")
    a(f"s_min_u32 s{sR}, s{sR}, 255")
    a(f"v_mov_b32 v2, s{sR}")
    a(f"ds_write_b32 v5, v2")
    a.wait_lg0()
    a("s_mov_b64 exec, -1")
    a.label("L_el_done")
    a("s_barrier")
    a(f"ds_read_b32 v2, v5")
    a.wait_lg0()
    a(f"v_readfirstlane_b32 s{sR}, v2")
    a("s_barrier")
    a(f"s_and_b32 s{sX}, s{sXCC}, 1")
    a(f"s_cmp_ge_u32 s{sR}, 32")
    a("s_cbranch_scc1 L_end")

def probe(a, v0, opts=()):
    a(f"s_mov_b64 exec, 1")
    a(f"s_mov_b32 s{sT2}, -1")
    a(f"s_mov_b32 s{sT3}, -1")
    a(f"s_lshl_b32 s{sT5}, s{sXCC}, 9")
    for rep in range(5):
        for hf in range(2):
            a(f"v_mov_b32 v{v0}, {PROBE + hf*8192 + (rep//2)*128 + (rep%2)*4096:#x}")
            a(f"buffer_store_dword v{v0}, v{v0}, {sr(sWS,4)}, s{sT5} offen sc1")
            a.wait_vm0()
            a(f"s_memtime {sr(sTM,2)}")
            a(f"s_waitcnt lgkmcnt(0)")
            a(f"buffer_load_dword v{v0+1}, v{v0}, {sr(sWS,4)}, s{sT5} offen sc1")
            a.wait_vm0()
            a(f"s_memtime {sr(sTM+2,2)}")
            a(f"s_waitcnt lgkmcnt(0)")
            a(f"s_sub_u32 s{sTMP}, s{sTM+2}, s{sTM}")
            a(f"s_min_u32 s{sT2+hf}, s{sT2+hf}, s{sTMP}")
    a(f"s_cmp_lt_u32 s{sT3}, s{sT2}")
    a(f"s_cselect_b32 s{sTMP}, 0x2001, 1")
    if "far" in opts: a(f"s_xor_b32 s{sTMP}, s{sTMP}, 0x2000")
    a(f"v_mov_b32 v{v0}, 56")
    a(f"v_mov_b32 v{v0+2}, s{sTMP}")
    a(f"v_mov_b32 v{v0+3}, 0")
    a(f"global_atomic_cmpswap v{v0}, {vr(v0+2,2)}, {sr(sDBG,2)} sc1")
    a.wait_vm0()
    a(f"s_mov_b64 exec, -1")
```

```python
import sys
from asmlib import *
import team9 as T
from team9 import *
import proj as P
import engine as E

NAME = "standalone__memory_aug_recurrent_mem_tr__prompt_kernel"

RT = 0x5800000
def mark(a, idx, on, v0=250, v1=251):
    if not on: return
    a("s_memrealtime s[98:99]")
    a("s_waitcnt lgkmcnt(0)")
    a(f"s_lshl_b32 s100, s2, 7")
    a(f"s_add_u32 s100, s100, {RT:#x}")
    a(f"v_mov_b32 v{v0}, s98")
    a(f"v_mov_b32 v{v1}, 0")
    if isinstance(idx, str):
        a(f"s_lshl_b32 s101, {idx}, 2")
        a(f"s_add_u32 s100, s100, s101")
        a(f"buffer_store_dword v{v0}, v{v1}, {sr(sWS,4)}, s100 offen offset:32")
    else:
        a(f"buffer_store_dword v{v0}, v{v1}, {sr(sWS,4)}, s100 offen offset:{idx*4}")
    a("s_waitcnt vmcnt(0)")

def gen(stamps=False, opts=()):
    rt = "rt" in opts
    a = Asm()
    opts = list(opts) + ["full"]
    el = Asm(); election(el)
    for it in el.lines:
        t = it if isinstance(it, str) else it.text
        if t.startswith(f"s_cselect_b32 s{sR}, s{sR}, 255"):
            a(f"s_cselect_b32 s{sT3}, 0, 0x100")
            a(f"s_min_u32 s{sR}, s{sR}, 255")
            a(f"s_or_b32 s{sR}, s{sR}, s{sT3}")
            a(f"s_lshl_b32 s{sTMP}, s{sTMP}, 12")
            a(f"s_or_b32 s{sR}, s{sR}, s{sTMP}")
            continue
        if t.startswith(f"s_min_u32 s{sR}, s{sR}, 255"): continue
        if t.startswith(f"s_cmp_ge_u32 s{sR}, 32"): break
        if isinstance(it, str): a.raw(it)
        else: a(t)
    a.vm = []; a.lg = []
    mark(a, 0, rt)
    a(f"s_lshr_b32 s{sT4}, s{sR}, 12")
    a(f"s_and_b32 s{sR}, s{sR}, 0x1FF")
    a(f"s_cmp_eq_u32 s{sT4}, 0")
    a(f"s_cbranch_scc1 L_fail")
    a(f"s_cmp_ge_u32 s{sR}, 32")
    a(f"s_cbranch_scc1 L_helper")
    team_code(a, stamps, opts, exit_label="L_team_exit")
    a.label("L_team_exit")
    a.wait_all()
    mark(a, 2, rt, 40, 41)
    a("s_branch L_end")
    a.label("L_helper")
    hXI, hRK, hNH, hH0, hMUL, hQ, hBLK = 70, 71, 72, 73, 74, 75, 76
    a(f"s_and_b32 s{hRK}, s{sR}, 0xFF")
    a(f"s_bitcmp1_b32 s{sR}, 8")
    a(f"s_cbranch_scc0 L_end")
    a(f"s_lshl_b32 s{sTMP}, s{sT4}, 1")
    a(f"s_cmp_ge_u32 s{sXCC}, s{sTMP}")
    a(f"s_cselect_b32 s{sTMP}, 2, 0")
    a(f"s_sub_u32 s{hXI}, s{sXCC}, s{sTMP}")
    a(f"s_cmp_lt_u32 s{hXI}, 2")
    a(f"s_cselect_b32 s{hNH}, 6, 5")
    a(f"s_movk_i32 s{hMUL}, 205")
    a(f"s_cselect_b32 s{hMUL}, 171, s{hMUL}")
    a(f"s_cselect_b32 s{sTMP}, 0, 2")
    a(f"s_mul_i32 s{hH0}, s{hXI}, s{hNH}")
    a(f"s_add_u32 s{hH0}, s{hH0}, s{sTMP}")
    a(f"s_cmp_lg_u32 s{sW}, 0")
    a(f"s_cbranch_scc1 L_h0")
    a(f"s_cmp_ge_u32 s{hRK}, 32")
    a(f"s_cbranch_scc1 L_h0")
    a(f"s_lshl_b32 s{sTMP}, s{hXI}, 7")
    a(f"s_lshl_b32 s{hQ}, s{hRK}, 2")
    a(f"s_add_u32 s{sTMP}, s{sTMP}, s{hQ}")
    a(f"s_add_u32 s{sTMP}, s{sTMP}, {EF:#x}")
    a(f"v_mov_b32 v1, 0")
    a(f"v_mov_b32 v3, 1")
    a(f"s_mov_b64 exec, 1")
    a(f"buffer_store_dword v1, v1, {sr(sWS,4)}, s{sTMP} offen")
    a(f"s_lshl_b32 s{sTMP}, s{hXI}, 2")
    a(f"s_add_u32 s{sTMP}, s{sTMP}, {E.D_ENG}")
    a(f"v_mov_b32 v2, s{sTMP}")
    a.wait_vm0()
    a(f"global_atomic_add v2, v3, {sr(sDBG,2)} sc1")
    a(f"s_mov_b64 exec, -1")
    a.vm = []
    a(f"s_cmp_lg_u32 s{hRK}, 31")
    a(f"s_cbranch_scc1 L_h0")
    a(f"s_sub_u32 s{sTMP}, s{sT4}, 1")
    a(f"s_lshr_b32 s{sTMP}, s{sTMP}, 1")
    a(f"s_lshr_b32 s{hQ}, s{sXCC}, 2")
    a(f"s_cmp_lg_u32 s{sTMP}, s{hQ}")
    a(f"s_cbranch_scc1 L_h0")
    probe(a, 4, opts)
    a.label("L_h0")
    a("s_barrier")
    P.proj_setup(a)
    a(f"s_mov_b32 s{hQ}, s{hRK}")
    a.label("L_task")
    a(f"s_mul_i32 s{hBLK}, s{hQ}, s{hMUL}")
    a(f"s_lshr_b32 s{hBLK}, s{hBLK}, 10")
    a(f"s_cmp_ge_u32 s{hBLK}, 24")
    a(f"s_cbranch_scc1 L_engine")
    a(f"s_mul_i32 s{sTMP}, s{hBLK}, s{hNH}")
    a(f"s_sub_u32 s{P.pH}, s{hQ}, s{sTMP}")
    a(f"s_add_u32 s{P.pH}, s{P.pH}, s{hH0}")
    a(f"s_cmp_lt_u32 s{hBLK}, 6")
    a(f"s_cbranch_scc1 L_t1")
    a(f"s_lshl_b32 s{P.pTB}, s{hBLK}, 1")
    a(f"s_sub_u32 s{P.pTB}, s{P.pTB}, 6")
    a(f"s_cmp_lt_u32 s{hBLK}, 12")
    a(f"s_cbranch_scc1 L_t2")
    a(f"s_lshl_b32 s{P.pTB}, s{hBLK}, 2")
    a(f"s_sub_u32 s{P.pTB}, s{P.pTB}, 30")
    a(f"s_cmp_eq_u32 s{hBLK}, 23")
    a(f"s_cbranch_scc1 L_t2")
    P.proj_task(a, "4", nseg=4)
    a("s_branch L_tdone")
    a.label("L_t2")
    P.proj_task(a, "2", nseg=2)
    a("s_branch L_tdone")
    a.label("L_t1")
    a(f"s_mov_b32 s{P.pTB}, s{hBLK}")
    P.proj_task(a, "1", nseg=1)
    a.label("L_tdone")
    a(f"s_cmp_lg_u32 s{sW}, 0")
    a(f"s_cbranch_scc1 L_tnosig")
    a(f"s_lshl_b32 s{sTMP}, s{hBLK}, 2")
    a(f"s_add_u32 s{sTMP}, s{sTMP}, {E.D_BLK}")
    a(f"v_mov_b32 v{P.qT0}, s{sTMP}")
    a(f"v_mov_b32 v{P.qT1}, 1")
    a(f"s_mov_b64 exec, 1")
    a(f"global_atomic_add v{P.qT0}, v{P.qT1}, {sr(sDBG,2)} sc1")
    a(f"s_mov_b64 exec, -1")
    a.vm = []
    a.label("L_tnosig")
    if rt:
        a(f"s_lshr_b32 s97, s{hQ}, 5")
        a(f"s_add_u32 s97, s97, 16")
        mark(a, "s97", rt)
    a(f"s_add_u32 s{hQ}, s{hQ}, 32")
    a("s_branch L_task")
    a.label("L_engine")
    mark(a, 3, rt)
    a(f"s_cmp_ge_u32 s{hRK}, 32")
    a(f"s_cbranch_scc1 L_end")
    a(f"s_mov_b32 s{E.eE}, s{hXI}")
    a(f"s_mov_b32 s{E.eH}, s{hRK}")
    E.engine_setup(a)
    mark(a, 4, rt, 8, 9)
    E.engine_loop(a, 6, mark=(lambda: mark(a, f"s{E.eIT}", rt, 8, 9)))
    a.label("L_fail")
    a("s_mov_b64 exec, 1")
    a(f"v_mov_b32 v1, 60")
    a(f"v_mov_b32 v2, 1000")
    a(f"global_store_dword v1, v2, {sr(sDBG,2)}")
    a.label("L_end")
    a("s_waitcnt vmcnt(0) lgkmcnt(0)")
    a("s_endpgm")
    body = a.finish(timed="untimed" not in opts)
    print("nop states", a.nnop, "lines", body.count("\n"))
    ref = open("standalone__memory_aug_recurrent_mem_tr__prompt.s.ref").read()
    head = ref[:ref.index("; @launch")]
    head += f"; @launch grid=(256,1,1) block=(256,1,1) lds={LDS_BYTES}\n"
    head += f""".amdgcn_target "amdgcn-amd-amdhsa--gfx950"
.text
.globl {NAME}
.p2align 8
.type {NAME},@function
{NAME}:
"""
    foot = f""".section .rodata,"a"
.p2align 6
.amdhsa_kernel {NAME}
  .amdhsa_next_free_vgpr 512
  .amdhsa_next_free_sgpr 102
  .amdhsa_accum_offset 256
  .amdhsa_group_segment_fixed_size 0
  .amdhsa_kernarg_size 80
  .amdhsa_user_sgpr_count 2
  .amdhsa_user_sgpr_kernarg_segment_ptr 1
  .amdhsa_system_sgpr_workgroup_id_x 1
.end_amdhsa_kernel
"""
    return head + body + foot

if __name__ == "__main__":
    out = sys.argv[1] if len(sys.argv) > 1 else "standalone__memory_aug_recurrent_mem_tr__prompt.s"
    opts = sys.argv[2].split(",") if len(sys.argv) > 2 else ["rs2=4", "rs1=0", "rs0=0", "t1=1", "ad=3", "bd=2", "x2=0"]
    open(out, "w").write(gen("stamps" in opts, opts))
```

```python
from asmlib import *
from team9 import KF, EF, KXI, VXI, QXI, KMI, VMI, sWS, sDBG, sW, sTMP, sSPIN, SPIN_MAX, fbits
from proj import srd

EP = 0x6000000
eWO = 8; eOUT = 12
eE, eH, eSEG, eIT = 28, 29, 30, 31
eA, eB, eC2, eD = 32, 33, 34, 35
eMSK = 36
eC = 52
eEPW, eEPR = 53, 54
eJ = 55
eM32 = 56
eT = 58
eKF, eEF = 66, 67
D_BLK = 64
D_Q = 160
D_ENG = 192
D_KM = 208
gL16, gL4, gKM, gOW, gPS, gRD, gOUT = 0, 1, 2, 3, 4, 5, 6
gT0, gT1, gT2, gT3 = 8, 9, 10, 11
gSEL = 12
KX = 16
QF = 48
KMF = 64
VXF = 80
WOF = 96
L_OI = 0

def blk_of_seg(a, sseg, sdst):
    a(f"s_sub_u32 s{sTMP}, s{sseg}, 18")
    a(f"s_lshr_b32 s{sTMP}, s{sTMP}, 2")
    a(f"s_add_u32 s{sdst}, s{sTMP}, 12")
    a(f"s_add_u32 s{sTMP}, s{sseg}, 6")
    a(f"s_lshr_b32 s{sTMP}, s{sTMP}, 1")
    a(f"s_cmp_lt_u32 s{sseg}, 18")
    a(f"s_cselect_b32 s{sdst}, s{sTMP}, s{sdst}")
    a(f"s_cmp_lt_u32 s{sseg}, 6")
    a(f"s_cselect_b32 s{sdst}, s{sseg}, s{sdst}")

def wait_ctr(a, lab, soff, sthr, vt0, vt1, sleep=8):
    a(f"v_mov_b32 v{vt0}, s{soff}")
    a(f"s_mov_b32 s{sSPIN}, 0")
    a.label(lab)
    a(f"global_load_dword v{vt1}, v{vt0}, {sr(sDBG,2)} sc1")
    a(f"s_add_u32 s{sSPIN}, s{sSPIN}, 1")
    a(f"s_cmp_gt_u32 s{sSPIN}, {SPIN_MAX}")
    a(f"s_cbranch_scc1 L_fail")
    a.wait_vm0()
    a(f"v_readfirstlane_b32 s{sTMP}, v{vt1}")
    a(f"s_cmp_ge_u32 s{sTMP}, s{sthr}")
    a(f"s_cbranch_scc1 {lab}_ok")
    a(f"s_sleep {sleep}")
    a(f"s_branch {lab}")
    a.label(f"{lab}_ok")

def wait_vec(a, lab, soff, nl, sthr, sleep):
    a(f"s_mov_b32 s{sSPIN}, 0")
    a(f"s_mov_b64 exec, {hex((1 << nl) - 1)}")
    a.label(lab)
    a(f"buffer_load_dword v{gT1}, v{gL4}, {sr(sWS,4)}, s{soff} offen sc1")
    a(f"s_add_u32 s{sSPIN}, s{sSPIN}, 1")
    a(f"s_cmp_gt_u32 s{sSPIN}, {SPIN_MAX}")
    a(f"s_cbranch_scc1 L_fail")
    a.wait_vm0()
    a(f"v_cmp_gt_u32 vcc, s{sthr}, v{gT1}")
    a(f"s_cbranch_vccz {lab}_ok")
    a(f"s_sleep {sleep}")
    a(f"s_branch {lab}")
    a.label(f"{lab}_ok")
    a(f"s_mov_b64 exec, -1")

def engine_setup(a):
    srd(a, eWO, 40, 5242880); srd(a, eOUT, 56, 2621440)
    L, N, G_, R, C = 16, 17, 18, 19, 20
    a(f"v_lshrrev_b32 v{L}, 4, v{gL16}")
    a(f"v_lshrrev_b32 v{gL4}, 2, v{gL16}")
    a(f"v_and_b32 v{N}, 15, v{L}")
    a(f"v_lshrrev_b32 v{G_}, 4, v{L}")
    a(f"v_lshrrev_b32 v{R}, 2, v{N}")
    a(f"v_and_b32 v{C}, 3, v{N}")
    a(f"s_mul_i32 s{eA}, s{eH}, 163840")
    a(f"s_mul_i32 s{eB}, s{sW}, 40960")
    a(f"s_add_u32 s{eA}, s{eA}, s{eB}")
    for i in range(40):
        if i % 4 == 0:
            a(f"s_add_u32 m0, s{eB}, {i*1024}")
            a(f"s_add_u32 s{eC2}, s{eA}, {i*1024}")
        a(f"buffer_load_dwordx4 v{gL16}, {sr(eWO,4)}, s{eC2} offen offset:{(i%4)*1024} lds")
    a(f"v_and_b32 v21, 1, v{R}")
    a(f"v_lshlrev_b32 v21, 2, v21")
    a(f"v_lshrrev_b32 v22, 3, v{N}")
    a(f"v_lshl_add_u32 v21, v22, 1, v21")
    a(f"v_and_b32 v22, 1, v{N}")
    a(f"v_add_u32 v21, v21, v22")
    a(f"v_lshlrev_b32 v{gKM}, 7, v{G_}")
    a(f"v_lshl_add_u32 v{gKM}, v21, 4, v{gKM}")
    a(f"v_lshrrev_b32 v21, 1, v{G_}")
    a(f"v_and_b32 v22, 1, v{G_}")
    a(f"v_lshlrev_b32 v{gOW}, 8, v21")
    a(f"v_lshl_add_u32 v{gOW}, v{N}, 4, v{gOW}")
    a(f"v_lshl_add_u32 v{gOW}, v22, 3, v{gOW}")
    a(f"s_and_b32 s{eC2}, s{sW}, 1")
    a(f"s_lshl_b32 s{eD}, s{eC2}, 10")
    a(f"s_lshr_b32 s{sTMP}, s{sW}, 1")
    a(f"s_lshl_b32 s{sTMP}, s{sTMP}, 12")
    a(f"s_add_u32 s{eD}, s{eD}, s{sTMP}")
    a(f"v_add_u32 v{gOW}, s{eD}, v{gOW}")
    a(f"v_lshlrev_b32 v{gPS}, 6, v{N}")
    a(f"v_lshl_add_u32 v{gPS}, v{G_}, 4, v{gPS}")
    a(f"s_mov_b32 s{sTMP}, 40960")
    a(f"v_mul_lo_u32 v{gRD}, v{G_}, s{sTMP}")
    a(f"v_lshl_add_u32 v{gRD}, v{N}, 4, v{gRD}")
    a(f"s_movk_i32 s{sTMP}, 1280")
    a(f"v_mul_lo_u32 v{gOUT}, v{R}, s{sTMP}")
    a(f"v_lshl_add_u32 v{gOUT}, v{C}, 4, v{gOUT}")
    a(f"v_lshl_add_u32 v{gOUT}, v{G_}, 3, v{gOUT}")
    a(f"v_and_b32 v21, 7, v{N}")
    a(f"v_mov_b32 v22, 0x3F80")
    a(f"v_mov_b32 v23, 0x3F800000")
    for k in range(4): a(f"v_mov_b32 v{gSEL+k}, 0")
    for jj in range(8):
        a(f"v_cmp_eq_u32 vcc, {jj}, v21")
        a(f"v_cndmask_b32 v{gSEL + jj//2}, v{gSEL + jj//2}, v{22 + jj%2}, vcc")
    a(f"v_sub_u32 v21, v{R}, v{G_}")
    a(f"v_lshlrev_b32 v21, 3, v21")
    a(f"v_add_u32 v21, v21, v{C}")
    a(f"s_lshl_b32 s{sTMP}, s{eC2}, 2")
    a(f"v_add_u32 v21, s{sTMP}, v21")
    for k in range(8):
        a(f"v_cmp_le_i32 {sr(eMSK+2*k,2)}, {k}, v21")
    a(f"s_mov_b32 s{eC}, {fbits(128 ** -0.5 * 1.4426950408889634):#x}")
    a(f"s_mov_b32 s{eM32}, -1"); a(f"s_mov_b32 s{eM32+1}, 0")
    a(f"v_lshlrev_b32 v21, 3, v{G_}")
    a(f"v_add_u32 v21, v21, v{R}")
    a(f"s_movk_i32 s{sTMP}, 1280")
    a(f"v_mul_lo_u32 v21, v21, s{sTMP}")
    a(f"v_lshl_add_u32 v21, v{C}, 4, v21")
    a(f"s_mul_i32 s{sTMP}, s{sW}, 320")
    a(f"v_add_u32 v21, s{sTMP}, v21")
    a.wait_vm0()
    a("s_barrier")
    for kp in range(4):
        if kp: a(f"v_add_u32 v21, {32*1280}, v21")
        for p in range(5):
            for tile in range(2):
                f = WOF + ((p * 2 + tile) * 4 + kp) * 4
                for hh in range(2):
                    a(f"ds_read_b64_tr_b16 {vr(f + 2*hh, 2)}, v21 offset:{4*hh*1280 + p*64 + tile*8}")
    a.wait_lg0()
    a("s_barrier")
    a(f"s_lshl_b32 s{eEPR}, s{eE}, 22")
    a(f"s_add_u32 s{eEPR}, s{eEPR}, {EP:#x}")
    a(f"s_mul_i32 s{eEPW}, s{eH}, 40960")
    a(f"s_mul_i32 s{sTMP}, s{sW}, 5120")
    a(f"s_add_u32 s{eEPW}, s{eEPW}, s{sTMP}")
    a(f"s_add_u32 s{eEPW}, s{eEPW}, s{eEPR}")
    a(f"s_mov_b32 s{eSEG}, s{eE}")
    a(f"s_mov_b32 s{eIT}, 0")
    a(f"s_lshl_b32 s{eKF}, s{eH}, 7")
    a(f"s_lshl_b32 s{sTMP}, s{eE}, 12")
    a(f"s_add_u32 s{eKF}, s{eKF}, s{sTMP}")
    a(f"s_add_u32 s{eKF}, s{eKF}, {KF:#x}")
    a(f"s_lshl_b32 s{eEF}, s{eE}, 7")
    a(f"s_add_u32 s{eEF}, s{eEF}, {EF:#x}")
    a(f"s_cmp_lg_u32 s{sW}, 0")
    a(f"s_cbranch_scc1 L_en_s1")
    a(f"s_lshl_b32 s{eA}, s{eE}, 2")
    a(f"s_add_u32 s{eA}, s{eA}, {D_ENG}")
    a(f"s_mov_b32 s{eB}, 32")
    wait_ctr(a, "L_en_i1", eA, eB, gT0, gT1)
    a(f"s_mov_b32 s{eA}, 52")
    a(f"s_mov_b32 s{eB}, 64")
    wait_ctr(a, "L_en_i2", eA, eB, gT0, gT1)
    a.label("L_en_s1")

def engine_loop(a, nE, standalone=False, mark=None, opts=()):
    a.label("L_en_loop")
    a(f"s_cmp_ge_u32 s{eSEG}, 64")
    a(f"s_cbranch_scc1 L_end")
    a(f"s_cmp_lg_u32 s{sW}, 0")
    a(f"s_cbranch_scc1 L_en_go")
    blk_of_seg(a, eSEG, eA)
    a(f"s_lshl_b32 s{eA}, s{eA}, 2")
    a(f"s_add_u32 s{eA}, s{eA}, {D_BLK}")
    a(f"s_mov_b32 s{eB}, 32")
    wait_ctr(a, "L_en_w1", eA, eB, gT0, gT1, sleep=16)
    a.label("L_en_go")
    a("s_barrier")
    a(f"s_lshl_b32 s{eA}, s{eSEG}, 5")
    a(f"s_add_u32 s{eA}, s{eA}, s{eH}")
    a(f"s_lshl_b32 s{eB}, s{eA}, 11")
    a(f"s_lshl_b32 s{eA}, s{eA}, 13")
    a(f"s_add_u32 s{eT}, s{eA}, 4096")
    hk = []
    for k in range(8):
        hk.append(a(f"buffer_load_dwordx4 {vr(KX+4*k,4)}, v{gL16}, {sr(sWS,4)}, s{eA if k < 4 else eT} offen offset:{(k%4)*1024} sc1"))
    a(f"s_and_b32 s{sTMP}, s{sW}, 1")
    a(f"s_lshl_b32 s{sTMP}, s{sTMP}, 10")
    a(f"s_add_u32 s{eT+1}, s{eA}, s{sTMP}")
    a(f"s_add_u32 s{eT+1}, s{eT+1}, {QXI:#x}")
    a(f"s_add_u32 s{eT+2}, s{eT+1}, 4096")
    hq = [a(f"buffer_load_dwordx4 {vr(QF+4*k,4)}, v{gL16}, {sr(sWS,4)}, s{eT+1+k//2} offen offset:{(k%2)*2048} sc1") for k in range(4)]
    a(f"s_lshr_b32 s{sTMP}, s{sW}, 1")
    a(f"s_lshl_b32 s{eT+4}, s{sTMP}, 10")
    a(f"s_lshl_b32 s{sTMP}, s{sTMP}, 12")
    a(f"s_add_u32 s{eT+3}, s{eA}, s{sTMP}")
    a(f"s_add_u32 s{eT+3}, s{eT+3}, {VXI:#x}")
    hv = [a(f"buffer_load_dwordx4 {vr(VXF+4*k,4)}, v{gL16}, {sr(sWS,4)}, s{eT+3} offen offset:{k*1024} sc1") for k in range(4)]
    a(f"s_cmp_lg_u32 s{sW}, 0")
    a(f"s_cbranch_scc1 L_en_go2")
    a(f"s_add_u32 s{eD}, s{eSEG}, 1")
    save = list(a.vm)
    wait_vec(a, "L_en_w2", eKF, 2, eD, 3 if "fastpoll" in opts else 6)
    a.vm = save
    a.label("L_en_go2")
    a("s_barrier")
    a(f"s_add_u32 s{eT+5}, s{eB}, {KMI:#x}")
    hm = [a(f"buffer_load_dwordx4 {vr(KMF+4*k,4)}, v{gKM}, {sr(sWS,4)}, s{eT+5} offen offset:{k*512} sc1") for k in range(4)]
    a(f"s_add_u32 s{eT+4}, s{eT+4}, s{eB}")
    a(f"s_add_u32 s{eT+4}, s{eT+4}, {VMI:#x}")
    for k in range(4): a(f"v_accvgpr_write_b32 a{97+2*k}, 0")
    hvm = [a(f"buffer_load_dword a{96+2*k}, v{gL4}, {sr(sWS,4)}, s{eT+4} offen offset:{k*256} sc1") for k in range(4)]
    SA = 104
    for k in range(4):
        a.wait(hk[2*k+1], hq[k])
        c = lambda d: "0" if k == 0 else ar(d, 4)
        a(f"v_mfma_f32_16x16x32_bf16 {ar(SA,4)}, {vr(KX+8*k,4)}, {vr(QF+4*k,4)}, {c(SA)}")
        a(f"v_mfma_f32_16x16x32_bf16 {ar(SA+4,4)}, {vr(KX+8*k+4,4)}, {vr(QF+4*k,4)}, {c(SA+4)}")
    for k in range(4):
        a.wait(hm[k])
        a(f"v_mfma_f32_16x16x32_bf16 {ar(SA+8,4)}, {vr(KMF+4*k,4)}, {vr(QF+4*k,4)}, {'0' if k == 0 else ar(SA+8,4)}")
    S = [KX + i for i in range(10)]
    a(f"v_mov_b32 v{gT2}, 0xf149f2ca")
    for i in range(10): a(f"v_accvgpr_read_b32 v{S[i]}, a{SA+i}")
    for i in range(8): a(f"v_cndmask_b32 v{S[i]}, v{gT2}, v{S[i]}, {sr(eMSK+2*i,2)}")
    M, M2 = gT0, gT1
    a(f"v_max3_f32 v{M}, v{S[0]}, v{S[1]}, v{S[2]}")
    a(f"v_max3_f32 v{M2}, v{S[3]}, v{S[4]}, v{S[5]}")
    a(f"v_max3_f32 v{M}, v{M}, v{S[6]}, v{S[7]}")
    a(f"v_max3_f32 v{M2}, v{M2}, v{S[8]}, v{S[9]}")
    a(f"v_max_f32 v{M}, v{M}, v{M2}")
    a(f"v_mov_b32 v{M2}, v{M}")
    a(f"v_permlane16_swap_b32 v{M}, v{M2}")
    a(f"v_max_f32 v{M}, v{M}, v{M2}")
    a(f"v_mov_b32 v{M2}, v{M}")
    a(f"v_permlane32_swap_b32 v{M}, v{M2}")
    a(f"v_max_f32 v{M}, v{M}, v{M2}")
    a(f"v_mul_f32 v{M}, s{eC}, v{M}")
    for s_ in S: a(f"v_fma_f32 v{s_}, v{s_}, s{eC}, -v{M}")
    for s_ in S: a(f"v_exp_f32 v{s_}, v{s_}")
    P = KX + 12; PM = KX + 16
    for k in range(5): a(f"v_cvt_pk_bf16_f32 v{P+k}, v{S[2*k]}, v{S[2*k+1]}")
    a(f"v_mov_b32 v{PM+1}, 0")
    Ls = gT0
    a(f"v_add_f32 v{Ls}, v{S[0]}, v{S[1]}")
    for i in range(2, 10): a(f"v_add_f32 v{Ls}, v{Ls}, v{S[i]}")
    DO = QF; DM = KMF
    a.wait(hv, hvm)
    for t in range(4):
        a(f"v_mfma_f32_16x16x32_bf16 {vr(DO+4*t,4)}, {vr(VXF+4*t,4)}, {vr(P,4)}, 0")
    for t in range(4):
        a(f"v_mfma_f32_16x16x16_bf16 {vr(DM+4*t,4)}, {ar(96+2*t,2)}, {vr(PM,2)}, 0")
    a(f"v_mov_b32 v{M2}, v{Ls}")
    a(f"v_permlane16_swap_b32 v{Ls}, v{M2}")
    a(f"v_add_f32 v{Ls}, v{Ls}, v{M2}")
    a(f"v_mov_b32 v{M2}, v{Ls}")
    a(f"v_permlane32_swap_b32 v{Ls}, v{M2}")
    a(f"v_add_f32 v{Ls}, v{Ls}, v{M2}")
    a(f"v_rcp_f32 v{Ls}, v{Ls}")
    for t in range(4):
        for r in range(4):
            a(f"v_add_f32 v{DO+4*t+r}, v{DO+4*t+r}, v{DM+4*t+r}")
            a(f"v_mul_f32 v{DO+4*t+r}, v{DO+4*t+r}, v{Ls}")
        a(f"v_cvt_pk_bf16_f32 v{DO+4*t}, v{DO+4*t}, v{DO+4*t+1}")
        a(f"v_cvt_pk_bf16_f32 v{DO+4*t+1}, v{DO+4*t+2}, v{DO+4*t+3}")
        a(f"ds_write_b64 v{gOW}, {vr(DO+4*t,2)} offset:{L_OI + (t>>1)*2048 + (t&1)*512}")
    a.wait_lg0()
    a("s_barrier")
    OF = KX
    ho = [a(f"ds_read_b128 {vr(OF+4*i,4)}, v{gL16} offset:{L_OI + i*1024}") for i in range(8)]
    n = 0
    for p in range(5):
        for kp in range(4):
            for aa in range(2):
                a.wait(ho[kp*2 + aa])
                for tile in range(2):
                    d = ((p * 2 + aa) * 2 + tile) * 4
                    f = WOF + ((p * 2 + tile) * 4 + kp) * 4
                    a(f"v_mfma_f32_16x16x32_bf16 {ar(d,4)}, {vr(f,4)}, {vr(OF+4*(kp*2+aa),4)}, {'0' if kp == 0 else ar(d,4)}")
    a(f"s_add_u32 s{eT}, s{eEPW}, 4096")
    a(f"s_add_u32 s{eT+1}, s{eEPW}, 20480")
    a(f"s_add_u32 s{eT+2}, s{eEPW}, {20480+4096}")
    for p in range(5):
        for aa in range(2):
            t = QF + (n % 4) * 12; n += 1
            d = (p * 2 + aa) * 8
            for r in range(8): a(f"v_accvgpr_read_b32 v{t+4+r}, a{d+r}")
            for k in range(4): a(f"v_cvt_pk_bf16_f32 v{t+k}, v{t+4+2*k}, v{t+5+2*k}")
            so = [[eEPW, eT], [eT+1, eT+2]][aa][p // 4]
            a(f"buffer_store_dwordx4 {vr(t,4)}, v{gPS}, {sr(sWS,4)}, s{so} offen offset:{(p%4)*1024}")
    a.wait_vm0()
    a("s_barrier")
    a(f"s_add_u32 s{eIT}, s{eIT}, 1")
    a(f"s_cmp_lg_u32 s{sW}, 0")
    a(f"s_cbranch_scc1 L_en_nosig")
    a(f"s_lshl_b32 s{eA}, s{eH}, 2")
    a(f"s_add_u32 s{eA}, s{eA}, s{eEF}")
    a(f"v_mov_b32 v{gT0}, s{eIT}")
    a(f"s_mov_b64 exec, 1")
    a(f"buffer_store_dword v{gT0}, v{gL4}, {sr(sWS,4)}, s{eA} offen")
    wait_vec(a, "L_en_w3", eEF, 32, eIT, 1)
    a.label("L_en_nosig")
    a("s_barrier")
    a(f"s_lshl_b32 s{eJ}, s{eH}, 2")
    a(f"s_add_u32 s{eJ}, s{eJ}, s{sW}")
    a.label("L_en_job")
    a(f"s_lshl_b32 s{eA}, s{eJ}, 8")
    a(f"s_add_u32 s{eA}, s{eA}, s{eEPR}")
    hs = []
    for i in range(8):
        hs.append(a(f"buffer_load_dwordx4 {vr(KX+4*i,4)}, v{gRD}, {sr(sWS,4)}, s{eA} offen sc1"))
        if i < 7: a(f"s_add_u32 s{eA}, s{eA}, {4*40960}")
    a(f"s_lshr_b32 s{eB}, s{eJ}, 2")
    a(f"s_cmp_ge_u32 s{eB}, 20")
    a(f"s_cselect_b32 s{eC2}, 4, 0")
    a(f"s_cselect_b32 s{eD}, 20, 0")
    a(f"s_sub_u32 s{eB}, s{eB}, s{eD}")
    a(f"s_and_b32 s{eD}, s{eJ}, 3")
    a(f"s_lshl_b32 s{eD}, s{eD}, 3")
    a(f"s_add_u32 s{eC2}, s{eC2}, s{eD}")
    a(f"s_lshl_b32 s{eD}, s{eSEG}, 5")
    a(f"s_add_u32 s{eC2}, s{eC2}, s{eD}")
    a(f"s_mul_i32 s{eC2}, s{eC2}, 1280")
    a(f"s_lshl_b32 s{eB}, s{eB}, 6")
    a(f"s_add_u32 s{eC2}, s{eC2}, s{eB}")
    D = QF
    for i in range(8):
        a.wait(hs[i])
        a(f"v_mfma_f32_16x16x32_bf16 {vr(D,4)}, {vr(gSEL,4)}, {vr(KX+4*i,4)}, {'0' if i == 0 else vr(D,4)}")
    a(f"v_cvt_pk_bf16_f32 v{D}, v{D}, v{D+1}")
    a(f"v_cvt_pk_bf16_f32 v{D+1}, v{D+2}, v{D+3}")
    a(f"s_mov_b64 exec, {sr(eM32,2)}")
    a(f"buffer_store_dwordx2 {vr(D,2)}, v{gOUT}, {sr(eOUT,4)}, s{eC2} offen")
    a(f"s_mov_b64 exec, -1")
    a(f"s_add_u32 s{eJ}, s{eJ}, 128")
    a(f"s_cmp_lt_u32 s{eJ}, 160")
    a(f"s_cbranch_scc1 L_en_job")
    if "wb" in opts:
        a(f"s_lshl_b32 s{eA}, s{eH}, 2")
        a(f"s_add_u32 s{eA}, s{eA}, s{sW}")
        a(f"s_cmp_lg_u32 s{eA}, 127")
        a(f"s_cbranch_scc1 L_en_nowb")
        a(f"buffer_wbl2 sc1")
        a.label("L_en_nowb")
    if mark: mark()
    a(f"s_xor_b32 s{eEPW}, s{eEPW}, 0x200000")
    a(f"s_xor_b32 s{eEPR}, s{eEPR}, 0x200000")
    a(f"s_add_u32 s{eSEG}, s{eSEG}, {nE}")
    a(f"s_branch L_en_loop")
```

```python
from asmlib import *
import struct

KXI   = 0x0000000
VXI   = 0x1000000
QXI   = 0x2000000
KMI   = 0x3000000
VMI   = 0x3400000
PB    = 0x4000000
PST = 10240 + 128
PBX = 0x80000
IMGL  = 0x41A0000
IMGR  = 0x4400000
TB    = 0x4120000
PROBE = 0x4160000
KF = 0x4170000
EF = 0x4180000
SCR = 0x4190000
STAMP = 0x5000000
WS_BYTES = 268435456

L_IA = 0
L_IB = 10240
L_T  = 20480
L_O  = 22528
L_V  = 23552
L_KV = 24576
NKV = 4
KVD = 2
LDS_BYTES = 163840

vL16, vA, vGW, vAV, vRD, vPB, vPS, vIDX = 0, 1, 2, 3, 4, 5, 6, 7
vID0 = 8; vGG = 10; vSA = 11
vXA = 188
vBLK = 190
vBA = 191
vKMW = 189
vTW, vTQ, vTK, vOW = 12, 13, 14, 15
vG1, vG2 = 16, 17
vKL, vKR, vVX = 19, 20, 21
vL4 = 22
vCK = 23
vT0, vT1, vT2, vT3 = 24, 25, 26, 27
ZQ, ZK, V = 28, 32, 36
GL = 40
AR = 52
KXR = 84
TLQ, TLK, TRQ, TRK = 116, 124, 132, 140
AU = 84
GB = 104
VXR = 148
D3 = 152
TT = 164
DO = 168
PP = 172
VP = 178
vONE = 116
vAG = 180
vBP = 183
vSEL4 = 184
RESV0 = 192
ACC = [AR, AR + 4, AR + 8, AR + 12, AR + 16]
AO = AR + 20
RL = TLQ
vVW = 50
EX = 168
vG0 = 2
vS10, vS01 = 3, 18

sWS = 4; sRA = 8; sDBG = 16
sXCC, sH, sW, sSTEP, sSPIN = 18, 19, 20, 21, 22
sTMP = 23
sX, sR, sU = 24, 25, 26
sKX, sVX, sKM, sVM = 28, 29, 30, 31
sPB0 = 32
sHASJ = 33
sRD = 34
sJL, sJR = 42, 43
sGL, sGR = 44, 45
sTBW, sTBR = 46, 47
sMLO = 48; sMHI = 50; sMPB = 52
sTAG0, sTAG1 = 54, 55
sONE = 56
sC = 58
sSLOT = 59
sKVW, sKVR = 60, 61
sT2, sT3, sT4, sT5 = 62, 63, 64, 65
sSTAMP = 66
sM40 = 68
sGL1, sGL2 = 70, 71
sPT = 72
sKSEG = 76
sRDY = 77
sBL = 78
sKF = 79
sKE = 80
sKVM = 67
sTM = 84
SPIN_MAX = 200000

def fbits(x):
    return struct.unpack("<I", struct.pack("<f", x))[0]

OPS = [(m, i) for m in "qkv" for i in range(10)] + [("WO", c, j) for c in range(5) for j in range(2)]
PL = {}
for n, op in enumerate(OPS):
    PL[op] = ("a", n * 8) if n < 32 else ("v", RESV0 + (n - 32) * 8)

def breg(op):
    p = PL[op]
    return ar(p[1], 8) if p[0] == "a" else vr(p[1], 8)

class Team:
    def __init__(self, a, stamps=False, opts=()):
        self.a = a
        self.stamps = stamps
        self.opts = set(opts)
    def opt(self, name, default):
        o = [x for x in self.opts if x.startswith(name + "=")]
        return int(o[0][len(name) + 1:]) if o else default
    def smf(self, op, D, A):
        self.a(f"v_smfmac_f32_16x16x64_bf16 {vr(D,4)}, {vr(A,4)}, {breg(op)}, v{vIDX}")
    def stamp(self, i):
        sel = [o for o in self.opts if o.startswith("st=")]
        names = sel[0][3:].split("/") if sel else ["0", "1", "2", "3", "4", "5", "6", "7"]
        if str(i) not in names or not self.stamps: return
        self.a(f"s_memtime {sr(sTM + 2*names.index(str(i)), 2)}")
    def srd(self, dst, karg_off, nbytes):
        a = self.a
        a(f"s_load_dwordx2 {sr(dst,2)}, s[0:1], {karg_off}")
        a(f"s_waitcnt lgkmcnt(0)")
        a(f"s_and_b32 s{dst+1}, s{dst+1}, 0xffff")
        a(f"s_mov_b32 s{dst+2}, {nbytes}")
        a(f"s_mov_b32 s{dst+3}, 0x00020000")

    def setup(self):
        a = self.a
        L, N, Gg, Tt, TH = 100, 101, 102, 103, 104
        a(f"v_and_b32 v{L}, 63, v0")
        a(f"v_and_b32 v{N}, 15, v{L}")
        a(f"v_lshrrev_b32 v{Gg}, 4, v{L}")
        a(f"v_and_b32 v{Tt}, 7, v{L}")
        a(f"v_bfe_u32 v{TH}, v{L}, 3, 1")
        a(f"v_lshlrev_b32 v{vL16}, 4, v{L}")
        a(f"v_lshlrev_b32 v{vL4}, 2, v{L}")
        a(f"v_lshlrev_b32 v{vA}, 7, v{Gg}")
        a(f"v_lshl_add_u32 v{vA}, v{Tt}, 4, v{vA}")
        for b in range(1, 4):
            a(f"s_add_u32 s{sTMP}, s{sW}, {b}")
            a(f"s_and_b32 s{sTMP}, s{sTMP}, 3")
            a(f"s_lshl_b32 s{sTMP}, s{sTMP}, 10")
            a(f"v_add_u32 v{vAG+b-1}, s{sTMP}, v{vL16}")
        a(f"v_mov_b32 v{vS10}, 0x3F80")
        a(f"v_mov_b32 v{vS01}, 0x3F800000")
        a(f"v_lshlrev_b32 v{vBP}, 5, v{TH}")
        a(f"v_and_b32 v107, 1, v{L}")
        a(f"v_lshl_add_u32 v{vBP}, v107, 4, v{vBP}")
        a(f"v_bfe_u32 v107, v{L}, 1, 2")
        a(f"v_add_u32 v{vBP}, v{vBP}, v107")
        a(f"v_lshlrev_b32 v{vBP}, 2, v{vBP}")
        a(f"s_movk_i32 s{sTMP}, {PST}")
        a(f"v_mul_lo_u32 v{vRD}, v{Gg}, s{sTMP}")
        a(f"v_lshl_add_u32 v{vRD}, v{N}, 3, v{vRD}")
        G1, G0 = 105, 106
        a(f"v_lshrrev_b32 v{G1}, 1, v{Gg}")
        a(f"v_and_b32 v{G0}, 1, v{Gg}")
        a(f"v_and_b32 v107, 3, v{L}")
        a(f"v_lshlrev_b32 v{vPB}, 4, v107")
        a(f"v_lshlrev_b32 v{vXA}, 3, v{L}")
        a(f"v_lshl_add_u32 v{vPB}, v{G1}, 7, v{vPB}")
        a(f"v_lshl_add_u32 v{vPB}, v{G0}, 3, v{vPB}")
        a(f"s_lshl_b32 s{sTMP}, s{sW}, 10")
        a(f"v_add_u32 v{vGG}, s{sTMP}, v{vL16}")
        a(f"v_lshrrev_b32 v{vSA}, 1, v{vGG}")
        a(f"v_lshlrev_b32 v{vPS}, 8, v{G0}")
        a(f"v_lshl_add_u32 v{vPS}, v{TH}, 7, v{vPS}")
        a(f"v_lshl_add_u32 v{vPS}, v{Tt}, 4, v{vPS}")
        a(f"v_lshl_add_u32 v{vPS}, v{G1}, 3, v{vPS}")
        a(f"v_mov_b32 v107, 0x8888")
        a(f"v_mov_b32 v108, 0xDDDD")
        a(f"v_cmp_eq_u32 vcc, 0, v{TH}")
        a(f"v_cndmask_b32 v{vIDX}, v108, v107, vcc")
        a(f"v_lshlrev_b32 v107, 2, v{Gg}")
        a(f"v_sub_u32 v107, v{N}, v107")
        a(f"v_mov_b32 v108, 0x3F80")
        a(f"v_mov_b32 v109, 0x3F800000")
        a(f"v_mov_b32 v{vID0}, 0")
        a(f"v_mov_b32 v{vID0+1}, 0")
        for jj in range(4):
            a(f"v_cmp_eq_u32 vcc, {jj}, v107")
            a(f"v_cndmask_b32 v{vID0 + jj//2}, v{vID0 + jj//2}, v{108 + jj%2}, vcc")
        a(f"s_mov_b32 s{sONE}, 0x3F80"); a(f"s_mov_b32 s{sONE+1}, 0")
        a(f"v_lshlrev_b64 {vr(vSEL4,2)}, v{vL16}, {sr(sONE,2)}")
        a(f"v_lshlrev_b64 {vr(vSEL4+2,2)}, v{vL16}, {sr(sONE,2)}")
        a(f"v_lshlrev_b32 v{vTW}, 4, v{N}")
        a(f"v_lshl_add_u32 v{vTW}, v{G1}, 8, v{vTW}")
        a(f"v_lshl_add_u32 v{vTW}, v{G0}, 3, v{vTW}")
        a(f"s_lshl_b32 s{sTMP}, s{sW}, 9")
        a(f"v_add_u32 v{vTW}, s{sTMP}, v{vTW}")
        a(f"v_lshrrev_b32 v107, 3, v{L}")
        a(f"v_lshlrev_b32 v{vKMW}, 8, v107")
        a(f"v_lshl_add_u32 v{vKMW}, v{Tt}, 4, v{vKMW}")
        a(f"v_lshlrev_b32 v107, 8, v{Gg}")
        a(f"v_lshl_add_u32 v{vTQ}, v{Tt}, 4, v107")
        a(f"v_bfe_u32 v108, v{N}, 2, 1")
        a(f"v_lshlrev_b32 v108, 2, v108")
        a(f"v_lshl_add_u32 v108, v{TH}, 1, v108")
        a(f"v_and_b32 v109, 1, v{N}")
        a(f"v_add3_u32 v108, v108, v109, 8")
        a(f"v_lshl_add_u32 v{vTK}, v108, 4, v107")
        a(f"v_lshlrev_b32 v{vOW}, 7, v{G1}")
        a(f"v_lshl_add_u32 v{vOW}, v{Tt}, 4, v{vOW}")
        a(f"v_lshl_add_u32 v{vOW}, v{G0}, 3, v{vOW}")
        a(f"s_lshl_b32 s{sTMP}, s{sW}, 8")
        a(f"v_add_u32 v{vOW}, s{sTMP}, v{vOW}")
        a(f"v_mov_b32 v{VP+1}, 0")
        a(f"v_mov_b32 v{PP+5}, 0")
        a(f"s_mov_b32 s{sMLO}, 0x00FF00FF"); a(f"s_mov_b32 s{sMLO+1}, 0x00FF00FF")
        a(f"s_mov_b32 s{sMHI}, 0xFF00FF00"); a(f"s_mov_b32 s{sMHI+1}, 0xFF00FF00")
        a(f"s_mov_b32 s{sMPB}, 0x000F000F"); a(f"s_mov_b32 s{sMPB+1}, 0x000F000F")
        a(f"s_mov_b32 s{sM40}, 0x33333333"); a(f"s_mov_b32 s{sM40+1}, 0x33333333")
        a(f"s_mov_b32 s{sC}, {fbits(128 ** -0.5 * 1.4426950408889634):#x}")
        a(f"s_and_b32 s{sU}, s{sR}, 1")
        a(f"s_lshr_b32 s{sH}, s{sR}, 1")
        a(f"s_lshl_b32 s{sTMP}, s{sX}, 4")
        a(f"s_add_u32 s{sH}, s{sH}, s{sTMP}")
        a(f"s_lshl_b32 s{sKX}, s{sH}, 13")
        a(f"s_lshl_b32 s{sTMP}, s{sU}, 12")
        a(f"s_add_u32 s{sTMP}, s{sTMP}, {VXI:#x}")
        a(f"s_lshl_b32 s{sT2}, s{sW}, 12")
        a(f"s_cmp_eq_u32 s{sW}, 2")
        a(f"s_cselect_b32 s{sTMP}, s{sTMP}, s{sT2}")
        a(f"s_add_u32 s{sKX}, s{sKX}, s{sTMP}")
        a(f"s_lshl_b32 s{sKM}, s{sH}, 11")
        a(f"s_lshl_b32 s{sTMP}, s{sU}, 10")
        a(f"s_add_u32 s{sKM}, s{sKM}, s{sTMP}")
        a(f"s_add_u32 s{sVM}, s{sKM}, {VMI:#x}")
        a(f"s_add_u32 s{sKM}, s{sKM}, {KMI:#x}")
        a(f"s_mul_i32 s{sPB0}, s{sR}, {PST}")
        a(f"s_mul_i32 s{sTMP}, s{sW}, 2560")
        a(f"s_add_u32 s{sPB0}, s{sPB0}, s{sTMP}")
        a(f"s_mul_i32 s{sT5}, s{sX}, {PBX}")
        a(f"s_add_u32 s{sT5}, s{sT5}, {PB:#x}")
        a(f"s_add_u32 s{sPB0}, s{sPB0}, s{sT5}")
        a(f"s_lshl_b32 s{sTMP}, s{sW}, 1")
        a(f"s_lshr_b32 s{sT2}, s{sR}, 4")
        a(f"s_add_u32 s{sTMP}, s{sTMP}, s{sT2}")
        a(f"s_cmp_le_u32 s{sTMP}, 4")
        a(f"s_cselect_b32 s{sHASJ}, 1, 0")
        a(f"s_cselect_b32 s{sTMP}, s{sTMP}, 4")
        a(f"s_sub_u32 s{sTMP}, 4, s{sTMP}")
        a(f"s_bfe_u32 s{sT2}, s{sR}, 0x20002")
        a(f"s_bfe_u32 s{sT3}, s{sR}, 0x10001")
        a(f"s_and_b32 s{sT4}, s{sR}, 1")
        a(f"s_mul_i32 s{sRD}, s{sT2}, 5")
        a(f"s_add_u32 s{sRD}, s{sRD}, s{sTMP}")
        a(f"s_lshl_b32 s{sRD}, s{sRD}, 9")
        a(f"s_add_u32 s{sRD}, s{sRD}, s{sT5}")
        a(f"s_lshl_b32 s{sT5}, s{sT3}, 8")
        a(f"s_add_u32 s{sRD}, s{sRD}, s{sT5}")
        a(f"s_lshl_b32 s{sT5}, s{sT4}, 7")
        a(f"s_add_u32 s{sRD}, s{sRD}, s{sT5}")
        for i in range(1, 8):
            a(f"s_add_u32 s{sRD+i}, s{sRD+i-1}, {4*PST}")
        a(f"s_lshl_b32 s{sJL}, s{sTMP}, 11")
        a(f"s_lshl_b32 s{sT5}, s{sT2}, 9")
        a(f"s_add_u32 s{sJL}, s{sJL}, s{sT5}")
        a(f"s_lshl_b32 s{sT5}, s{sT4}, 8")
        a(f"s_add_u32 s{sJL}, s{sJL}, s{sT5}")
        a(f"s_lshl_b32 s{sT5}, s{sT3}, 7")
        a(f"s_add_u32 s{sJL}, s{sJL}, s{sT5}")
        a(f"s_and_b32 s{sT5}, s{sJL}, 0x2000")
        a(f"s_add_u32 s{sJL}, s{sJL}, s{sT5}")
        a(f"s_lshl_b32 s{sT5}, s{sX}, 16")
        a(f"s_add_u32 s{sGL}, s{sT5}, {IMGL:#x}")
        a(f"s_lshl_b32 s{sT5}, s{sX}, 22")
        a(f"s_add_u32 s{sGR}, s{sT5}, {IMGR:#x}")
        a(f"s_xor_b32 s{sT5}, s{sT5}, 0x400000")
        a(f"s_add_u32 s{sJR}, s{sJL}, s{sT5}")
        a(f"s_add_u32 s{sJR}, s{sJR}, {IMGR:#x}")
        a(f"s_add_u32 s{sJL}, s{sJL}, s{sGL}")
        a(f"s_mov_b32 s{sSLOT}, 32768")
        for src, dst in ((vGG, vG0), (vSA, vG2)):
            a(f"v_and_b32 v107, 0xFFFFFF3F, v{src}")
            a(f"v_bfe_u32 v108, v{src}, 6, 1")
            a(f"v_lshl_add_u32 v107, v108, 7, v107")
            a(f"v_bfe_u32 v108, v{src}, 7, 1")
            a(f"v_lshl_add_u32 v{dst}, v108, 6, v107")
        a(f"v_add_u32 v{vG1}, 4096, v{vG0}")
        a(f"v_add_u32 v{vG2}, 16384, v{vG2}")
        a(f"s_lshl_b32 s{sTBW}, s{sX}, 5")
        a(f"s_add_u32 s{sTBW}, s{sTBW}, s{sR}")
        a(f"s_lshl_b32 s{sTBW}, s{sTBW}, 11")
        a(f"s_add_u32 s{sTBW}, s{sTBW}, {TB:#x}")
        a(f"s_xor_b32 s{sTBR}, s{sTBW}, 0x800")
        a(f"s_mov_b32 s{sTAG0}, 0")
        a(f"s_mov_b32 s{sTAG1}, 0")
        a(f"s_mov_b32 s{sSTEP}, 0")
        a(f"s_mov_b32 s{sKSEG}, 0")
        a(f"s_mov_b32 s{sRDY}, {-1 if 'nohelp' in self.opts else 0}")
        a(f"s_lshl_b32 s{sKF}, s{sH}, 7")
        a(f"s_lshl_b32 s{sTMP}, s{sU}, 2")
        a(f"s_add_u32 s{sKF}, s{sKF}, s{sTMP}")
        a(f"s_add_u32 s{sKF}, s{sKF}, {KF:#x}")
        a(f"v_min_u32 v{vBA}, 92, v{vL4}")
        a(f"v_add_u32 v{vBA}, 64, v{vBA}")
        if self.stamps:
            a(f"s_lshl_b32 s{sTMP}, s{sX}, 5")
            a(f"s_add_u32 s{sTMP}, s{sTMP}, s{sR}")
            a(f"s_lshl_b32 s{sTMP}, s{sTMP}, 2")
            a(f"s_add_u32 s{sTMP}, s{sTMP}, s{sW}")
            a(f"s_lshl_b32 s{sSTAMP}, s{sTMP}, 13")
            a(f"s_add_u32 s{sSTAMP}, s{sSTAMP}, {STAMP:#x}")

    def init_buffers(self):
        a = self.a
        a(f"v_mov_b64 {vr(vT0,2)}, -1")
        for c in range(5):
            a(f"buffer_store_dwordx2 {vr(vT0,2)}, v{vPS}, {sr(sWS,4)}, s{sPB0} offen offset:{c*512}")
        a(f"buffer_store_dwordx2 {vr(vT0,2)}, v{vTW}, {sr(sWS,4)}, s{sTBW} offen")
        a(f"v_mov_b32 v{vT2}, 0")
        a(f"s_mov_b64 exec, 1")
        for e in range(6):
            a(f"s_add_u32 s{sPT}, s{sKF}, {e*4096}")
            a(f"buffer_store_dword v{vT2}, v{vT2}, {sr(sWS,4)}, s{sPT} offen sc1")
        a(f"s_movk_i32 s{sKE}, {4*4096}")
        a(f"s_mov_b64 exec, -1")
        a(f"s_lshl_b32 s{sPT}, s{sR}, 2")
        a(f"s_add_u32 s{sPT}, s{sPT}, s{sW}")
        a(f"s_bfe_u32 s{sPT+1}, s{sPT}, 0x10002")
        a(f"s_xor_b32 s{sPT+1}, s{sPT+1}, 1")
        for r in range(4): a(f"v_mov_b32 v{ZQ+r}, s{sPT+1}")
        a(f"s_lshr_b32 s{sPT+1}, s{sPT}, 1")
        a(f"s_lshl_b32 s{sPT+1}, s{sPT+1}, 15")
        a(f"s_and_b32 s{sPT}, s{sPT}, 1")
        a(f"s_lshl_b32 s{sPT}, s{sPT}, 13")
        a(f"s_add_u32 s{sPT}, s{sPT}, s{sPT+1}")
        a(f"s_add_u32 s{sPT}, s{sPT}, s{sGR}")
        for k in range(10):
            if k % 4 == 0: a(f"s_add_u32 s{sPT+1}, s{sPT}, {[0, 4096, 16384][k // 4]}")
            a(f"buffer_store_dwordx4 {vr(ZQ,4)}, v{vL16}, {sr(sWS,4)}, s{sPT+1} offen offset:{(k%4)*1024} sc1")
        a(f"s_cmp_eq_u32 s{sHASJ}, 0")
        a(f"s_cbranch_scc1 L_team_noinit")
        save = list(a.vm)
        a(f"s_mov_b64 exec, 0xFFFF")
        for off in (0, 32768):
            a(f"s_add_u32 s{sPT}, s{sJL}, {off}")
            a(f"buffer_store_dwordx2 {vr(vT0,2)}, v{vXA}, {sr(sWS,4)}, s{sPT} offen")
        a(f"s_mov_b64 exec, -1")
        a.vm = save
        a.label("L_team_noinit")

    def signal(self, dbg_off):
        a = self.a
        a(f"s_cmp_lg_u32 s{sW}, 0")
        a(f"s_cbranch_scc1 L_ta_done")
        a(f"s_mov_b64 exec, 1")
        a(f"v_mov_b32 v{vT0}, {dbg_off}")
        a(f"v_mov_b32 v{vT1}, 1")
        save = list(a.vm)
        a(f"global_atomic_add v{vT0}, v{vT1}, {sr(sDBG,2)} sc1")
        a.vm = save
        a(f"s_mov_b64 exec, -1")
        a.label("L_ta_done")

    def wait_team(self, dbg_off):
        a = self.a
        a(f"v_mov_b32 v{vT0}, {dbg_off}")
        a(f"s_mov_b32 s{sSPIN}, 0")
        a(f"s_mov_b64 exec, 1")
        a.label(f"L_tw_poll")
        a(f"global_load_dwordx2 {vr(vT2,2)}, v{vT0}, {sr(sDBG,2)} sc1")
        a(f"s_add_u32 s{sSPIN}, s{sSPIN}, 1")
        a(f"s_cmp_gt_u32 s{sSPIN}, {SPIN_MAX}")
        a(f"s_cbranch_scc1 L_fail")
        a.wait_vm0()
        a(f"v_readfirstlane_b32 s{sTMP}, v{vT2}")
        a(f"s_cmp_lt_u32 s{sTMP}, 64")
        a(f"s_cbranch_scc1 L_tw_poll")
        a(f"v_readfirstlane_b32 s{sTMP}, v{vT3}")
        a(f"s_cmp_lg_u32 s{sTMP}, 0")
        a(f"s_cbranch_scc1 L_tw_have")
        a(f"v_mov_b32 v{vT2}, 1")
        a(f"v_mov_b32 v{vT3}, 0")
        a(f"global_atomic_cmpswap v{vT1}, v{vT0}, {vr(vT2,2)}, {sr(sDBG,2)} offset:4 sc0 sc1")
        a.wait_vm0()
        a(f"v_readfirstlane_b32 s{sTMP}, v{vT1}")
        a.label("L_tw_have")
        a(f"s_mov_b64 exec, -1")
        a(f"s_and_b32 s{sTMP}, s{sTMP}, 0x2000")
        a(f"s_add_u32 s{sJR}, s{sJR}, s{sTMP}")
        a(f"s_add_u32 s{sGR}, s{sGR}, s{sTMP}")

    def load_weights(self):
        a = self.a
        TA = 40
        OUT = 104
        vW, vWo, vSN, vSO, vPSEL = 112, 113, 114, 115, 116
        vSB = 117
        vAD = [124, 125, 126, 127]
        NB = 5; SZ = 32768
        wf = 'nt' if 'wnt' in self.opts else ''
        a(f"v_lshrrev_b32 v{vT0}, 7, v{vL16}")
        a(f"v_and_b32 v{vT1}, 0x70, v{vL16}")
        a(f"v_lshl_add_u32 v{vW}, v{vT0}, 13, v{vT1}")
        a(f"v_lshrrev_b32 v{vT0}, 8, v{vL16}")
        a(f"v_and_b32 v{vT1}, 0xF0, v{vL16}")
        a(f"s_movk_i32 s{sTMP}, 1280")
        a(f"v_mul_lo_u32 v{vWo}, v{vT0}, s{sTMP}")
        a(f"v_add_u32 v{vWo}, v{vWo}, v{vT1}")
        a(f"v_lshrrev_b32 v{vT2}, 5, v{vT1}")
        a(f"v_lshlrev_b32 v{vSN}, 2, v{vT2}")
        a(f"v_lshrrev_b32 v{vT2}, 1, v{vT0}")
        a(f"v_lshl_add_u32 v{vSN}, v{vT2}, 11, v{vSN}")
        a(f"v_and_b32 v{vT2}, 1, v{vT0}")
        a(f"v_lshl_add_u32 v{vSN}, v{vT2}, 9, v{vSN}")
        a(f"s_lshl_b32 s{sTMP}, s{sW}, 5")
        a(f"v_add_u32 v{vSN}, s{sTMP}, v{vSN}")
        a(f"v_mov_b32 v{vT2}, 0x05040100")
        a(f"v_mov_b32 v{vT3}, 0x07060302")
        a(f"v_and_b32 v{vPSEL}, 16, v{vL16}")
        a(f"v_cmp_eq_u32 vcc, 0, v{vPSEL}")
        a(f"v_cndmask_b32 v{vPSEL}, v{vT3}, v{vT2}, vcc")
        for b in range(4):
            a(f"s_add_u32 s{sTMP}, s{sW}, {b}")
            a(f"s_and_b32 s{sTMP}, s{sTMP}, 3")
            a(f"s_lshl_b32 s{sTMP}, s{sTMP}, 13")
            a(f"v_add_u32 v{vSB+b}, s{sTMP}, v{vSN}")
        a(f"v_lshrrev_b32 v{vT1}, 2, v{vT1}")
        a(f"v_lshl_add_u32 v{vSO}, v{vT0}, 10, v{vT1}")
        a(f"s_lshl_b32 s{sTMP}, s{sW}, 6")
        a(f"v_add_u32 v{vSO}, s{sTMP}, v{vSO}")
        sBQ, sBS, sBO, sLD = sT2, sT3, sT4, sT5
        a(f"s_lshl_b32 s{sBS}, s{sH}, 8")
        a(f"s_lshl_b32 s{sTMP}, s{sU}, 7")
        a(f"s_add_u32 s{sBS}, s{sBS}, s{sTMP}")
        a(f"s_mul_i32 s{sTMP}, s{sW}, {64*8192}")
        a(f"s_add_u32 s{sBQ}, s{sBS}, s{sTMP}")
        a(f"s_mul_i32 s{sTMP}, s{sW}, {32*8192}")
        a(f"s_add_u32 s{sBS}, s{sBS}, s{sTMP}")
        a(f"s_mul_i32 s{sBO}, s{sH}, 163840")
        a(f"s_mul_i32 s{sTMP}, s{sU}, {64*1280}")
        a(f"s_add_u32 s{sBO}, s{sBO}, s{sTMP}")
        a(f"s_mul_i32 s{sTMP}, s{sW}, {16*1280}")
        a(f"s_add_u32 s{sBO}, s{sBO}, s{sTMP}")
        a(f"s_lshl_b32 s{sLD}, s{sW}, 12")
        stages = [(m, i) for m in "qkv" for i in range(3)] + [("o", c) for c in range(5)]
        karg = {"q": 16, "k": 24, "v": 32, "o": 40}
        srds = {"q": 8, "k": 12, "v": 8, "o": 12}
        loaded = set()
        hd = {}
        def dma(n):
            kind, i = stages[n]
            if kind not in loaded:
                self.srd(srds[kind], karg[kind], 5242880); loaded.add(kind)
            buf = (n % NB) * SZ
            hs = []
            big = kind != "o" and i < 2
            for m in range(8 if big else 4):
                if big:
                    a(f"s_lshl_b32 m0, s{sLD}, 1")
                    a(f"s_add_u32 m0, m0, {buf + m*1024}")
                else:
                    a(f"s_add_u32 m0, s{sLD}, {buf + m*1024}")
                if kind == "o":
                    a(f"s_add_u32 s{sTMP}, s{sBO}, {4*m*1280 + i*256}")
                    hs.append(a(f"buffer_load_dwordx4 v{vWo}, {sr(srds[kind],4)}, s{sTMP} offen {wf} lds"))
                elif big:
                    a(f"s_add_u32 s{sTMP}, s{sBQ}, {(256*i + 8*m) * 8192}")
                    hs.append(a(f"buffer_load_dwordx4 v{vW}, {sr(srds[kind],4)}, s{sTMP} offen {wf} lds"))
                else:
                    a(f"s_add_u32 s{sTMP}, s{sBS}, {(512 + 8*m) * 8192}")
                    hs.append(a(f"buffer_load_dwordx4 v{vW}, {sr(srds[kind],4)}, s{sTMP} offen {wf} lds"))
            hd[n] = hs
        def combine(op, lo, hi):
            p = PL[op]
            for r in range(8):
                d = p[1] + r if p[0] == "v" else OUT + r
                a(f"v_perm_b32 v{d}, v{hi+r}, v{lo+r}, v{vPSEL}")
            if p[0] == "a":
                for r in range(8): a(f"v_accvgpr_write_b32 a{p[1]+r}, v{OUT+r}")
        AH = self.opt('ah', NB - 1)
        for n in range(AH): dma(n)
        for n, (kind, i) in enumerate(stages):
            a.wait(hd[n])
            a.wait_lg0()
            a("s_barrier")
            if n + AH < len(stages): dma(n + AH)
            if n == 0 and "lateinit" in self.opts:
                self.init_buffers()
            if n == (5 if "lateinit" in self.opts else 0): self.signal(52)
            buf = (n % NB) * SZ
            if kind in "qkv":
                nb = 4 if i < 2 else 2
                hs = {}
                for b in range(nb):
                    if i < 2: a(f"v_add_u32 v{vAD[b]}, {buf}, v{vSB+b}")
                    else: a(f"v_add_u32 v{vAD[b]}, {buf + b*8192}, v{vSN}")
                for b in range(nb):
                    for hf in range(2):
                        for r in range(8):
                            hs[b] = a(f"ds_read_b32 v{TA + 16*b + 8*hf + r}, v{vAD[b]} offset:{(32*(r>>2) + (r&3) + 8*hf)*128}")
                    if b >= 1:
                        a.wait(hs[b-1])
                        combine((kind, 2*(b-1) + i if i < 2 else 8 + b - 1), TA + 16*(b-1), TA + 16*(b-1) + 8)
                b = nb
                a.wait(hs[b-1])
                combine((kind, 2*(b-1) + i if i < 2 else 8 + b - 1), TA + 16*(b-1), TA + 16*(b-1) + 8)
            else:
                a(f"v_add_u32 v{vAD[0]}, {buf}, v{vSO}")
                for j in range(2):
                    p = PL[("WO", i, j)]
                    for r in range(8):
                        a(f"ds_read_b32 {p[0]}{p[1]+r}, v{vAD[0]} offset:{(32*j + (r&3) + 16*(r>>2))*256}")
        a.wait_all()
        a("s_barrier")

    def kv_ready(self, lab):
        a = self.a
        from engine import blk_of_seg, D_BLK
        a(f"s_min_u32 s{sT2}, s{sKSEG}, 63")
        blk_of_seg(a, sT2, sBL)
        a(f"s_add_u32 s{sKSEG}, s{sKSEG}, 1")
        a(f"s_bitcmp1_b32 s{sRDY}, s{sBL}")
        a(f"s_cbranch_scc1 {lab}_ok")
        a(f"s_mov_b32 s{sSPIN}, 0")
        a.label(lab)
        a(f"global_load_dword v{vBLK}, v{vBA}, {sr(sDBG,2)} sc1")
        a(f"s_add_u32 s{sSPIN}, s{sSPIN}, 1")
        a(f"s_cmp_gt_u32 s{sSPIN}, {SPIN_MAX}")
        a(f"s_cbranch_scc1 L_fail")
        a(f"s_waitcnt vmcnt(0)")
        a(f"v_cmp_le_u32 vcc, 32, v{vBLK}")
        a(f"s_nop 3")
        a(f"s_mov_b32 s{sRDY}, vcc_lo")
        a(f"s_bitcmp1_b32 s{sRDY}, s{sBL}")
        a(f"s_cbranch_scc1 {lab}_ok")
        a(f"s_sleep 4")
        a(f"s_branch {lab}")
        a.label(f"{lab}_ok")
    def kv_check(self):
        a = self.a
        if "full" in self.opts:
            self.nkv = getattr(self, "nkv", 0) + 1
            save = list(a.vm)
            self.kv_ready(f"L_kvr{self.nkv}")
            a.vm = save
    def kv_dma(self):
        a = self.a
        a(f"s_lshl_b32 s{sTMP}, s{sKVM}, 1")
        a(f"s_add_u32 m0, s{sTMP}, s{sKVW}")
        a(f"s_add_u32 s{sKVW}, s{sKVW}, 12288")
        for k in range(4):
            a(f"buffer_load_dwordx4 v{vL16}, {sr(sWS,4)}, s{sKX} offen offset:{k*1024} sc1 lds")
        a(f"s_cmp_eq_u32 s{sKVW}, {L_KV + NKV*12288}")
        a(f"s_cselect_b32 s{sKVW}, {L_KV}, s{sKVW}")
        a(f"s_add_u32 s{sKX}, s{sKX}, {32*8192}")

    def prologue(self):
        a = self.a
        a(f"s_lshl_b32 s{sTMP}, s{sW}, 8")
        a(f"v_add_u32 v{vVW}, s{sTMP}, v{vL4}")
        a(f"s_lshl_b32 s{sKVM}, s{sW}, 11")
        a(f"s_mov_b32 s{sKVW}, {L_KV}")
        a(f"s_mov_b32 s{sKVR}, {L_KV}")
        for _ in range(KVD): self.kv_check()
        a(f"s_cmp_eq_u32 s{sW}, 3")
        a(f"s_cbranch_scc1 L_pro3")
        for _ in range(KVD): self.kv_dma()
        a.label("L_pro3")
        self.srd(sRA, 8, 10240)
        a(f"s_movk_i32 s{sTMP}, 1280")
        a(f"v_bfe_u32 v{vT0}, v{vGG}, 4, 3")
        a(f"v_mul_lo_u32 v{vT0}, v{vT0}, s{sTMP}")
        a(f"v_lshrrev_b32 v{vT1}, 7, v{vGG}")
        a(f"v_lshl_add_u32 v{vT0}, v{vT1}, 4, v{vT0}")
        a(f"buffer_load_dwordx4 {vr(GL,4)}, v{vT0}, {sr(sRA,4)}, 0 offen")
        a(f"buffer_load_dwordx4 {vr(GL+4,4)}, v{vT0}, {sr(sRA,4)}, 0 offen offset:512")
        a(f"v_bfe_u32 v{vT2}, v{vSA}, 4, 3")
        a(f"v_mul_lo_u32 v{vT2}, v{vT2}, s{sTMP}")
        a(f"v_lshrrev_b32 v{vT1}, 7, v{vSA}")
        a(f"v_lshl_add_u32 v{vT2}, v{vT1}, 4, v{vT2}")
        a(f"v_and_b32 v{vT1}, 8, v{vSA}")
        a(f"v_add_u32 v{vT2}, v{vT2}, v{vT1}")
        a(f"buffer_load_dwordx2 {vr(GL+8,2)}, v{vT2}, {sr(sRA,4)}, 0 offen offset:1024")
        for r in range(ZQ, ZQ + 12, 2): a(f"v_mov_b64 {vr(r,2)}, 0")
        for r in range(GB, GB + 10, 2): a(f"v_mov_b64 {vr(r,2)}, 0")
        a.wait_all()
        for i in range(10):
            a(f"v_lshlrev_b32 v{AU+2*i}, 16, v{GL+i}")
            a(f"v_and_b32 v{AU+2*i+1}, 0xFFFF0000, v{GL+i}")
        self.kv_check()

    def poll(self, lab, issue, regs, tag, thr=None, sleep=0):
        a = self.a
        a(f"s_mov_b32 s{sSPIN}, 0")
        a.label(lab)
        issue()
        a(f"s_add_u32 s{sSPIN}, s{sSPIN}, 1")
        a(f"s_cmp_gt_u32 s{sSPIN}, {SPIN_MAX}")
        a(f"s_cbranch_scc1 L_fail")
        a(f"s_waitcnt vmcnt({thr if thr is not None else self.opt('thr', 30)})")
        if sleep: a(f"s_sleep {sleep}")
        for n, r in enumerate(regs): self.ck(r, tag, n == 0)
        a(f"v_and_b32 v{vCK}, 1, v{vCK}")
        a(f"v_cmp_ne_u32 vcc, 0, v{vCK}")
        a(f"s_cbranch_vccnz {lab}")
    def bpoll(self, lab, issue, first, regs, per, tag):
        a = self.a
        a(f"s_mov_b32 s{sSPIN}, 0")
        a(f"s_branch {lab}_c")
        save = list(a.vm)
        a.label(lab)
        issue()
        a.vm = save
        a.label(f"{lab}_c")
        a(f"s_add_u32 s{sSPIN}, s{sSPIN}, 1")
        a(f"s_cmp_gt_u32 s{sSPIN}, {SPIN_MAX}")
        a(f"s_cbranch_scc1 L_fail")
        assert a.vm[-len(first):] == first
        for n, r in enumerate(regs):
            a.wait(first[n // per])
            self.ck(r, tag, n == 0)
        a(f"v_and_b32 v{vCK}, 1, v{vCK}")
        a(f"v_cmp_ne_u32 vcc, 0, v{vCK}")
        a(f"s_cbranch_vccnz {lab}")
    def poison(self, regs, tag):
        self.a(f"s_xor_b32 s{sTMP}, s{tag}, 1")
        for r in regs: self.a(f"v_mov_b32 v{r}, s{sTMP}")
    def ck(self, reg, tag, first):
        if first: self.a(f"v_xor_b32 v{vCK}, s{tag}, v{reg}")
        else: self.a(f"v_bitop3_b32 v{vCK}, v{vCK}, v{reg}, s{tag} bitop3:0xF6")

    def step(self, exit_label):
        a = self.a
        def ex_read():
            return [a(f"ds_read_b128 {vr(EX,4)}, v{vKMW} offset:{L_T + 128}"), a(f"ds_read_b128 {vr(EX+4,4)}, v{vL16} offset:{L_V}")]
        def ex_store():
            if "nokm" not in self.opts:
                a(f"buffer_store_dwordx4 {vr(EX,4)}, v{vL16}, {sr(sWS,4)}, s{sKM} offen sc1")
                a(f"buffer_store_dwordx4 {vr(EX+4,4)}, v{vL16}, {sr(sWS,4)}, s{sVM} offen sc1")
            a(f"s_add_u32 s{sKM}, s{sKM}, {32*2048}")
            a(f"s_add_u32 s{sVM}, s{sVM}, {32*2048}")
        def flag(val):
            a(f"v_mov_b32 v{vBLK}, {val}")
            a(f"s_mov_b64 exec, 1")
            a(f"s_add_u32 s{sTMP}, s{sKF}, s{sKE}")
            a(f"buffer_store_dword v{vBLK}, v{vL4}, {sr(sWS,4)}, s{sTMP} offen sc1")
            a(f"s_mov_b64 exec, -1")
            a(f"s_add_u32 s{sKE}, s{sKE}, 4096")
            a(f"s_cmp_eq_u32 s{sKE}, {6*4096}")
            a(f"s_cselect_b32 s{sKE}, 0, s{sKE}")
        def slow_ops():
            a(f"s_cmp_eq_u32 s{sW}, 3")
            a(f"s_cbranch_scc1 L_so3")
            save = list(a.vm)
            self.kv_dma()
            a.vm = save
            a(f"s_branch L_so_done")
            a.label("L_so3")
            a(f"s_cmp_eq_u32 s{sSTEP}, 0")
            a(f"s_cselect_b32 s{sT2}, {SCR:#x}, s{sKM}")
            a(f"s_cselect_b32 s{sBL}, {SCR:#x}, s{sVM}")
            a(f"s_cselect_b32 s{sTMP}, 0, {32*2048}")
            a(f"buffer_store_dwordx4 {vr(EX,4)}, v{vL16}, {sr(sWS,4)}, s{sT2} offen sc1")
            a(f"buffer_store_dwordx4 {vr(EX+4,4)}, v{vL16}, {sr(sWS,4)}, s{sBL} offen sc1")
            a(f"s_add_u32 s{sKM}, s{sKM}, s{sTMP}")
            a(f"s_add_u32 s{sVM}, s{sVM}, s{sTMP}")
            a(f"s_max_u32 s{sT2}, s{sSTEP}, 1")
            a(f"s_sub_u32 s{sT2}, s{sT2}, 1")
            flag(f"s{sT2}")
            a(f"buffer_load_dword v{vT2}, v{vL4}, {sr(sWS,4)}, s{sTBR} offen sc1")
            a.label("L_so_done")
        def last():
            a.wait_lg0()
            a("s_barrier")
            a(f"s_cmp_lg_u32 s{sW}, 3")
            a(f"s_cbranch_scc1 {exit_label}")
            a(f"s_nop 4")
            a.wait(ex_read())
            ex_store()
            a.wait_vm0()
            if "full" in self.opts:
                flag(64); flag(64)
        self.exports = last
        TREG = [r + 1 for r in [TRQ, TRQ + 2, TRK, TRK + 2, TRQ + 4, TRQ + 6, TRK + 4, TRK + 6]]
        if "tmask" in self.opts: TREG = [r + 1 for r in [TRQ, TRQ + 2, TRQ + 4, TRQ + 6, TRK, TRK + 2, TRK + 4, TRK + 6]]
        RREG = [RL + 2*i + 1 for i in range(8)]
        GREG = [GL + 2*i + 1 for i in range(5)]
        areg = lambda k: GL + 4 * k if k < 2 else AR + 4 * (k - 2)
        self.stamp(0)
        def add(lo, hi):
            for i in range(lo, hi):
                a(f"v_dot2_f32_bf16 v{AU+2*i}, v{GB+i}, v{vS10}, v{AU+2*i}")
                a(f"v_dot2_f32_bf16 v{AU+2*i+1}, v{GB+i}, v{vS01}, v{AU+2*i+1}")
        def pk(lo, hi):
            for i in range(lo, hi): a(f"v_cvt_pk_bf16_f32 v{GL+i}, v{AU+2*i}, v{AU+2*i+1}")
        add(0, 6); pk(0, 4)
        a(f"ds_write_b128 v{vGG}, {vr(GL,4)} offset:{L_IA}")
        add(6, 10)
        self.smf(("q", 0), ZQ, areg(0))
        pk(4, 8)
        a(f"ds_write_b128 v{vGG}, {vr(GL+4,4)} offset:{L_IA+4096}")
        self.smf(("k", 0), ZK, areg(0))
        pk(8, 10)
        a(f"ds_write_b64 v{vSA}, {vr(GL+8,2)} offset:{L_IA+8192}")
        self.smf(("q", 1), ZQ, areg(1))
        self.smf(("k", 1), ZK, areg(1))
        a(f"s_lshl_b32 s{sTMP}, s{sU}, 12")
        a(f"s_add_u32 s{sT2}, s{sTMP}, s{sKVR}")
        a(f"v_add_u32 v{vKL}, s{sT2}, v{vL16}")
        a.wait_lg0()
        a("s_barrier")
        self.stamp("b1")
        ah = {}
        for k in range(2, 10):
            if k < 8: ah[k] = a(f"ds_read_b128 {vr(areg(k),4)}, v{vAG + k//2 - 1} offset:{L_IA + (k%2)*4096}")
            else: ah[k] = a(f"ds_read_b128 {vr(areg(k),4)}, v{vL16} offset:{L_IA + k*1024}")
        self.smf(("v", 0), V, areg(0))
        a(f"s_xor_b32 s{sTMP}, s{sTMP}, 0x1000")
        a(f"s_add_u32 s{sT2}, s{sTMP}, s{sKVR}")
        a(f"v_add_u32 v{vKR}, s{sT2}, v{vL16}")
        self.smf(("v", 1), V, areg(1))
        a(f"s_lshr_b32 s{sTMP}, s{sKVM}, 1")
        a(f"s_add_u32 s{sT2}, s{sTMP}, s{sKVR}")
        a(f"v_add_u32 v{vVX}, s{sT2}, v{vL16}")
        for k in range(2, 10):
            a.wait(ah[k])
            self.smf(("q", k), ZQ, areg(k))
            kk = k - 2
            if kk == 5: a(f"s_waitcnt vmcnt(0)")
            a(f"ds_read_b128 {vr(KXR+4*kk,4)}, v{vKL if kk < 4 else vKR} offset:{(kk%4)*1024}")
            self.smf(("k", k), ZK, areg(k))
            if "tmask" in self.opts: a(f"v_mov_b32 v{TREG[kk]}, s{sTAG0}")
        self.stamp(1)
        vs = {"done": 2}
        def vfill(n):
            for _ in range(n):
                k = vs["done"]
                if k >= 10: return
                self.smf(("v", k), V, areg(k))
                vs["done"] += 1
        vfill(2)
        for r in range(4): a(f"v_permlane32_swap_b32 v{ZQ+r}, v{ZK+r}")
        a(f"v_pk_add_f32 {vr(ZQ,2)}, {vr(ZQ,2)}, {vr(ZK,2)}")
        a(f"v_pk_add_f32 {vr(ZQ+2,2)}, {vr(ZQ+2,2)}, {vr(ZK+2,2)}")
        a(f"v_cvt_pk_bf16_f32 v{TT}, v{ZQ}, v{ZQ+1}")
        a(f"v_cvt_pk_bf16_f32 v{TT+1}, v{ZQ+2}, v{ZQ+3}")
        a(f"ds_read_b128 {vr(VXR,4)}, v{vVX} offset:8192")
        a(f"v_mfma_f32_16x16x16_bf16 {vr(ZK,4)}, {vr(TT,2)}, {vr(vID0,2)}, 0")
        vfill(2)
        a(f"v_cvt_pk_bf16_f32 v{TT+1}, v{ZK+2}, v{ZK+3}")
        a(f"v_cvt_pk_bf16_f32 v{TT+2}, v{ZK}, v{ZK+1}")
        a(f"v_and_or_b32 v{TT+3}, v{TT+1}, -2, s{sTAG0}")
        a(f"buffer_store_dwordx2 {vr(TT+2,2)}, v{vTW}, {sr(sWS,4)}, s{sTBW} offen")
        a(f"v_mov_b32 v{TT}, v{TT+2}")
        a(f"ds_write_b64 v{vTW}, {vr(TT,2)} offset:{L_T}")
        self.stamp("ts")
        vfill(2)
        a.wait_lg0()
        a("s_barrier")
        self.stamp(2)
        hq = [a(f"ds_read_b128 {vr(TLQ+4*k,4)}, v{vTQ} offset:{L_T + k*1024}") for k in range(2)]
        hkk = [a(f"ds_read_b128 {vr(TLK+4*k,4)}, v{vTK} offset:{L_T + k*1024}") for k in range(2)]
        def tissue():
            if "tmask" not in self.opts:
                return [a(f"buffer_load_dwordx4 {vr(TRQ,4)}, v{vTQ}, {sr(sWS,4)}, s{sTBR} offen sc1"),
                        a(f"buffer_load_dwordx4 {vr(TRK,4)}, v{vTK}, {sr(sWS,4)}, s{sTBR} offen sc1"),
                        a(f"buffer_load_dwordx4 {vr(TRQ+4,4)}, v{vTQ}, {sr(sWS,4)}, s{sTBR} offen offset:1024 sc1"),
                        a(f"buffer_load_dwordx4 {vr(TRK+4,4)}, v{vTK}, {sr(sWS,4)}, s{sTBR} offen offset:1024 sc1")]
            a(f"s_mov_b64 exec, {sr(sMLO,2)}")
            h0 = a(f"buffer_load_dwordx4 {vr(TRQ,4)}, v{vTQ}, {sr(sWS,4)}, s{sTBR} offen sc1")
            h2 = a(f"buffer_load_dwordx4 {vr(TRQ+4,4)}, v{vTQ}, {sr(sWS,4)}, s{sTBR} offen offset:1024 sc1")
            a(f"s_mov_b64 exec, {sr(sM40,2)}")
            h1 = a(f"buffer_load_dwordx4 {vr(TRK,4)}, v{vTK}, {sr(sWS,4)}, s{sTBR} offen sc1")
            h3 = a(f"buffer_load_dwordx4 {vr(TRK+4,4)}, v{vTK}, {sr(sWS,4)}, s{sTBR} offen offset:1024 sc1")
            a(f"s_mov_b64 exec, -1")
            return [h0, h2, h1, h3]
        vfill(2)
        if self.opt("t1", 0) == 0: ths = tissue()
        def smm(Q, K, kx, first):
            c = lambda d: "0" if first else vr(d, 4)
            a(f"v_mfma_f32_16x16x32_bf16 {vr(D3,4)}, {vr(kx,4)}, {vr(Q,4)}, {c(D3)}")
            a(f"v_mfma_f32_16x16x32_bf16 {vr(D3+4,4)}, {vr(kx+4,4)}, {vr(Q,4)}, {c(D3+4)}")
            a(f"v_mfma_f32_16x16x32_bf16 {vr(D3+8,4)}, {vr(K,4)}, {vr(Q,4)}, {c(D3+8)}")
        a.wait(hq, hkk)
        smm(TLQ, TLK, KXR, True)
        if self.opt("t1", 0) == 1: ths = tissue()
        if self.opt("so", 0) == 1: slow_ops()
        smm(TLQ + 4, TLK + 4, KXR + 8, False)
        a(f"v_permlane32_swap_b32 v{V}, v{V+2}")
        a(f"v_permlane32_swap_b32 v{V+1}, v{V+3}")
        a(f"v_pk_add_f32 {vr(V,2)}, {vr(V,2)}, {vr(V+2,2)}")
        a(f"v_cvt_pk_bf16_f32 v{VP}, v{V}, v{V+1}")
        a(f"ds_write_b32 v{vVW}, v{VP} offset:{L_V}")
        for c in range(5):
            a(f"v_mov_b64 {vr(ACC[c],2)}, 0")
            a(f"v_mov_b64 {vr(ACC[c]+2,2)}, 0")
        a(f"v_mov_b64 {vr(V,2)}, 0")
        a(f"v_mov_b64 {vr(V+2,2)}, 0")
        for r in range(4): a(f"v_mov_b32 v{vONE+r}, 0x3F803F80")
        a(f"v_mov_b64 {vr(ZQ,2)}, 0")
        a(f"v_mov_b64 {vr(ZQ+2,2)}, 0")
        a(f"v_mov_b64 {vr(ZK,2)}, 0")
        a(f"v_mov_b64 {vr(ZK+2,2)}, 0")
        a(f"s_add_u32 s{sKVR}, s{sKVR}, 12288")
        a(f"s_cmp_eq_u32 s{sKVR}, {L_KV + NKV*12288}")
        a(f"s_cselect_b32 s{sKVR}, {L_KV}, s{sKVR}")
        a(f"s_mov_b32 s{sSPIN}, 1")
        for n, r in enumerate(TREG):
            a.wait(ths[n // 2])
            self.ck(r, sTAG0, n == 0)
        a(f"v_and_b32 v{vCK}, 1, v{vCK}")
        a(f"v_cmp_ne_u32 vcc, 0, v{vCK}")
        a(f"s_cbranch_vccz L_tok")
        save = list(a.vm)
        self.poll("L_tpoll", tissue, TREG, sTAG0, thr=0)
        a.vm = save
        a.label("L_tok")
        if self.stamps: a(f"s_mov_b32 s{sT5}, s{sSPIN}")
        self.stamp(3)
        smm(TRQ, TRK, KXR + 16, False)
        smm(TRQ + 4, TRK + 4, KXR + 24, False)
        if self.opt("so", 0) == 0: slow_ops()
        a(f"s_cmp_eq_u32 s{sSTEP}, 63")
        a(f"s_cbranch_scc1 L_last")
        M, M2 = vT0, vT3
        S = [D3, D3+1, D3+2, D3+3, D3+8]
        for r in range(4):
            a(f"v_mov_b32_dpp v{D3+r}, v{D3+4+r} row_ror:8 row_mask:0xf bank_mask:0xc")
        a(f"v_max3_f32 v{M}, v{S[0]}, v{S[1]}, v{S[2]}")
        a(f"v_mov_b32_dpp v{D3+8}, v{D3+9} row_ror:8 row_mask:0xf bank_mask:0xc")
        a(f"v_max3_f32 v{M}, v{M}, v{S[3]}, v{S[4]}")
        a(f"v_max_f32_dpp v{M}, v{M}, v{M} row_ror:8 row_mask:0xf bank_mask:0xf")
        a(f"v_mov_b32 v{M2}, v{M}")
        a(f"v_permlane16_swap_b32 v{M}, v{M2}")
        a(f"v_max_f32 v{M}, v{M}, v{M2}")
        a(f"v_mov_b32 v{M2}, v{M}")
        a(f"v_permlane32_swap_b32 v{M}, v{M2}")
        a(f"v_max_f32 v{M}, v{M}, v{M2}")
        a(f"v_mul_f32 v{M}, s{sC}, v{M}")
        for s_ in S: a(f"v_fma_f32 v{s_}, v{s_}, s{sC}, -v{M}")
        for s_ in S: a(f"v_exp_f32 v{s_}, v{s_}")
        P = PP; PM = PP + 4
        Ls = vT0
        a(f"v_cvt_pk_bf16_f32 v{P}, v{S[0]}, v{S[1]}")
        a(f"v_cvt_pk_bf16_f32 v{P+1}, v{S[2]}, v{S[3]}")
        a(f"v_mov_b32_dpp v{vT2}, v{S[4]} row_ror:8 row_mask:0xf bank_mask:0xf")
        a(f"v_mov_b32_dpp v{P+2}, v{P} row_ror:8 row_mask:0xf bank_mask:0xf")
        a(f"v_mov_b32_dpp v{P+3}, v{P+1} row_ror:8 row_mask:0xf bank_mask:0xf")
        a(f"v_cvt_pk_bf16_f32 v{PM}, v{S[4]}, v{vT2}")
        a(f"s_nop 0")
        a(f"v_mfma_f32_16x16x32_bf16 {vr(D3,4)}, {vr(vONE,4)}, {vr(P,4)}, 0")
        a(f"v_mfma_f32_16x16x16_bf16 {vr(D3+8,4)}, {vr(vONE,2)}, {vr(PM,2)}, 0")
        a(f"v_mfma_f32_16x16x32_bf16 {vr(DO,4)}, {vr(VXR,4)}, {vr(P,4)}, 0")
        a(f"v_mfma_f32_16x16x16_bf16 {vr(D3+4,4)}, {vr(VP,2)}, {vr(PM,2)}, 0")
        self.stamp(4)
        a(f"v_add_f32 v{Ls}, v{D3}, v{D3+8}")
        a(f"v_rcp_f32 v{Ls}, v{Ls}")
        a(f"v_pk_add_f32 {vr(DO,2)}, {vr(DO,2)}, {vr(D3+4,2)}")
        a(f"v_pk_add_f32 {vr(DO+2,2)}, {vr(DO+2,2)}, {vr(D3+6,2)}")
        a(f"s_mov_b64 exec, {sr(sMLO,2)}")
        a(f"v_pk_mul_f32 {vr(DO,2)}, {vr(DO,2)}, {vr(Ls,2)} op_sel_hi:[1,0]")
        a(f"v_pk_mul_f32 {vr(DO+2,2)}, {vr(DO+2,2)}, {vr(Ls,2)} op_sel_hi:[1,0]")
        a(f"v_cvt_pk_bf16_f32 v{DO}, v{DO}, v{DO+1}")
        a(f"v_cvt_pk_bf16_f32 v{DO+1}, v{DO+2}, v{DO+3}")
        a(f"ds_write_b64 v{vOW}, {vr(DO,2)} offset:{L_O}")
        a(f"s_mov_b64 exec, -1")
        self.stamp("pb3")
        a.wait_lg0()
        a("s_barrier")
        self.stamp("b3")
        oh = [a(f"ds_read_b128 {vr(AO+4*j,4)}, v{vA} offset:{L_O + j*512}") for j in range(2)]
        def publish(c):
            A_ = ACC[c]
            a(f"v_cvt_pk_bf16_f32 v{A_}, v{A_}, v{A_+1}")
            a(f"v_cvt_pk_bf16_f32 v{A_+1}, v{A_+2}, v{A_+3}")
            a(f"v_and_or_b32 v{A_+1}, v{A_+1}, -2, s{sTAG0}")
            a(f"buffer_store_dwordx2 {vr(A_,2)}, v{vPS}, {sr(sWS,4)}, s{sPB0} offen offset:{c*512}")
        for c in range(5):
            for j in range(2):
                a.wait(oh[j])
                self.smf(("WO", c, j), ACC[c], AO + 4 * j)
            if c >= 1: publish(c - 1)
        publish(4)
        self.stamp(5)
        a(f"s_cmp_eq_u32 s{sHASJ}, 0")
        a(f"s_cbranch_scc1 L_red_skip")
        D = D3; DB = D3 + 4
        def rissue():
            return [a(f"buffer_load_dwordx2 {vr(RL+2*i,2)}, v{vRD}, {sr(sWS,4)}, s{sRD+i} offen sc1") for i in range(8)]
        a(f"s_cmp_eq_u32 s{sW}, 2")
        a(f"s_cbranch_scc1 L_rs_done")
        if self.opt("rs1", 2): a(f"s_sleep {self.opt('rs1', 2)}")
        a(f"s_cmp_eq_u32 s{sW}, 1")
        a(f"s_cbranch_scc1 L_rs_done")
        if self.opt("rs0", 2): a(f"s_sleep {self.opt('rs0', 2)}")
        a.label("L_rs_done")
        if self.opt("rs2", 0): a(f"s_sleep {self.opt('rs2', 0)}")
        a(f"s_mov_b32 s{sSPIN}, 0")
        self.stamp("r0")
        a.label("L_red")
        hs = rissue()
        self.stamp("r1")
        a(f"s_add_u32 s{sSPIN}, s{sSPIN}, 1")
        a(f"s_cmp_gt_u32 s{sSPIN}, {SPIN_MAX}")
        a(f"s_cbranch_scc1 L_fail")
        for i in range(4):
            a.wait(hs[2*i+1])
            if i == 0: self.stamp("r2")
            if i == 3: self.stamp("r3")
            self.ck(RL + 4*i + 1, sTAG0, i == 0)
            self.ck(RL + 4*i + 3, sTAG0, False)
            a(f"v_mfma_f32_16x16x32_bf16 {vr(D,4)}, {vr(RL+4*i,4)}, {vr(vSEL4,4)}, {vr(D,4) if i else 0}")
        a(f"v_and_b32 v{vCK}, 1, v{vCK}")
        a(f"v_cmp_ne_u32 vcc, 0, v{vCK}")
        a(f"s_cbranch_vccnz L_red")
        if self.stamps: a(f"s_mov_b32 s{sT4}, s{sSPIN}")
        a(f"v_cvt_pk_bf16_f32 v{D}, v{D}, v{D+1}")
        a(f"v_cvt_pk_bf16_f32 v{D+1}, v{D+2}, v{D+3}")
        a(f"ds_bpermute_b32 v{DB}, v{vBP}, v{D}")
        a(f"v_and_or_b32 v{D+1}, v{D+1}, -2, s{sTAG1}")
        a(f"ds_bpermute_b32 v{DB+1}, v{vBP}, v{D+1}")
        a(f"s_mov_b64 exec, 0xFFFF")
        a.wait_lg0()
        a(f"buffer_store_dwordx2 {vr(DB,2)}, v{vXA}, {sr(sWS,4)}, s{sJR} offen sc1")
        a(f"buffer_store_dwordx2 {vr(DB,2)}, v{vXA}, {sr(sWS,4)}, s{sJL} offen")
        a(f"s_mov_b64 exec, -1")
        a.label("L_red_skip")
        a(f"s_cmp_lg_u32 s{sW}, 3")
        a(f"s_cbranch_scc1 L_nex")
        ex_read()
        a.wait_lg0()
        a.label("L_nex")
        self.stamp(6)
        a("s_barrier")
        self.stamp("b0")
        GREGB = [GB + 2*i + 1 for i in range(5)]
        def gissue(R, sb):
            return lambda: [a(f"buffer_load_dwordx4 {vr(R,4)}, v{vG0}, {sr(sWS,4)}, s{sb} offen sc1"),
                    a(f"buffer_load_dwordx4 {vr(R+4,4)}, v{vG1}, {sr(sWS,4)}, s{sb} offen sc1"),
                    a(f"buffer_load_dwordx2 {vr(R+8,2)}, v{vG2}, {sr(sWS,4)}, s{sb} offen sc1")]
        self.poison(GREG + GREGB, sTAG1)
        self.kv_check()
        if self.opt("ad", 4): a(f"s_sleep {self.opt('ad', 4)}")
        gissue(GL, sGL)()
        if self.opt("bd", 3): a(f"s_sleep {self.opt('bd', 3)}")
        def both():
            gissue(GB, sGR)()
        gissue(GB, sGR)()
        a(f"s_waitcnt vmcnt(3)")
        for n, r in enumerate(GREG): self.ck(r, sTAG1, n == 0)
        a(f"v_and_b32 v{vCK}, 1, v{vCK}")
        a(f"v_cmp_ne_u32 vcc, 0, v{vCK}")
        a(f"s_mov_b32 s{sSPIN}, 0")
        a(f"s_cbranch_vccz L_ga_ok")
        self.poll("L_ga", gissue(GL, sGL), GREG, sTAG1, thr=0)
        a.label("L_ga_ok")
        if self.stamps: a(f"s_mov_b32 s{sT3}, s{sSPIN}")
        self.stamp("ga")
        x2 = self.opt("x2", 1)
        if x2: gissue(GB, sGR)()
        for i in range(10):
            a(f"v_lshlrev_b32 v{AU+2*i}, 16, v{GL+i}")
            a(f"v_and_b32 v{AU+2*i+1}, 0xFFFF0000, v{GL+i}")
        a(f"s_waitcnt vmcnt({3 if x2 else 0})")
        for n, r in enumerate(GREGB): self.ck(r, sTAG1, n == 0)
        a(f"v_and_b32 v{vCK}, 1, v{vCK}")
        a(f"v_cmp_ne_u32 vcc, 0, v{vCK}")
        a(f"s_mov_b32 s{sSPIN}, 0")
        a(f"s_cbranch_vccz L_gb_ok")
        self.poll("L_gb", gissue(GB, sGR), GREGB, sTAG1, thr=self.opt("gthr", 3))
        a.label("L_gb_ok")
        self.stamp("gb")
        self.stamp(7)
        a(f"s_add_u32 s{sSTEP}, s{sSTEP}, 1")
        a(f"s_and_b32 s{sTAG0}, s{sSTEP}, 1")
        a(f"s_bfe_u32 s{sTAG1}, s{sSTEP}, 0x10001")
        for r in (sJL, sGL): a(f"s_add_u32 s{r}, s{r}, s{sSLOT}")
        for r in (sJR, sGR): a(f"s_add_u32 s{r}, s{r}, 32768")
        a(f"s_sub_u32 s{sSLOT}, 0, s{sSLOT}")
        if self.stamps:
            a.wait_lg0()
            for i in range(8):
                a(f"v_mov_b32 v{TLQ+i}, s{sTM+2*i}")
            for i, r in enumerate([sT5, sT4, sT3, sSPIN]):
                a(f"v_mov_b32 v{TLQ+8+i}, s{r}")
            a(f"v_mov_b32 v{vT1}, 0")
            a(f"s_mov_b64 exec, 1")
            for i in range(3):
                a(f"buffer_store_dwordx4 {vr(TLQ+4*i,4)}, v{vT1}, {sr(sWS,4)}, s{sSTAMP} offen offset:{16*i}")
            a(f"s_mov_b64 exec, -1")
            a(f"s_add_u32 s{sSTAMP}, s{sSTAMP}, 128")

def team_code(a, stamps, opts, exit_label="L_end"):
    t = Team(a, stamps, opts)
    t.setup()
    if "lateinit" not in opts: t.init_buffers()
    if "full" not in opts:
        a(f"s_or_b32 s{sTMP}, s{sX}, s{sR}")
        a(f"s_or_b32 s{sTMP}, s{sTMP}, s{sW}")
        a(f"s_cmp_lg_u32 s{sTMP}, 0")
        a(f"s_cbranch_scc1 L_noprobe")
        probe(a, vT0, opts)
        a.label("L_noprobe")
    if stamps: a(f"s_memtime {sr(sTM+16,2)}")
    t.load_weights()
    t.wait_team(52)
    if stamps:
        a(f"s_memtime {sr(sTM,2)}")
        a.wait_lg0()
        a(f"s_sub_u32 s{sTMP}, s{sTM}, s{sTM+16}")
        a(f"v_mov_b32 v{vT0}, s{sTMP}")
        a(f"v_mov_b32 v{vT1}, 0")
        a(f"buffer_store_dword v{vT0}, v{vT1}, {sr(sWS,4)}, s{sSTAMP} offen offset:64")
        a.wait_vm0()
    if "rt" in opts:
        import gen_full
        gen_full.mark(a, 5, True, 40, 41)
    t.prologue()
    if "rt" in opts: gen_full.mark(a, 1, True, 60, 61)
    a.label("L_loop")
    t.step(exit_label)
    a("s_branch L_loop")
    a.label("L_last")
    t.exports()
    a(f"s_branch {exit_label}")

def election(a):
    a("s_cmp_ge_u32 s2, 256")
    a("s_cbranch_scc1 L_end")
    a(f"s_load_dwordx2 {sr(sDBG,2)}, s[0:1], 64")
    a(f"s_load_dwordx2 {sr(sWS,2)}, s[0:1], 72")
    a(f"s_getreg_b32 s{sXCC}, hwreg(HW_REG_XCC_ID)")
    a(f"s_and_b32 s{sXCC}, s{sXCC}, 7")
    a(f"v_lshrrev_b32 v1, 6, v0")
    a(f"v_readfirstlane_b32 s{sW}, v1")
    a("s_waitcnt lgkmcnt(0)")
    a(f"s_and_b32 s{sWS+1}, s{sWS+1}, 0xffff")
    a(f"s_mov_b32 s{sWS+2}, {WS_BYTES}")
    a(f"s_mov_b32 s{sWS+3}, 0x00020000")
    a(f"v_mov_b32 v5, 0")
    a(f"s_cmp_lg_u32 s{sW}, 0")
    a("s_cbranch_scc1 L_el_done")
    a("s_mov_b64 exec, 1")
    a(f"s_lshl_b32 s{sTMP}, s{sXCC}, 2")
    a(f"v_mov_b32 v1, s{sTMP}")
    a(f"v_mov_b32 v2, 1")
    a(f"global_atomic_add v3, v1, v2, {sr(sDBG,2)} sc0 sc1")
    a.wait_vm0()
    a(f"v_readfirstlane_b32 s{sR}, v3")
    a(f"s_lshr_b32 s{sT2}, s{sXCC}, 1")
    a(f"s_cmp_lg_u32 s{sR}, 31")
    a("s_cbranch_scc1 L_el_poll0")
    a(f"s_lshl_b32 s{sTMP}, s{sT2}, 2")
    a(f"s_add_u32 s{sTMP}, s{sTMP}, 36")
    a(f"v_mov_b32 v1, s{sTMP}")
    a(f"global_atomic_add v3, v1, v2, {sr(sDBG,2)} sc0 sc1")
    a.wait_vm0()
    a(f"v_readfirstlane_b32 s{sTMP}, v3")
    a(f"s_cmp_lg_u32 s{sTMP}, 1")
    a("s_cbranch_scc1 L_el_poll0")
    a(f"s_add_u32 s{sTMP}, s{sT2}, 1")
    a(f"v_mov_b32 v1, 32")
    a(f"v_mov_b32 v2, s{sTMP}")
    a(f"v_mov_b32 v3, 0")
    a(f"global_atomic_cmpswap v1, v[2:3], {sr(sDBG,2)} sc1")
    a.label("L_el_poll0")
    a(f"v_mov_b32 v1, 32")
    a(f"s_mov_b32 s{sSPIN}, 0")
    a.label("L_el_poll")
    a(f"global_load_dword v2, v1, {sr(sDBG,2)} sc1")
    a(f"s_add_u32 s{sSPIN}, s{sSPIN}, 1")
    a(f"s_mov_b32 s{sTMP}, 0")
    a(f"s_cmp_gt_u32 s{sSPIN}, {SPIN_MAX}")
    a("s_cbranch_scc1 L_el_got")
    a.wait_vm0()
    a(f"v_readfirstlane_b32 s{sTMP}, v2")
    a(f"s_cmp_eq_u32 s{sTMP}, 0")
    a("s_cbranch_scc1 L_el_poll")
    a.label("L_el_got")
    a.wait_vm0()
    a(f"s_add_u32 s{sT2}, s{sT2}, 1")
    a(f"s_cmp_eq_u32 s{sTMP}, s{sT2}")
    a(f"s_cselect_b32 s{sR}, s{sR}, 255")
    a(f"s_min_u32 s{sR}, s{sR}, 255")
    a(f"v_mov_b32 v2, s{sR}")
    a(f"ds_write_b32 v5, v2")
    a.wait_lg0()
    a("s_mov_b64 exec, -1")
    a.label("L_el_done")
    a("s_barrier")
    a(f"ds_read_b32 v2, v5")
    a.wait_lg0()
    a(f"v_readfirstlane_b32 s{sR}, v2")
    a("s_barrier")
    a(f"s_and_b32 s{sX}, s{sXCC}, 1")
    a(f"s_cmp_ge_u32 s{sR}, 32")
    a("s_cbranch_scc1 L_end")

def probe(a, v0, opts=()):
    a(f"s_mov_b64 exec, 1")
    a(f"s_mov_b32 s{sT2}, -1")
    a(f"s_mov_b32 s{sT3}, -1")
    a(f"s_lshl_b32 s{sT5}, s{sXCC}, 9")
    for rep in range(5):
        for hf in range(2):
            a(f"v_mov_b32 v{v0}, {PROBE + hf*8192 + (rep//2)*128 + (rep%2)*4096:#x}")
            a(f"buffer_store_dword v{v0}, v{v0}, {sr(sWS,4)}, s{sT5} offen sc1")
            a.wait_vm0()
            a(f"s_memtime {sr(sTM,2)}")
            a(f"s_waitcnt lgkmcnt(0)")
            a(f"buffer_load_dword v{v0+1}, v{v0}, {sr(sWS,4)}, s{sT5} offen sc1")
            a.wait_vm0()
            a(f"s_memtime {sr(sTM+2,2)}")
            a(f"s_waitcnt lgkmcnt(0)")
            a(f"s_sub_u32 s{sTMP}, s{sTM+2}, s{sTM}")
            a(f"s_min_u32 s{sT2+hf}, s{sT2+hf}, s{sTMP}")
    a(f"s_cmp_lt_u32 s{sT3}, s{sT2}")
    a(f"s_cselect_b32 s{sTMP}, 0x2001, 1")
    if "far" in opts: a(f"s_xor_b32 s{sTMP}, s{sTMP}, 0x2000")
    a(f"v_mov_b32 v{v0}, 56")
    a(f"v_mov_b32 v{v0+2}, s{sTMP}")
    a(f"v_mov_b32 v{v0+3}, 0")
    a(f"global_atomic_cmpswap v{v0}, {vr(v0+2,2)}, {sr(sDBG,2)} sc1")
    a.wait_vm0()
    a(f"s_mov_b64 exec, -1")
```

```python
import sys
from asmlib import *
import team9 as T
from team9 import *
import proj as P
import engine as E

NAME = "standalone__memory_aug_recurrent_mem_tr__prompt_kernel"

RT = 0x5800000
def mark(a, idx, on, v0=250, v1=251):
    if not on: return
    a("s_memrealtime s[98:99]")
    a("s_waitcnt lgkmcnt(0)")
    a(f"s_lshl_b32 s100, s2, 7")
    a(f"s_add_u32 s100, s100, {RT:#x}")
    a(f"v_mov_b32 v{v0}, s98")
    a(f"v_mov_b32 v{v1}, 0")
    if isinstance(idx, str):
        a(f"s_lshl_b32 s101, {idx}, 2")
        a(f"s_add_u32 s100, s100, s101")
        a(f"buffer_store_dword v{v0}, v{v1}, {sr(sWS,4)}, s100 offen offset:32")
    else:
        a(f"buffer_store_dword v{v0}, v{v1}, {sr(sWS,4)}, s100 offen offset:{idx*4}")
    a("s_waitcnt vmcnt(0)")

def gen(stamps=False, opts=()):
    rt = "rt" in opts
    a = Asm()
    opts = list(opts) + ["full"]
    el = Asm(); election(el)
    for it in el.lines:
        t = it if isinstance(it, str) else it.text
        if t.startswith(f"s_cselect_b32 s{sR}, s{sR}, 255"):
            a(f"s_cselect_b32 s{sT3}, 0, 0x100")
            a(f"s_min_u32 s{sR}, s{sR}, 255")
            a(f"s_or_b32 s{sR}, s{sR}, s{sT3}")
            a(f"s_lshl_b32 s{sTMP}, s{sTMP}, 12")
            a(f"s_or_b32 s{sR}, s{sR}, s{sTMP}")
            continue
        if t.startswith(f"s_min_u32 s{sR}, s{sR}, 255"): continue
        if t.startswith(f"s_cmp_ge_u32 s{sR}, 32"): break
        if isinstance(it, str): a.raw(it)
        else: a(t)
    a.vm = []; a.lg = []
    mark(a, 0, rt)
    a(f"s_lshr_b32 s{sT4}, s{sR}, 12")
    a(f"s_and_b32 s{sR}, s{sR}, 0x1FF")
    a(f"s_cmp_eq_u32 s{sT4}, 0")
    a(f"s_cbranch_scc1 L_fail")
    a(f"s_cmp_ge_u32 s{sR}, 32")
    a(f"s_cbranch_scc1 L_helper")
    team_code(a, stamps, opts, exit_label="L_team_exit")
    a.label("L_team_exit")
    a.wait_all()
    mark(a, 2, rt, 40, 41)
    a("s_branch L_end")
    a.label("L_helper")
    hXI, hRK, hNH, hH0, hMUL, hQ, hBLK = 70, 71, 72, 73, 74, 75, 76
    a(f"s_and_b32 s{hRK}, s{sR}, 0xFF")
    a(f"s_bitcmp1_b32 s{sR}, 8")
    a(f"s_cbranch_scc0 L_end")
    a(f"s_lshl_b32 s{sTMP}, s{sT4}, 1")
    a(f"s_cmp_ge_u32 s{sXCC}, s{sTMP}")
    a(f"s_cselect_b32 s{sTMP}, 2, 0")
    a(f"s_sub_u32 s{hXI}, s{sXCC}, s{sTMP}")
    a(f"s_cmp_lt_u32 s{hXI}, 2")
    a(f"s_cselect_b32 s{hNH}, 6, 5")
    a(f"s_movk_i32 s{hMUL}, 205")
    a(f"s_cselect_b32 s{hMUL}, 171, s{hMUL}")
    a(f"s_cselect_b32 s{sTMP}, 0, 2")
    a(f"s_mul_i32 s{hH0}, s{hXI}, s{hNH}")
    a(f"s_add_u32 s{hH0}, s{hH0}, s{sTMP}")
    a(f"s_cmp_lg_u32 s{sW}, 0")
    a(f"s_cbranch_scc1 L_h0")
    a(f"s_cmp_ge_u32 s{hRK}, 32")
    a(f"s_cbranch_scc1 L_h0")
    a(f"s_lshl_b32 s{sTMP}, s{hXI}, 7")
    a(f"s_lshl_b32 s{hQ}, s{hRK}, 2")
    a(f"s_add_u32 s{sTMP}, s{sTMP}, s{hQ}")
    a(f"s_add_u32 s{sTMP}, s{sTMP}, {EF:#x}")
    a(f"v_mov_b32 v1, 0")
    a(f"v_mov_b32 v3, 1")
    a(f"s_mov_b64 exec, 1")
    a(f"buffer_store_dword v1, v1, {sr(sWS,4)}, s{sTMP} offen")
    a(f"s_lshl_b32 s{sTMP}, s{hXI}, 2")
    a(f"s_add_u32 s{sTMP}, s{sTMP}, {E.D_ENG}")
    a(f"v_mov_b32 v2, s{sTMP}")
    a.wait_vm0()
    a(f"global_atomic_add v2, v3, {sr(sDBG,2)} sc1")
    a(f"s_mov_b64 exec, -1")
    a.vm = []
    a(f"s_cmp_lg_u32 s{hRK}, 31")
    a(f"s_cbranch_scc1 L_h0")
    a(f"s_sub_u32 s{sTMP}, s{sT4}, 1")
    a(f"s_lshr_b32 s{sTMP}, s{sTMP}, 1")
    a(f"s_lshr_b32 s{hQ}, s{sXCC}, 2")
    a(f"s_cmp_lg_u32 s{sTMP}, s{hQ}")
    a(f"s_cbranch_scc1 L_h0")
    probe(a, 4, opts)
    a.label("L_h0")
    a("s_barrier")
    if "nohelp" in opts: a("s_branch L_end")
    P.proj_setup(a)
    if "warm" in opts:
        P.srd(a, 44, 40, 5242880)
        a(f"s_lshl_b32 s{hQ}, s{hXI}, 5")
        a(f"s_add_u32 s{hQ}, s{hQ}, s{hRK}")
        a(f"s_lshl_b32 s{hQ}, s{hQ}, 2")
        a(f"s_add_u32 s{hQ}, s{hQ}, s{sW}")
        a(f"s_lshl_b32 s{hQ}, s{hQ}, 13")
        a(f"v_lshlrev_b32 v140, 3, v0")
        for sd in (P.pQ, P.pK, P.pV, 44):
            a(f"buffer_load_dword v141, v140, {sr(sd,4)}, s{hQ} offen")
        a.vm = []
    a(f"s_mov_b32 s{hQ}, s{hRK}")
    a.label("L_task")
    a(f"s_mul_i32 s{hBLK}, s{hQ}, s{hMUL}")
    a(f"s_lshr_b32 s{hBLK}, s{hBLK}, 10")
    a(f"s_cmp_ge_u32 s{hBLK}, 24")
    a(f"s_cbranch_scc1 L_engine")
    a(f"s_mul_i32 s{sTMP}, s{hBLK}, s{hNH}")
    a(f"s_sub_u32 s{P.pH}, s{hQ}, s{sTMP}")
    a(f"s_add_u32 s{P.pH}, s{P.pH}, s{hH0}")
    a(f"s_cmp_lt_u32 s{hBLK}, 6")
    a(f"s_cbranch_scc1 L_t1")
    a(f"s_lshl_b32 s{P.pTB}, s{hBLK}, 1")
    a(f"s_sub_u32 s{P.pTB}, s{P.pTB}, 6")
    a(f"s_cmp_lt_u32 s{hBLK}, 12")
    a(f"s_cbranch_scc1 L_t2")
    a(f"s_lshl_b32 s{P.pTB}, s{hBLK}, 2")
    a(f"s_sub_u32 s{P.pTB}, s{P.pTB}, 30")
    a(f"s_cmp_eq_u32 s{hBLK}, 23")
    a(f"s_cbranch_scc1 L_t2")
    P.proj_task(a, "4", nseg=4)
    a("s_branch L_tdone")
    a.label("L_t2")
    P.proj_task(a, "2", nseg=2)
    a("s_branch L_tdone")
    a.label("L_t1")
    a(f"s_mov_b32 s{P.pTB}, s{hBLK}")
    P.proj_task(a, "1", nseg=1)
    a.label("L_tdone")
    a(f"s_cmp_lg_u32 s{sW}, 0")
    a(f"s_cbranch_scc1 L_tnosig")
    a(f"s_lshl_b32 s{sTMP}, s{hBLK}, 2")
    a(f"s_add_u32 s{sTMP}, s{sTMP}, {E.D_BLK}")
    a(f"v_mov_b32 v{P.qT0}, s{sTMP}")
    a(f"v_mov_b32 v{P.qT1}, 1")
    a(f"s_mov_b64 exec, 1")
    a(f"global_atomic_add v{P.qT0}, v{P.qT1}, {sr(sDBG,2)} sc1")
    a(f"s_mov_b64 exec, -1")
    a.vm = []
    a.label("L_tnosig")
    if rt:
        a(f"s_lshr_b32 s97, s{hQ}, 5")
        a(f"s_add_u32 s97, s97, 16")
        mark(a, "s97", rt)
    a(f"s_add_u32 s{hQ}, s{hQ}, 32")
    a("s_branch L_task")
    a.label("L_engine")
    mark(a, 3, rt)
    a(f"s_cmp_ge_u32 s{hRK}, 32")
    a(f"s_cbranch_scc1 L_end")
    if "noengine" in opts: a("s_branch L_end")
    a(f"s_mov_b32 s{E.eE}, s{hXI}")
    a(f"s_mov_b32 s{E.eH}, s{hRK}")
    E.engine_setup(a)
    mark(a, 4, rt, 8, 9)
    E.engine_loop(a, 6, mark=(lambda: mark(a, f"s{E.eIT}", rt, 8, 9)), opts=opts)
    a.label("L_fail")
    a("s_mov_b64 exec, 1")
    a(f"v_mov_b32 v1, 60")
    a(f"v_mov_b32 v2, 1000")
    a(f"global_store_dword v1, v2, {sr(sDBG,2)}")
    a.label("L_end")
    a("s_waitcnt vmcnt(0) lgkmcnt(0)")
    a("s_endpgm")
    body = a.finish(timed="untimed" not in opts)
    print("nop states", a.nnop, "lines", body.count("\n"))
    ref = open("standalone__memory_aug_recurrent_mem_tr__prompt.s.ref").read()
    head = ref[:ref.index("; @launch")]
    head += f"; @launch grid=(256,1,1) block=(256,1,1) lds={LDS_BYTES}\n"
    head += f""".amdgcn_target "amdgcn-amd-amdhsa--gfx950"
.text
.globl {NAME}
.p2align 8
.type {NAME},@function
{NAME}:
"""
    foot = f""".section .rodata,"a"
.p2align 6
.amdhsa_kernel {NAME}
  .amdhsa_next_free_vgpr 512
  .amdhsa_next_free_sgpr 102
  .amdhsa_accum_offset 256
  .amdhsa_group_segment_fixed_size 0
  .amdhsa_kernarg_size 80
  .amdhsa_user_sgpr_count 2
  .amdhsa_user_sgpr_kernarg_segment_ptr 1
  .amdhsa_system_sgpr_workgroup_id_x 1
.end_amdhsa_kernel
"""
    return head + body + foot

if __name__ == "__main__":
    out = sys.argv[1] if len(sys.argv) > 1 else "standalone__memory_aug_recurrent_mem_tr__prompt.s"
    opts = sys.argv[2].split(",") if len(sys.argv) > 2 else ["rs2=4", "rs1=0", "rs0=0", "t1=1", "ad=3", "bd=2", "x2=0"]
    open(out, "w").write(gen("stamps" in opts, opts))
```

```python
from asmlib import *
import struct

KXI   = 0x0000000
VXI   = 0x1000000
QXI   = 0x2000000
KMI   = 0x3000000
VMI   = 0x3400000
PB    = 0x4000000
PST = 10240 + 128
PBX = 0x80000
IMGL  = 0x41A0000
IMGR  = 0x4400000
TB    = 0x4120000
PROBE = 0x4160000
KF = 0x4170000
EF = 0x4180000
SCR = 0x4190000
STAMP = 0x5000000
WS_BYTES = 268435456

L_IA = 0
L_IB = 10240
L_T  = 20480
L_O  = 22528
L_V  = 23552
L_KV = 24576
NKV = 4
KVD = 2
LDS_BYTES = 163840

vL16, vA, vGW, vAV, vRD, vPB, vPS, vIDX = 0, 1, 2, 3, 4, 5, 6, 7
vID0 = 8; vGG = 10; vSA = 11
vXA = 188
vBLK = 190
vBA = 191
vKMW = 189
vTW, vTQ, vTK, vOW = 12, 13, 14, 15
vG1, vG2 = 16, 17
vKL, vKR, vVX = 19, 20, 21
vL4 = 22
vCK = 23
vT0, vT1, vT2, vT3 = 24, 25, 26, 27
ZQ, ZK, V = 28, 32, 36
GL = 40
AR = 52
KXR = 84
TLQ, TLK, TRQ, TRK = 116, 124, 132, 140
AU = 84
GB = 104
VXR = 148
D3 = 152
TT = 164
DO = 168
PP = 172
VP = 178
vONE = 116
vAG = 180
vBP = 183
vSEL4 = 184
RESV0 = 192
ACC = [AR, AR + 4, AR + 8, AR + 12, AR + 16]
AO = AR + 20
RL = TLQ
vVW = 50
EX = 168
vG0 = 2
vS10, vS01 = 3, 18

sWS = 4; sRA = 8; sDBG = 16
sXCC, sH, sW, sSTEP, sSPIN = 18, 19, 20, 21, 22
sTMP = 23
sX, sR, sU = 24, 25, 26
sKX, sVX, sKM, sVM = 28, 29, 30, 31
sPB0 = 32
sHASJ = 33
sRD = 34
sJL, sJR = 42, 43
sGL, sGR = 44, 45
sTBW, sTBR = 46, 47
sMLO = 48; sMHI = 50; sMPB = 52
sTAG0, sTAG1 = 54, 55
sONE = 56
sC = 58
sSLOT = 59
sKVW, sKVR = 60, 61
sT2, sT3, sT4, sT5 = 62, 63, 64, 65
sSTAMP = 66
sM40 = 68
sGL1, sGL2 = 70, 71
sPT = 72
sKSEG = 76
sRDY = 77
sBL = 78
sKF = 79
sKE = 80
sIB = 81
sKVM = 67
sTM = 84
SPIN_MAX = 200000

def fbits(x):
    return struct.unpack("<I", struct.pack("<f", x))[0]

OPS = [(m, i) for m in "qkv" for i in range(10)] + [("WO", c, j) for c in range(5) for j in range(2)]
PL = {}
for n, op in enumerate(OPS):
    PL[op] = ("a", n * 8) if n < 32 else ("v", RESV0 + (n - 32) * 8)

def breg(op):
    p = PL[op]
    return ar(p[1], 8) if p[0] == "a" else vr(p[1], 8)

class Team:
    def __init__(self, a, stamps=False, opts=()):
        self.a = a
        self.stamps = stamps
        self.opts = set(opts)
    def opt(self, name, default):
        o = [x for x in self.opts if x.startswith(name + "=")]
        return int(o[0][len(name) + 1:]) if o else default
    def smf(self, op, D, A):
        self.a(f"v_smfmac_f32_16x16x64_bf16 {vr(D,4)}, {vr(A,4)}, {breg(op)}, v{vIDX}")
    def stamp(self, i):
        sel = [o for o in self.opts if o.startswith("st=")]
        names = sel[0][3:].split("/") if sel else ["0", "1", "2", "3", "4", "5", "6", "7"]
        if str(i) not in names or not self.stamps: return
        self.a(f"s_memtime {sr(sTM + 2*names.index(str(i)), 2)}")
    def srd(self, dst, karg_off, nbytes):
        a = self.a
        a(f"s_load_dwordx2 {sr(dst,2)}, s[0:1], {karg_off}")
        a(f"s_waitcnt lgkmcnt(0)")
        a(f"s_and_b32 s{dst+1}, s{dst+1}, 0xffff")
        a(f"s_mov_b32 s{dst+2}, {nbytes}")
        a(f"s_mov_b32 s{dst+3}, 0x00020000")

    def setup(self):
        a = self.a
        L, N, Gg, Tt, TH = 100, 101, 102, 103, 104
        a(f"v_and_b32 v{L}, 63, v0")
        a(f"v_and_b32 v{N}, 15, v{L}")
        a(f"v_lshrrev_b32 v{Gg}, 4, v{L}")
        a(f"v_and_b32 v{Tt}, 7, v{L}")
        a(f"v_bfe_u32 v{TH}, v{L}, 3, 1")
        a(f"v_lshlrev_b32 v{vL16}, 4, v{L}")
        a(f"v_lshlrev_b32 v{vL4}, 2, v{L}")
        a(f"v_lshlrev_b32 v{vA}, 7, v{Gg}")
        a(f"v_lshl_add_u32 v{vA}, v{Tt}, 4, v{vA}")
        for b in range(1, 4):
            a(f"s_add_u32 s{sTMP}, s{sW}, {b}")
            a(f"s_and_b32 s{sTMP}, s{sTMP}, 3")
            a(f"s_lshl_b32 s{sTMP}, s{sTMP}, 10")
            a(f"v_add_u32 v{vAG+b-1}, s{sTMP}, v{vL16}")
        a(f"v_mov_b32 v{vS10}, 0x3F80")
        a(f"v_mov_b32 v{vS01}, 0x3F800000")
        a(f"v_lshlrev_b32 v{vBP}, 5, v{TH}")
        a(f"v_and_b32 v107, 1, v{L}")
        a(f"v_lshl_add_u32 v{vBP}, v107, 4, v{vBP}")
        a(f"v_bfe_u32 v107, v{L}, 1, 2")
        a(f"v_add_u32 v{vBP}, v{vBP}, v107")
        a(f"v_lshlrev_b32 v{vBP}, 2, v{vBP}")
        a(f"s_movk_i32 s{sTMP}, {PST}")
        a(f"v_mul_lo_u32 v{vRD}, v{Gg}, s{sTMP}")
        a(f"v_lshl_add_u32 v{vRD}, v{N}, 3, v{vRD}")
        G1, G0 = 105, 106
        a(f"v_lshrrev_b32 v{G1}, 1, v{Gg}")
        a(f"v_and_b32 v{G0}, 1, v{Gg}")
        a(f"v_and_b32 v107, 3, v{L}")
        a(f"v_lshlrev_b32 v{vPB}, 4, v107")
        a(f"v_lshlrev_b32 v{vXA}, 3, v{L}")
        a(f"v_lshl_add_u32 v{vPB}, v{G1}, 7, v{vPB}")
        a(f"v_lshl_add_u32 v{vPB}, v{G0}, 3, v{vPB}")
        a(f"s_lshl_b32 s{sTMP}, s{sW}, 10")
        a(f"v_add_u32 v{vGG}, s{sTMP}, v{vL16}")
        a(f"v_lshrrev_b32 v{vSA}, 1, v{vGG}")
        a(f"v_lshlrev_b32 v{vPS}, 8, v{G0}")
        a(f"v_lshl_add_u32 v{vPS}, v{TH}, 7, v{vPS}")
        a(f"v_lshl_add_u32 v{vPS}, v{Tt}, 4, v{vPS}")
        a(f"v_lshl_add_u32 v{vPS}, v{G1}, 3, v{vPS}")
        a(f"v_mov_b32 v107, 0x8888")
        a(f"v_mov_b32 v108, 0xDDDD")
        a(f"v_cmp_eq_u32 vcc, 0, v{TH}")
        a(f"v_cndmask_b32 v{vIDX}, v108, v107, vcc")
        a(f"v_lshlrev_b32 v107, 2, v{Gg}")
        a(f"v_sub_u32 v107, v{N}, v107")
        a(f"v_mov_b32 v108, 0x3F80")
        a(f"v_mov_b32 v109, 0x3F800000")
        a(f"v_mov_b32 v{vID0}, 0")
        a(f"v_mov_b32 v{vID0+1}, 0")
        for jj in range(4):
            a(f"v_cmp_eq_u32 vcc, {jj}, v107")
            a(f"v_cndmask_b32 v{vID0 + jj//2}, v{vID0 + jj//2}, v{108 + jj%2}, vcc")
        a(f"s_mov_b32 s{sONE}, 0x3F80"); a(f"s_mov_b32 s{sONE+1}, 0")
        a(f"v_lshlrev_b64 {vr(vSEL4,2)}, v{vL16}, {sr(sONE,2)}")
        a(f"v_lshlrev_b64 {vr(vSEL4+2,2)}, v{vL16}, {sr(sONE,2)}")
        a(f"v_lshlrev_b32 v{vTW}, 4, v{N}")
        a(f"v_lshl_add_u32 v{vTW}, v{G1}, 8, v{vTW}")
        a(f"v_lshl_add_u32 v{vTW}, v{G0}, 3, v{vTW}")
        a(f"s_lshl_b32 s{sTMP}, s{sW}, 9")
        a(f"v_add_u32 v{vTW}, s{sTMP}, v{vTW}")
        a(f"v_lshrrev_b32 v107, 3, v{L}")
        a(f"v_lshlrev_b32 v{vKMW}, 8, v107")
        a(f"v_lshl_add_u32 v{vKMW}, v{Tt}, 4, v{vKMW}")
        a(f"v_lshlrev_b32 v107, 8, v{Gg}")
        a(f"v_lshl_add_u32 v{vTQ}, v{Tt}, 4, v107")
        a(f"v_bfe_u32 v108, v{N}, 2, 1")
        a(f"v_lshlrev_b32 v108, 2, v108")
        a(f"v_lshl_add_u32 v108, v{TH}, 1, v108")
        a(f"v_and_b32 v109, 1, v{N}")
        a(f"v_add3_u32 v108, v108, v109, 8")
        a(f"v_lshl_add_u32 v{vTK}, v108, 4, v107")
        a(f"v_lshlrev_b32 v{vOW}, 7, v{G1}")
        a(f"v_lshl_add_u32 v{vOW}, v{Tt}, 4, v{vOW}")
        a(f"v_lshl_add_u32 v{vOW}, v{G0}, 3, v{vOW}")
        a(f"s_lshl_b32 s{sTMP}, s{sW}, 8")
        a(f"v_add_u32 v{vOW}, s{sTMP}, v{vOW}")
        a(f"v_mov_b32 v{VP+1}, 0")
        a(f"v_mov_b32 v{PP+5}, 0")
        a(f"s_mov_b32 s{sMLO}, 0x00FF00FF"); a(f"s_mov_b32 s{sMLO+1}, 0x00FF00FF")
        a(f"s_mov_b32 s{sMHI}, 0xFF00FF00"); a(f"s_mov_b32 s{sMHI+1}, 0xFF00FF00")
        a(f"s_mov_b32 s{sMPB}, 0x000F000F"); a(f"s_mov_b32 s{sMPB+1}, 0x000F000F")
        a(f"s_mov_b32 s{sM40}, 0x33333333"); a(f"s_mov_b32 s{sM40+1}, 0x33333333")
        a(f"s_mov_b32 s{sC}, {fbits(128 ** -0.5 * 1.4426950408889634):#x}")
        a(f"s_and_b32 s{sU}, s{sR}, 1")
        a(f"s_lshr_b32 s{sH}, s{sR}, 1")
        a(f"s_lshl_b32 s{sTMP}, s{sX}, 4")
        a(f"s_add_u32 s{sH}, s{sH}, s{sTMP}")
        a(f"s_lshl_b32 s{sKX}, s{sH}, 13")
        a(f"s_lshl_b32 s{sTMP}, s{sU}, 12")
        a(f"s_add_u32 s{sTMP}, s{sTMP}, {VXI:#x}")
        a(f"s_lshl_b32 s{sT2}, s{sW}, 12")
        a(f"s_cmp_eq_u32 s{sW}, 2")
        a(f"s_cselect_b32 s{sTMP}, s{sTMP}, s{sT2}")
        a(f"s_add_u32 s{sKX}, s{sKX}, s{sTMP}")
        a(f"s_lshl_b32 s{sKM}, s{sH}, 11")
        a(f"s_lshl_b32 s{sTMP}, s{sU}, 10")
        a(f"s_add_u32 s{sKM}, s{sKM}, s{sTMP}")
        a(f"s_add_u32 s{sVM}, s{sKM}, {VMI:#x}")
        a(f"s_add_u32 s{sKM}, s{sKM}, {KMI:#x}")
        a(f"s_mul_i32 s{sPB0}, s{sR}, {PST}")
        a(f"s_mul_i32 s{sTMP}, s{sW}, 2560")
        a(f"s_add_u32 s{sPB0}, s{sPB0}, s{sTMP}")
        a(f"s_mul_i32 s{sT5}, s{sX}, {PBX}")
        a(f"s_add_u32 s{sT5}, s{sT5}, {PB:#x}")
        a(f"s_add_u32 s{sPB0}, s{sPB0}, s{sT5}")
        a(f"s_lshl_b32 s{sTMP}, s{sW}, 1")
        a(f"s_lshr_b32 s{sT2}, s{sR}, 4")
        a(f"s_add_u32 s{sTMP}, s{sTMP}, s{sT2}")
        a(f"s_cmp_le_u32 s{sTMP}, 4")
        a(f"s_cselect_b32 s{sHASJ}, 1, 0")
        a(f"s_cselect_b32 s{sTMP}, s{sTMP}, 4")
        a(f"s_sub_u32 s{sTMP}, 4, s{sTMP}")
        a(f"s_bfe_u32 s{sT2}, s{sR}, 0x20002")
        a(f"s_bfe_u32 s{sT3}, s{sR}, 0x10001")
        a(f"s_and_b32 s{sT4}, s{sR}, 1")
        a(f"s_mul_i32 s{sRD}, s{sT2}, 5")
        a(f"s_add_u32 s{sRD}, s{sRD}, s{sTMP}")
        a(f"s_lshl_b32 s{sRD}, s{sRD}, 9")
        a(f"s_add_u32 s{sRD}, s{sRD}, s{sT5}")
        a(f"s_lshl_b32 s{sT5}, s{sT3}, 8")
        a(f"s_add_u32 s{sRD}, s{sRD}, s{sT5}")
        a(f"s_lshl_b32 s{sT5}, s{sT4}, 7")
        a(f"s_add_u32 s{sRD}, s{sRD}, s{sT5}")
        for i in range(1, 8):
            a(f"s_add_u32 s{sRD+i}, s{sRD+i-1}, {4*PST}")
        a(f"s_lshl_b32 s{sJL}, s{sTMP}, 11")
        a(f"s_lshl_b32 s{sT5}, s{sT2}, 9")
        a(f"s_add_u32 s{sJL}, s{sJL}, s{sT5}")
        a(f"s_lshl_b32 s{sT5}, s{sT4}, 8")
        a(f"s_add_u32 s{sJL}, s{sJL}, s{sT5}")
        a(f"s_lshl_b32 s{sT5}, s{sT3}, 7")
        a(f"s_add_u32 s{sJL}, s{sJL}, s{sT5}")
        a(f"s_and_b32 s{sT5}, s{sJL}, 0x2000")
        a(f"s_add_u32 s{sJL}, s{sJL}, s{sT5}")
        a(f"s_lshl_b32 s{sT5}, s{sX}, 16")
        a(f"s_add_u32 s{sGL}, s{sT5}, {IMGL:#x}")
        a(f"s_lshl_b32 s{sT5}, s{sX}, 22")
        a(f"s_sub_u32 s{sIB}, 0, s{sWS}")
        a(f"s_and_b32 s{sIB}, s{sIB}, 0x1FFFFF")
        a(f"s_add_u32 s{sIB}, s{sIB}, {IMGR:#x}")
        a(f"s_add_u32 s{sGR}, s{sT5}, s{sIB}")
        a(f"s_xor_b32 s{sT5}, s{sT5}, 0x400000")
        a(f"s_add_u32 s{sJR}, s{sJL}, s{sT5}")
        a(f"s_add_u32 s{sJR}, s{sJR}, s{sIB}")
        a(f"s_add_u32 s{sJL}, s{sJL}, s{sGL}")
        a(f"s_mov_b32 s{sSLOT}, 32768")
        for src, dst in ((vGG, vG0), (vSA, vG2)):
            a(f"v_and_b32 v107, 0xFFFFFF3F, v{src}")
            a(f"v_bfe_u32 v108, v{src}, 6, 1")
            a(f"v_lshl_add_u32 v107, v108, 7, v107")
            a(f"v_bfe_u32 v108, v{src}, 7, 1")
            a(f"v_lshl_add_u32 v{dst}, v108, 6, v107")
        a(f"v_add_u32 v{vG1}, 4096, v{vG0}")
        a(f"v_add_u32 v{vG2}, 16384, v{vG2}")
        a(f"s_lshl_b32 s{sTBW}, s{sX}, 5")
        a(f"s_add_u32 s{sTBW}, s{sTBW}, s{sR}")
        a(f"s_lshl_b32 s{sTBW}, s{sTBW}, 11")
        a(f"s_add_u32 s{sTBW}, s{sTBW}, {TB:#x}")
        a(f"s_xor_b32 s{sTBR}, s{sTBW}, 0x800")
        a(f"s_mov_b32 s{sTAG0}, 0")
        a(f"s_mov_b32 s{sTAG1}, 0")
        a(f"s_mov_b32 s{sSTEP}, 0")
        a(f"s_mov_b32 s{sKSEG}, 0")
        a(f"s_mov_b32 s{sRDY}, {-1 if 'nohelp' in self.opts else 0}")
        a(f"s_lshl_b32 s{sKF}, s{sH}, 7")
        a(f"s_lshl_b32 s{sTMP}, s{sU}, 2")
        a(f"s_add_u32 s{sKF}, s{sKF}, s{sTMP}")
        a(f"s_add_u32 s{sKF}, s{sKF}, {KF:#x}")
        a(f"v_min_u32 v{vBA}, 92, v{vL4}")
        a(f"v_add_u32 v{vBA}, 64, v{vBA}")
        if self.stamps:
            a(f"s_lshl_b32 s{sTMP}, s{sX}, 5")
            a(f"s_add_u32 s{sTMP}, s{sTMP}, s{sR}")
            a(f"s_lshl_b32 s{sTMP}, s{sTMP}, 2")
            a(f"s_add_u32 s{sTMP}, s{sTMP}, s{sW}")
            a(f"s_lshl_b32 s{sSTAMP}, s{sTMP}, 13")
            a(f"s_add_u32 s{sSTAMP}, s{sSTAMP}, {STAMP:#x}")

    def init_buffers(self):
        a = self.a
        a(f"v_mov_b64 {vr(vT0,2)}, -1")
        for c in range(5):
            a(f"buffer_store_dwordx2 {vr(vT0,2)}, v{vPS}, {sr(sWS,4)}, s{sPB0} offen offset:{c*512}")
        a(f"buffer_store_dwordx2 {vr(vT0,2)}, v{vTW}, {sr(sWS,4)}, s{sTBW} offen")
        a(f"v_mov_b32 v{vT2}, 0")
        a(f"s_mov_b64 exec, 1")
        for e in range(6):
            a(f"s_add_u32 s{sPT}, s{sKF}, {e*4096}")
            a(f"buffer_store_dword v{vT2}, v{vT2}, {sr(sWS,4)}, s{sPT} offen sc1")
        a(f"s_movk_i32 s{sKE}, {4*4096}")
        a(f"s_mov_b64 exec, -1")
        a(f"s_lshl_b32 s{sPT}, s{sR}, 2")
        a(f"s_add_u32 s{sPT}, s{sPT}, s{sW}")
        a(f"s_bfe_u32 s{sPT+1}, s{sPT}, 0x10002")
        a(f"s_xor_b32 s{sPT+1}, s{sPT+1}, 1")
        for r in range(4): a(f"v_mov_b32 v{ZQ+r}, s{sPT+1}")
        a(f"s_lshr_b32 s{sPT+1}, s{sPT}, 1")
        a(f"s_lshl_b32 s{sPT+1}, s{sPT+1}, 15")
        a(f"s_and_b32 s{sPT}, s{sPT}, 1")
        a(f"s_lshl_b32 s{sPT}, s{sPT}, 13")
        a(f"s_add_u32 s{sPT}, s{sPT}, s{sPT+1}")
        a(f"s_add_u32 s{sPT}, s{sPT}, s{sGR}")
        for k in range(10):
            if k % 4 == 0: a(f"s_add_u32 s{sPT+1}, s{sPT}, {[0, 4096, 16384][k // 4]}")
            a(f"buffer_store_dwordx4 {vr(ZQ,4)}, v{vL16}, {sr(sWS,4)}, s{sPT+1} offen offset:{(k%4)*1024} sc1")
        a(f"s_cmp_eq_u32 s{sHASJ}, 0")
        a(f"s_cbranch_scc1 L_team_noinit")
        save = list(a.vm)
        a(f"s_mov_b64 exec, 0xFFFF")
        for off in (0, 32768):
            a(f"s_add_u32 s{sPT}, s{sJL}, {off}")
            a(f"buffer_store_dwordx2 {vr(vT0,2)}, v{vXA}, {sr(sWS,4)}, s{sPT} offen")
        a(f"s_mov_b64 exec, -1")
        a.vm = save
        a.label("L_team_noinit")

    def signal(self, dbg_off):
        a = self.a
        a(f"s_cmp_lg_u32 s{sW}, 0")
        a(f"s_cbranch_scc1 L_ta_done")
        a(f"s_mov_b64 exec, 1")
        a(f"v_mov_b32 v{vT0}, {dbg_off}")
        a(f"v_mov_b32 v{vT1}, 1")
        save = list(a.vm)
        a(f"global_atomic_add v{vT0}, v{vT1}, {sr(sDBG,2)} sc1")
        a.vm = save
        a(f"s_mov_b64 exec, -1")
        a.label("L_ta_done")

    def wait_team(self, dbg_off):
        a = self.a
        a(f"v_mov_b32 v{vT0}, {dbg_off}")
        a(f"s_mov_b32 s{sSPIN}, 0")
        a(f"s_mov_b64 exec, 1")
        a.label(f"L_tw_poll")
        a(f"global_load_dwordx2 {vr(vT2,2)}, v{vT0}, {sr(sDBG,2)} sc1")
        a(f"s_add_u32 s{sSPIN}, s{sSPIN}, 1")
        a(f"s_cmp_gt_u32 s{sSPIN}, {SPIN_MAX}")
        a(f"s_cbranch_scc1 L_fail")
        a.wait_vm0()
        a(f"v_readfirstlane_b32 s{sTMP}, v{vT2}")
        a(f"s_cmp_lt_u32 s{sTMP}, 64")
        a(f"s_cbranch_scc1 L_tw_poll")
        a(f"v_readfirstlane_b32 s{sTMP}, v{vT3}")
        a(f"s_cmp_lg_u32 s{sTMP}, 0")
        a(f"s_cbranch_scc1 L_tw_have")
        a(f"v_mov_b32 v{vT2}, 1")
        a(f"v_mov_b32 v{vT3}, 0")
        a(f"global_atomic_cmpswap v{vT1}, v{vT0}, {vr(vT2,2)}, {sr(sDBG,2)} offset:4 sc0 sc1")
        a.wait_vm0()
        a(f"v_readfirstlane_b32 s{sTMP}, v{vT1}")
        a.label("L_tw_have")
        a(f"s_mov_b64 exec, -1")
        a(f"s_lshr_b32 s{sT2}, s{sTMP}, s{sX}")
        a(f"s_and_b32 s{sT2}, s{sT2}, 0x2000")
        a(f"s_add_u32 s{sGR}, s{sGR}, s{sT2}")
        a(f"s_xor_b32 s{sT2}, s{sX}, 1")
        a(f"s_lshr_b32 s{sT2}, s{sTMP}, s{sT2}")
        a(f"s_and_b32 s{sT2}, s{sT2}, 0x2000")
        a(f"s_add_u32 s{sJR}, s{sJR}, s{sT2}")

    def load_weights(self):
        a = self.a
        TA = 40
        OUT = 104
        vW, vWo, vSN, vSO, vPSEL = 112, 113, 114, 115, 116
        vSB = 117
        vAD = [124, 125, 126, 127]
        NB = 5; SZ = 32768
        wf = 'nt' if 'wnt' in self.opts else ''
        a(f"v_lshrrev_b32 v{vT0}, 7, v{vL16}")
        a(f"v_and_b32 v{vT1}, 0x70, v{vL16}")
        a(f"v_lshl_add_u32 v{vW}, v{vT0}, 13, v{vT1}")
        a(f"v_lshrrev_b32 v{vT0}, 8, v{vL16}")
        a(f"v_and_b32 v{vT1}, 0xF0, v{vL16}")
        a(f"s_movk_i32 s{sTMP}, 1280")
        a(f"v_mul_lo_u32 v{vWo}, v{vT0}, s{sTMP}")
        a(f"v_add_u32 v{vWo}, v{vWo}, v{vT1}")
        a(f"v_lshrrev_b32 v{vT2}, 5, v{vT1}")
        a(f"v_lshlrev_b32 v{vSN}, 2, v{vT2}")
        a(f"v_lshrrev_b32 v{vT2}, 1, v{vT0}")
        a(f"v_lshl_add_u32 v{vSN}, v{vT2}, 11, v{vSN}")
        a(f"v_and_b32 v{vT2}, 1, v{vT0}")
        a(f"v_lshl_add_u32 v{vSN}, v{vT2}, 9, v{vSN}")
        a(f"s_lshl_b32 s{sTMP}, s{sW}, 5")
        a(f"v_add_u32 v{vSN}, s{sTMP}, v{vSN}")
        a(f"v_mov_b32 v{vT2}, 0x05040100")
        a(f"v_mov_b32 v{vT3}, 0x07060302")
        a(f"v_and_b32 v{vPSEL}, 16, v{vL16}")
        a(f"v_cmp_eq_u32 vcc, 0, v{vPSEL}")
        a(f"v_cndmask_b32 v{vPSEL}, v{vT3}, v{vT2}, vcc")
        for b in range(4):
            a(f"s_add_u32 s{sTMP}, s{sW}, {b}")
            a(f"s_and_b32 s{sTMP}, s{sTMP}, 3")
            a(f"s_lshl_b32 s{sTMP}, s{sTMP}, 13")
            a(f"v_add_u32 v{vSB+b}, s{sTMP}, v{vSN}")
        a(f"v_lshrrev_b32 v{vT1}, 2, v{vT1}")
        a(f"v_lshl_add_u32 v{vSO}, v{vT0}, 10, v{vT1}")
        a(f"s_lshl_b32 s{sTMP}, s{sW}, 6")
        a(f"v_add_u32 v{vSO}, s{sTMP}, v{vSO}")
        sBQ, sBS, sBO, sLD = sT2, sT3, sT4, sT5
        a(f"s_lshl_b32 s{sBS}, s{sH}, 8")
        a(f"s_lshl_b32 s{sTMP}, s{sU}, 7")
        a(f"s_add_u32 s{sBS}, s{sBS}, s{sTMP}")
        a(f"s_mul_i32 s{sTMP}, s{sW}, {64*8192}")
        a(f"s_add_u32 s{sBQ}, s{sBS}, s{sTMP}")
        a(f"s_mul_i32 s{sTMP}, s{sW}, {32*8192}")
        a(f"s_add_u32 s{sBS}, s{sBS}, s{sTMP}")
        a(f"s_mul_i32 s{sBO}, s{sH}, 163840")
        a(f"s_mul_i32 s{sTMP}, s{sU}, {64*1280}")
        a(f"s_add_u32 s{sBO}, s{sBO}, s{sTMP}")
        a(f"s_mul_i32 s{sTMP}, s{sW}, {16*1280}")
        a(f"s_add_u32 s{sBO}, s{sBO}, s{sTMP}")
        a(f"s_lshl_b32 s{sLD}, s{sW}, 12")
        stages = [(m, i) for m in "qkv" for i in range(3)] + [("o", c) for c in range(5)]
        karg = {"q": 16, "k": 24, "v": 32, "o": 40}
        srds = {"q": 8, "k": 12, "v": 8, "o": 12}
        loaded = set()
        hd = {}
        def dma(n):
            kind, i = stages[n]
            if kind not in loaded:
                self.srd(srds[kind], karg[kind], 5242880); loaded.add(kind)
            buf = (n % NB) * SZ
            hs = []
            big = kind != "o" and i < 2
            for m in range(8 if big else 4):
                if big:
                    a(f"s_lshl_b32 m0, s{sLD}, 1")
                    a(f"s_add_u32 m0, m0, {buf + m*1024}")
                else:
                    a(f"s_add_u32 m0, s{sLD}, {buf + m*1024}")
                if kind == "o":
                    a(f"s_add_u32 s{sTMP}, s{sBO}, {4*m*1280 + i*256}")
                    hs.append(a(f"buffer_load_dwordx4 v{vWo}, {sr(srds[kind],4)}, s{sTMP} offen {wf} lds"))
                elif big:
                    a(f"s_add_u32 s{sTMP}, s{sBQ}, {(256*i + 8*m) * 8192}")
                    hs.append(a(f"buffer_load_dwordx4 v{vW}, {sr(srds[kind],4)}, s{sTMP} offen {wf} lds"))
                else:
                    a(f"s_add_u32 s{sTMP}, s{sBS}, {(512 + 8*m) * 8192}")
                    hs.append(a(f"buffer_load_dwordx4 v{vW}, {sr(srds[kind],4)}, s{sTMP} offen {wf} lds"))
            hd[n] = hs
        def combine(op, lo, hi):
            p = PL[op]
            for r in range(8):
                d = p[1] + r if p[0] == "v" else OUT + r
                a(f"v_perm_b32 v{d}, v{hi+r}, v{lo+r}, v{vPSEL}")
            if p[0] == "a":
                for r in range(8): a(f"v_accvgpr_write_b32 a{p[1]+r}, v{OUT+r}")
        AH = self.opt('ah', NB - 1)
        for n in range(AH): dma(n)
        for n, (kind, i) in enumerate(stages):
            a.wait(hd[n])
            a.wait_lg0()
            a("s_barrier")
            if n + AH < len(stages): dma(n + AH)
            if n == 0 and "lateinit" in self.opts:
                self.init_buffers()
            if n == (5 if "lateinit" in self.opts else 0): self.signal(52)
            buf = (n % NB) * SZ
            if kind in "qkv":
                nb = 4 if i < 2 else 2
                hs = {}
                for b in range(nb):
                    if i < 2: a(f"v_add_u32 v{vAD[b]}, {buf}, v{vSB+b}")
                    else: a(f"v_add_u32 v{vAD[b]}, {buf + b*8192}, v{vSN}")
                for b in range(nb):
                    for hf in range(2):
                        for r in range(8):
                            hs[b] = a(f"ds_read_b32 v{TA + 16*b + 8*hf + r}, v{vAD[b]} offset:{(32*(r>>2) + (r&3) + 8*hf)*128}")
                    if b >= 1:
                        a.wait(hs[b-1])
                        combine((kind, 2*(b-1) + i if i < 2 else 8 + b - 1), TA + 16*(b-1), TA + 16*(b-1) + 8)
                b = nb
                a.wait(hs[b-1])
                combine((kind, 2*(b-1) + i if i < 2 else 8 + b - 1), TA + 16*(b-1), TA + 16*(b-1) + 8)
            else:
                a(f"v_add_u32 v{vAD[0]}, {buf}, v{vSO}")
                for j in range(2):
                    p = PL[("WO", i, j)]
                    for r in range(8):
                        a(f"ds_read_b32 {p[0]}{p[1]+r}, v{vAD[0]} offset:{(32*j + (r&3) + 16*(r>>2))*256}")
        a.wait_all()
        a("s_barrier")

    def kv_ready(self, lab):
        a = self.a
        from engine import blk_of_seg, D_BLK
        a(f"s_min_u32 s{sT2}, s{sKSEG}, 63")
        blk_of_seg(a, sT2, sBL)
        a(f"s_add_u32 s{sKSEG}, s{sKSEG}, 1")
        a(f"s_bitcmp1_b32 s{sRDY}, s{sBL}")
        a(f"s_cbranch_scc1 {lab}_ok")
        a(f"s_mov_b32 s{sSPIN}, 0")
        a.label(lab)
        a(f"global_load_dword v{vBLK}, v{vBA}, {sr(sDBG,2)} sc1")
        a(f"s_add_u32 s{sSPIN}, s{sSPIN}, 1")
        a(f"s_cmp_gt_u32 s{sSPIN}, {SPIN_MAX}")
        a(f"s_cbranch_scc1 L_fail")
        a(f"s_waitcnt vmcnt(0)")
        a(f"v_cmp_le_u32 vcc, 32, v{vBLK}")
        a(f"s_nop 3")
        a(f"s_mov_b32 s{sRDY}, vcc_lo")
        a(f"s_bitcmp1_b32 s{sRDY}, s{sBL}")
        a(f"s_cbranch_scc1 {lab}_ok")
        a(f"s_sleep 4")
        a(f"s_branch {lab}")
        a.label(f"{lab}_ok")
    def kv_check(self):
        a = self.a
        if "full" in self.opts:
            self.nkv = getattr(self, "nkv", 0) + 1
            save = list(a.vm)
            self.kv_ready(f"L_kvr{self.nkv}")
            a.vm = save
    def kv_dma(self):
        a = self.a
        a(f"s_lshl_b32 s{sTMP}, s{sKVM}, 1")
        a(f"s_add_u32 m0, s{sTMP}, s{sKVW}")
        a(f"s_add_u32 s{sKVW}, s{sKVW}, 12288")
        for k in range(4):
            a(f"buffer_load_dwordx4 v{vL16}, {sr(sWS,4)}, s{sKX} offen offset:{k*1024} sc1 lds")
        a(f"s_cmp_eq_u32 s{sKVW}, {L_KV + NKV*12288}")
        a(f"s_cselect_b32 s{sKVW}, {L_KV}, s{sKVW}")
        a(f"s_add_u32 s{sKX}, s{sKX}, {32*8192}")

    def prologue(self):
        a = self.a
        a(f"s_lshl_b32 s{sTMP}, s{sW}, 8")
        a(f"v_add_u32 v{vVW}, s{sTMP}, v{vL4}")
        a(f"s_lshl_b32 s{sKVM}, s{sW}, 11")
        a(f"s_mov_b32 s{sKVW}, {L_KV}")
        a(f"s_mov_b32 s{sKVR}, {L_KV}")
        for _ in range(KVD): self.kv_check()
        a(f"s_cmp_eq_u32 s{sW}, 3")
        a(f"s_cbranch_scc1 L_pro3")
        for _ in range(KVD): self.kv_dma()
        a.label("L_pro3")
        self.srd(sRA, 8, 10240)
        a(f"s_movk_i32 s{sTMP}, 1280")
        a(f"v_bfe_u32 v{vT0}, v{vGG}, 4, 3")
        a(f"v_mul_lo_u32 v{vT0}, v{vT0}, s{sTMP}")
        a(f"v_lshrrev_b32 v{vT1}, 7, v{vGG}")
        a(f"v_lshl_add_u32 v{vT0}, v{vT1}, 4, v{vT0}")
        a(f"buffer_load_dwordx4 {vr(GL,4)}, v{vT0}, {sr(sRA,4)}, 0 offen")
        a(f"buffer_load_dwordx4 {vr(GL+4,4)}, v{vT0}, {sr(sRA,4)}, 0 offen offset:512")
        a(f"v_bfe_u32 v{vT2}, v{vSA}, 4, 3")
        a(f"v_mul_lo_u32 v{vT2}, v{vT2}, s{sTMP}")
        a(f"v_lshrrev_b32 v{vT1}, 7, v{vSA}")
        a(f"v_lshl_add_u32 v{vT2}, v{vT1}, 4, v{vT2}")
        a(f"v_and_b32 v{vT1}, 8, v{vSA}")
        a(f"v_add_u32 v{vT2}, v{vT2}, v{vT1}")
        a(f"buffer_load_dwordx2 {vr(GL+8,2)}, v{vT2}, {sr(sRA,4)}, 0 offen offset:1024")
        for r in range(ZQ, ZQ + 12, 2): a(f"v_mov_b64 {vr(r,2)}, 0")
        for r in range(GB, GB + 10, 2): a(f"v_mov_b64 {vr(r,2)}, 0")
        a.wait_all()
        for i in range(10):
            a(f"v_lshlrev_b32 v{AU+2*i}, 16, v{GL+i}")
            a(f"v_and_b32 v{AU+2*i+1}, 0xFFFF0000, v{GL+i}")
        self.kv_check()

    def poll(self, lab, issue, regs, tag, thr=None, sleep=0):
        a = self.a
        a(f"s_mov_b32 s{sSPIN}, 0")
        a.label(lab)
        issue()
        a(f"s_add_u32 s{sSPIN}, s{sSPIN}, 1")
        a(f"s_cmp_gt_u32 s{sSPIN}, {SPIN_MAX}")
        a(f"s_cbranch_scc1 L_fail")
        a(f"s_waitcnt vmcnt({thr if thr is not None else self.opt('thr', 30)})")
        if sleep: a(f"s_sleep {sleep}")
        for n, r in enumerate(regs): self.ck(r, tag, n == 0)
        a(f"v_and_b32 v{vCK}, 1, v{vCK}")
        a(f"v_cmp_ne_u32 vcc, 0, v{vCK}")
        a(f"s_cbranch_vccnz {lab}")
    def bpoll(self, lab, issue, first, regs, per, tag):
        a = self.a
        a(f"s_mov_b32 s{sSPIN}, 0")
        a(f"s_branch {lab}_c")
        save = list(a.vm)
        a.label(lab)
        issue()
        a.vm = save
        a.label(f"{lab}_c")
        a(f"s_add_u32 s{sSPIN}, s{sSPIN}, 1")
        a(f"s_cmp_gt_u32 s{sSPIN}, {SPIN_MAX}")
        a(f"s_cbranch_scc1 L_fail")
        assert a.vm[-len(first):] == first
        for n, r in enumerate(regs):
            a.wait(first[n // per])
            self.ck(r, tag, n == 0)
        a(f"v_and_b32 v{vCK}, 1, v{vCK}")
        a(f"v_cmp_ne_u32 vcc, 0, v{vCK}")
        a(f"s_cbranch_vccnz {lab}")
    def poison(self, regs, tag):
        self.a(f"s_xor_b32 s{sTMP}, s{tag}, 1")
        for r in regs: self.a(f"v_mov_b32 v{r}, s{sTMP}")
    def ck(self, reg, tag, first):
        if first: self.a(f"v_xor_b32 v{vCK}, s{tag}, v{reg}")
        else: self.a(f"v_bitop3_b32 v{vCK}, v{vCK}, v{reg}, s{tag} bitop3:0xF6")

    def step(self, exit_label):
        a = self.a
        def ex_read():
            return [a(f"ds_read_b128 {vr(EX,4)}, v{vKMW} offset:{L_T + 128}"), a(f"ds_read_b128 {vr(EX+4,4)}, v{vL16} offset:{L_V}")]
        def ex_store():
            if "nokm" not in self.opts:
                a(f"buffer_store_dwordx4 {vr(EX,4)}, v{vL16}, {sr(sWS,4)}, s{sKM} offen sc1")
                a(f"buffer_store_dwordx4 {vr(EX+4,4)}, v{vL16}, {sr(sWS,4)}, s{sVM} offen sc1")
            a(f"s_add_u32 s{sKM}, s{sKM}, {32*2048}")
            a(f"s_add_u32 s{sVM}, s{sVM}, {32*2048}")
        def flag(val):
            a(f"v_mov_b32 v{vBLK}, {val}")
            a(f"s_mov_b64 exec, 1")
            a(f"s_add_u32 s{sTMP}, s{sKF}, s{sKE}")
            a(f"buffer_store_dword v{vBLK}, v{vL4}, {sr(sWS,4)}, s{sTMP} offen sc1")
            a(f"s_mov_b64 exec, -1")
            a(f"s_add_u32 s{sKE}, s{sKE}, 4096")
            a(f"s_cmp_eq_u32 s{sKE}, {6*4096}")
            a(f"s_cselect_b32 s{sKE}, 0, s{sKE}")
        def slow_ops():
            a(f"s_cmp_eq_u32 s{sW}, 3")
            a(f"s_cbranch_scc1 L_so3")
            save = list(a.vm)
            self.kv_dma()
            a.vm = save
            a(f"s_branch L_so_done")
            a.label("L_so3")
            a(f"s_cmp_eq_u32 s{sSTEP}, 0")
            a(f"s_cselect_b32 s{sT2}, {SCR:#x}, s{sKM}")
            a(f"s_cselect_b32 s{sBL}, {SCR:#x}, s{sVM}")
            a(f"s_cselect_b32 s{sTMP}, 0, {32*2048}")
            a(f"buffer_store_dwordx4 {vr(EX,4)}, v{vL16}, {sr(sWS,4)}, s{sT2} offen sc1")
            a(f"buffer_store_dwordx4 {vr(EX+4,4)}, v{vL16}, {sr(sWS,4)}, s{sBL} offen sc1")
            a(f"s_add_u32 s{sKM}, s{sKM}, s{sTMP}")
            a(f"s_add_u32 s{sVM}, s{sVM}, s{sTMP}")
            a(f"s_max_u32 s{sT2}, s{sSTEP}, 1")
            a(f"s_sub_u32 s{sT2}, s{sT2}, 1")
            flag(f"s{sT2}")
            a(f"buffer_load_dword v{vT2}, v{vL4}, {sr(sWS,4)}, s{sTBR} offen sc1")
            a.label("L_so_done")
        def last():
            a.wait_lg0()
            a("s_barrier")
            a(f"s_cmp_lg_u32 s{sW}, 3")
            a(f"s_cbranch_scc1 {exit_label}")
            a(f"s_nop 4")
            a.wait(ex_read())
            ex_store()
            a.wait_vm0()
            if "full" in self.opts:
                flag(64); flag(64)
        self.exports = last
        TREG = [r + 1 for r in [TRQ, TRQ + 2, TRK, TRK + 2, TRQ + 4, TRQ + 6, TRK + 4, TRK + 6]]
        if "tmask" in self.opts: TREG = [r + 1 for r in [TRQ, TRQ + 2, TRQ + 4, TRQ + 6, TRK, TRK + 2, TRK + 4, TRK + 6]]
        RREG = [RL + 2*i + 1 for i in range(8)]
        GREG = [GL + 2*i + 1 for i in range(5)]
        areg = lambda k: GL + 4 * k if k < 2 else AR + 4 * (k - 2)
        self.stamp(0)
        def add(lo, hi):
            for i in range(lo, hi):
                a(f"v_dot2_f32_bf16 v{AU+2*i}, v{GB+i}, v{vS10}, v{AU+2*i}")
                a(f"v_dot2_f32_bf16 v{AU+2*i+1}, v{GB+i}, v{vS01}, v{AU+2*i+1}")
        def pk(lo, hi):
            for i in range(lo, hi): a(f"v_cvt_pk_bf16_f32 v{GL+i}, v{AU+2*i}, v{AU+2*i+1}")
        add(0, 6); pk(0, 4)
        a(f"ds_write_b128 v{vGG}, {vr(GL,4)} offset:{L_IA}")
        add(6, 10)
        self.smf(("q", 0), ZQ, areg(0))
        pk(4, 8)
        a(f"ds_write_b128 v{vGG}, {vr(GL+4,4)} offset:{L_IA+4096}")
        self.smf(("k", 0), ZK, areg(0))
        pk(8, 10)
        a(f"ds_write_b64 v{vSA}, {vr(GL+8,2)} offset:{L_IA+8192}")
        self.smf(("q", 1), ZQ, areg(1))
        self.smf(("k", 1), ZK, areg(1))
        a(f"s_lshl_b32 s{sTMP}, s{sU}, 12")
        a(f"s_add_u32 s{sT2}, s{sTMP}, s{sKVR}")
        a(f"v_add_u32 v{vKL}, s{sT2}, v{vL16}")
        a.wait_lg0()
        a("s_barrier")
        self.stamp("b1")
        ah = {}
        for k in range(2, 10):
            if k < 8: ah[k] = a(f"ds_read_b128 {vr(areg(k),4)}, v{vAG + k//2 - 1} offset:{L_IA + (k%2)*4096}")
            else: ah[k] = a(f"ds_read_b128 {vr(areg(k),4)}, v{vL16} offset:{L_IA + k*1024}")
        self.smf(("v", 0), V, areg(0))
        a(f"s_xor_b32 s{sTMP}, s{sTMP}, 0x1000")
        a(f"s_add_u32 s{sT2}, s{sTMP}, s{sKVR}")
        a(f"v_add_u32 v{vKR}, s{sT2}, v{vL16}")
        self.smf(("v", 1), V, areg(1))
        a(f"s_lshr_b32 s{sTMP}, s{sKVM}, 1")
        a(f"s_add_u32 s{sT2}, s{sTMP}, s{sKVR}")
        a(f"v_add_u32 v{vVX}, s{sT2}, v{vL16}")
        for k in range(2, 10):
            a.wait(ah[k])
            self.smf(("q", k), ZQ, areg(k))
            kk = k - 2
            if kk == 5: a(f"s_waitcnt vmcnt(0)")
            a(f"ds_read_b128 {vr(KXR+4*kk,4)}, v{vKL if kk < 4 else vKR} offset:{(kk%4)*1024}")
            self.smf(("k", k), ZK, areg(k))
            if "tmask" in self.opts: a(f"v_mov_b32 v{TREG[kk]}, s{sTAG0}")
        self.stamp(1)
        vs = {"done": 2}
        def vfill(n):
            for _ in range(n):
                k = vs["done"]
                if k >= 10: return
                self.smf(("v", k), V, areg(k))
                vs["done"] += 1
        vfill(2)
        for r in range(4): a(f"v_permlane32_swap_b32 v{ZQ+r}, v{ZK+r}")
        a(f"v_pk_add_f32 {vr(ZQ,2)}, {vr(ZQ,2)}, {vr(ZK,2)}")
        a(f"v_pk_add_f32 {vr(ZQ+2,2)}, {vr(ZQ+2,2)}, {vr(ZK+2,2)}")
        a(f"v_cvt_pk_bf16_f32 v{TT}, v{ZQ}, v{ZQ+1}")
        a(f"v_cvt_pk_bf16_f32 v{TT+1}, v{ZQ+2}, v{ZQ+3}")
        a(f"ds_read_b128 {vr(VXR,4)}, v{vVX} offset:8192")
        a(f"v_mfma_f32_16x16x16_bf16 {vr(ZK,4)}, {vr(TT,2)}, {vr(vID0,2)}, 0")
        vfill(2)
        a(f"v_cvt_pk_bf16_f32 v{TT+1}, v{ZK+2}, v{ZK+3}")
        a(f"v_cvt_pk_bf16_f32 v{TT+2}, v{ZK}, v{ZK+1}")
        a(f"v_and_or_b32 v{TT+3}, v{TT+1}, -2, s{sTAG0}")
        a(f"buffer_store_dwordx2 {vr(TT+2,2)}, v{vTW}, {sr(sWS,4)}, s{sTBW} offen")
        a(f"v_mov_b32 v{TT}, v{TT+2}")
        a(f"ds_write_b64 v{vTW}, {vr(TT,2)} offset:{L_T}")
        self.stamp("ts")
        vfill(2)
        a.wait_lg0()
        a("s_barrier")
        self.stamp(2)
        hq = [a(f"ds_read_b128 {vr(TLQ+4*k,4)}, v{vTQ} offset:{L_T + k*1024}") for k in range(2)]
        hkk = [a(f"ds_read_b128 {vr(TLK+4*k,4)}, v{vTK} offset:{L_T + k*1024}") for k in range(2)]
        def tissue():
            if "tmask" not in self.opts:
                return [a(f"buffer_load_dwordx4 {vr(TRQ,4)}, v{vTQ}, {sr(sWS,4)}, s{sTBR} offen sc1"),
                        a(f"buffer_load_dwordx4 {vr(TRK,4)}, v{vTK}, {sr(sWS,4)}, s{sTBR} offen sc1"),
                        a(f"buffer_load_dwordx4 {vr(TRQ+4,4)}, v{vTQ}, {sr(sWS,4)}, s{sTBR} offen offset:1024 sc1"),
                        a(f"buffer_load_dwordx4 {vr(TRK+4,4)}, v{vTK}, {sr(sWS,4)}, s{sTBR} offen offset:1024 sc1")]
            a(f"s_mov_b64 exec, {sr(sMLO,2)}")
            h0 = a(f"buffer_load_dwordx4 {vr(TRQ,4)}, v{vTQ}, {sr(sWS,4)}, s{sTBR} offen sc1")
            h2 = a(f"buffer_load_dwordx4 {vr(TRQ+4,4)}, v{vTQ}, {sr(sWS,4)}, s{sTBR} offen offset:1024 sc1")
            a(f"s_mov_b64 exec, {sr(sM40,2)}")
            h1 = a(f"buffer_load_dwordx4 {vr(TRK,4)}, v{vTK}, {sr(sWS,4)}, s{sTBR} offen sc1")
            h3 = a(f"buffer_load_dwordx4 {vr(TRK+4,4)}, v{vTK}, {sr(sWS,4)}, s{sTBR} offen offset:1024 sc1")
            a(f"s_mov_b64 exec, -1")
            return [h0, h2, h1, h3]
        vfill(2)
        if self.opt("t1", 0) == 0: ths = tissue()
        def smm(Q, K, kx, first):
            c = lambda d: "0" if first else vr(d, 4)
            a(f"v_mfma_f32_16x16x32_bf16 {vr(D3,4)}, {vr(kx,4)}, {vr(Q,4)}, {c(D3)}")
            a(f"v_mfma_f32_16x16x32_bf16 {vr(D3+4,4)}, {vr(kx+4,4)}, {vr(Q,4)}, {c(D3+4)}")
            a(f"v_mfma_f32_16x16x32_bf16 {vr(D3+8,4)}, {vr(K,4)}, {vr(Q,4)}, {c(D3+8)}")
        a.wait(hq, hkk)
        smm(TLQ, TLK, KXR, True)
        if self.opt("t1", 0) == 1: ths = tissue()
        if self.opt("so", 0) == 1: slow_ops()
        smm(TLQ + 4, TLK + 4, KXR + 8, False)
        a(f"v_permlane32_swap_b32 v{V}, v{V+2}")
        a(f"v_permlane32_swap_b32 v{V+1}, v{V+3}")
        a(f"v_pk_add_f32 {vr(V,2)}, {vr(V,2)}, {vr(V+2,2)}")
        a(f"v_cvt_pk_bf16_f32 v{VP}, v{V}, v{V+1}")
        a(f"ds_write_b32 v{vVW}, v{VP} offset:{L_V}")
        for c in range(5):
            a(f"v_mov_b64 {vr(ACC[c],2)}, 0")
            a(f"v_mov_b64 {vr(ACC[c]+2,2)}, 0")
        a(f"v_mov_b64 {vr(V,2)}, 0")
        a(f"v_mov_b64 {vr(V+2,2)}, 0")
        for r in range(4): a(f"v_mov_b32 v{vONE+r}, 0x3F803F80")
        a(f"v_mov_b64 {vr(ZQ,2)}, 0")
        a(f"v_mov_b64 {vr(ZQ+2,2)}, 0")
        a(f"v_mov_b64 {vr(ZK,2)}, 0")
        a(f"v_mov_b64 {vr(ZK+2,2)}, 0")
        a(f"s_add_u32 s{sKVR}, s{sKVR}, 12288")
        a(f"s_cmp_eq_u32 s{sKVR}, {L_KV + NKV*12288}")
        a(f"s_cselect_b32 s{sKVR}, {L_KV}, s{sKVR}")
        a(f"s_mov_b32 s{sSPIN}, 1")
        for n, r in enumerate(TREG):
            a.wait(ths[n // 2])
            self.ck(r, sTAG0, n == 0)
        a(f"v_and_b32 v{vCK}, 1, v{vCK}")
        a(f"v_cmp_ne_u32 vcc, 0, v{vCK}")
        a(f"s_cbranch_vccz L_tok")
        save = list(a.vm)
        self.poll("L_tpoll", tissue, TREG, sTAG0, thr=0)
        a.vm = save
        a.label("L_tok")
        if self.stamps: a(f"s_mov_b32 s{sT5}, s{sSPIN}")
        self.stamp(3)
        smm(TRQ, TRK, KXR + 16, False)
        smm(TRQ + 4, TRK + 4, KXR + 24, False)
        if self.opt("so", 0) == 0: slow_ops()
        a(f"s_cmp_eq_u32 s{sSTEP}, 63")
        a(f"s_cbranch_scc1 L_last")
        M, M2 = vT0, vT3
        S = [D3, D3+1, D3+2, D3+3, D3+8]
        for r in range(4):
            a(f"v_mov_b32_dpp v{D3+r}, v{D3+4+r} row_ror:8 row_mask:0xf bank_mask:0xc")
        a(f"v_max3_f32 v{M}, v{S[0]}, v{S[1]}, v{S[2]}")
        a(f"v_mov_b32_dpp v{D3+8}, v{D3+9} row_ror:8 row_mask:0xf bank_mask:0xc")
        a(f"v_max3_f32 v{M}, v{M}, v{S[3]}, v{S[4]}")
        a(f"v_max_f32_dpp v{M}, v{M}, v{M} row_ror:8 row_mask:0xf bank_mask:0xf")
        a(f"v_mov_b32 v{M2}, v{M}")
        a(f"v_permlane16_swap_b32 v{M}, v{M2}")
        a(f"v_max_f32 v{M}, v{M}, v{M2}")
        a(f"v_mov_b32 v{M2}, v{M}")
        a(f"v_permlane32_swap_b32 v{M}, v{M2}")
        a(f"v_max_f32 v{M}, v{M}, v{M2}")
        a(f"v_mul_f32 v{M}, s{sC}, v{M}")
        for s_ in S: a(f"v_fma_f32 v{s_}, v{s_}, s{sC}, -v{M}")
        for s_ in S: a(f"v_exp_f32 v{s_}, v{s_}")
        P = PP; PM = PP + 4
        Ls = vT0
        a(f"v_cvt_pk_bf16_f32 v{P}, v{S[0]}, v{S[1]}")
        a(f"v_cvt_pk_bf16_f32 v{P+1}, v{S[2]}, v{S[3]}")
        a(f"v_mov_b32_dpp v{vT2}, v{S[4]} row_ror:8 row_mask:0xf bank_mask:0xf")
        a(f"v_mov_b32_dpp v{P+2}, v{P} row_ror:8 row_mask:0xf bank_mask:0xf")
        a(f"v_mov_b32_dpp v{P+3}, v{P+1} row_ror:8 row_mask:0xf bank_mask:0xf")
        a(f"v_cvt_pk_bf16_f32 v{PM}, v{S[4]}, v{vT2}")
        a(f"s_nop 0")
        a(f"v_mfma_f32_16x16x32_bf16 {vr(D3,4)}, {vr(vONE,4)}, {vr(P,4)}, 0")
        a(f"v_mfma_f32_16x16x16_bf16 {vr(D3+8,4)}, {vr(vONE,2)}, {vr(PM,2)}, 0")
        a(f"v_mfma_f32_16x16x32_bf16 {vr(DO,4)}, {vr(VXR,4)}, {vr(P,4)}, 0")
        a(f"v_mfma_f32_16x16x16_bf16 {vr(D3+4,4)}, {vr(VP,2)}, {vr(PM,2)}, 0")
        self.stamp(4)
        a(f"v_add_f32 v{Ls}, v{D3}, v{D3+8}")
        a(f"v_rcp_f32 v{Ls}, v{Ls}")
        a(f"v_pk_add_f32 {vr(DO,2)}, {vr(DO,2)}, {vr(D3+4,2)}")
        a(f"v_pk_add_f32 {vr(DO+2,2)}, {vr(DO+2,2)}, {vr(D3+6,2)}")
        a(f"s_mov_b64 exec, {sr(sMLO,2)}")
        a(f"v_pk_mul_f32 {vr(DO,2)}, {vr(DO,2)}, {vr(Ls,2)} op_sel_hi:[1,0]")
        a(f"v_pk_mul_f32 {vr(DO+2,2)}, {vr(DO+2,2)}, {vr(Ls,2)} op_sel_hi:[1,0]")
        a(f"v_cvt_pk_bf16_f32 v{DO}, v{DO}, v{DO+1}")
        a(f"v_cvt_pk_bf16_f32 v{DO+1}, v{DO+2}, v{DO+3}")
        a(f"ds_write_b64 v{vOW}, {vr(DO,2)} offset:{L_O}")
        a(f"s_mov_b64 exec, -1")
        self.stamp("pb3")
        a.wait_lg0()
        a("s_barrier")
        self.stamp("b3")
        oh = [a(f"ds_read_b128 {vr(AO+4*j,4)}, v{vA} offset:{L_O + j*512}") for j in range(2)]
        def publish(c):
            A_ = ACC[c]
            a(f"v_cvt_pk_bf16_f32 v{A_}, v{A_}, v{A_+1}")
            a(f"v_cvt_pk_bf16_f32 v{A_+1}, v{A_+2}, v{A_+3}")
            a(f"v_and_or_b32 v{A_+1}, v{A_+1}, -2, s{sTAG0}")
            a(f"buffer_store_dwordx2 {vr(A_,2)}, v{vPS}, {sr(sWS,4)}, s{sPB0} offen offset:{c*512}")
        for c in range(5):
            for j in range(2):
                a.wait(oh[j])
                self.smf(("WO", c, j), ACC[c], AO + 4 * j)
            if c >= 1: publish(c - 1)
        publish(4)
        self.stamp(5)
        a(f"s_cmp_eq_u32 s{sHASJ}, 0")
        a(f"s_cbranch_scc1 L_red_skip")
        D = D3; DB = D3 + 4
        def rissue():
            return [a(f"buffer_load_dwordx2 {vr(RL+2*i,2)}, v{vRD}, {sr(sWS,4)}, s{sRD+i} offen sc1") for i in range(8)]
        a(f"s_cmp_eq_u32 s{sW}, 2")
        a(f"s_cbranch_scc1 L_rs_done")
        if self.opt("rs1", 2): a(f"s_sleep {self.opt('rs1', 2)}")
        a(f"s_cmp_eq_u32 s{sW}, 1")
        a(f"s_cbranch_scc1 L_rs_done")
        if self.opt("rs0", 2): a(f"s_sleep {self.opt('rs0', 2)}")
        a.label("L_rs_done")
        if self.opt("rs2", 0): a(f"s_sleep {self.opt('rs2', 0)}")
        a(f"s_mov_b32 s{sSPIN}, 0")
        self.stamp("r0")
        a.label("L_red")
        hs = rissue()
        self.stamp("r1")
        a(f"s_add_u32 s{sSPIN}, s{sSPIN}, 1")
        a(f"s_cmp_gt_u32 s{sSPIN}, {SPIN_MAX}")
        a(f"s_cbranch_scc1 L_fail")
        for i in range(4):
            a.wait(hs[2*i+1])
            if i == 0: self.stamp("r2")
            if i == 3: self.stamp("r3")
            self.ck(RL + 4*i + 1, sTAG0, i == 0)
            self.ck(RL + 4*i + 3, sTAG0, False)
            a(f"v_mfma_f32_16x16x32_bf16 {vr(D,4)}, {vr(RL+4*i,4)}, {vr(vSEL4,4)}, {vr(D,4) if i else 0}")
        a(f"v_and_b32 v{vCK}, 1, v{vCK}")
        a(f"v_cmp_ne_u32 vcc, 0, v{vCK}")
        a(f"s_cbranch_vccnz L_red")
        if self.stamps: a(f"s_mov_b32 s{sT4}, s{sSPIN}")
        a(f"v_cvt_pk_bf16_f32 v{D}, v{D}, v{D+1}")
        a(f"v_cvt_pk_bf16_f32 v{D+1}, v{D+2}, v{D+3}")
        a(f"ds_bpermute_b32 v{DB}, v{vBP}, v{D}")
        a(f"v_and_or_b32 v{D+1}, v{D+1}, -2, s{sTAG1}")
        a(f"ds_bpermute_b32 v{DB+1}, v{vBP}, v{D+1}")
        a(f"s_mov_b64 exec, 0xFFFF")
        a.wait_lg0()
        a(f"buffer_store_dwordx2 {vr(DB,2)}, v{vXA}, {sr(sWS,4)}, s{sJR} offen sc1")
        a(f"buffer_store_dwordx2 {vr(DB,2)}, v{vXA}, {sr(sWS,4)}, s{sJL} offen")
        a(f"s_mov_b64 exec, -1")
        a.label("L_red_skip")
        a(f"s_cmp_lg_u32 s{sW}, 3")
        a(f"s_cbranch_scc1 L_nex")
        ex_read()
        a.wait_lg0()
        a.label("L_nex")
        self.stamp(6)
        a("s_barrier")
        self.stamp("b0")
        GREGB = [GB + 2*i + 1 for i in range(5)]
        def gissue(R, sb):
            return lambda: [a(f"buffer_load_dwordx4 {vr(R,4)}, v{vG0}, {sr(sWS,4)}, s{sb} offen sc1"),
                    a(f"buffer_load_dwordx4 {vr(R+4,4)}, v{vG1}, {sr(sWS,4)}, s{sb} offen sc1"),
                    a(f"buffer_load_dwordx2 {vr(R+8,2)}, v{vG2}, {sr(sWS,4)}, s{sb} offen sc1")]
        self.poison(GREG + GREGB, sTAG1)
        self.kv_check()
        if self.opt("ad", 4): a(f"s_sleep {self.opt('ad', 4)}")
        gissue(GL, sGL)()
        if self.opt("bd", 3): a(f"s_sleep {self.opt('bd', 3)}")
        def both():
            gissue(GB, sGR)()
        gissue(GB, sGR)()
        a(f"s_waitcnt vmcnt(3)")
        for n, r in enumerate(GREG): self.ck(r, sTAG1, n == 0)
        a(f"v_and_b32 v{vCK}, 1, v{vCK}")
        a(f"v_cmp_ne_u32 vcc, 0, v{vCK}")
        a(f"s_mov_b32 s{sSPIN}, 0")
        a(f"s_cbranch_vccz L_ga_ok")
        self.poll("L_ga", gissue(GL, sGL), GREG, sTAG1, thr=0)
        a.label("L_ga_ok")
        if self.stamps: a(f"s_mov_b32 s{sT3}, s{sSPIN}")
        self.stamp("ga")
        x2 = self.opt("x2", 1)
        if x2: gissue(GB, sGR)()
        for i in range(10):
            a(f"v_lshlrev_b32 v{AU+2*i}, 16, v{GL+i}")
            a(f"v_and_b32 v{AU+2*i+1}, 0xFFFF0000, v{GL+i}")
        a(f"s_waitcnt vmcnt({3 if x2 else 0})")
        for n, r in enumerate(GREGB): self.ck(r, sTAG1, n == 0)
        a(f"v_and_b32 v{vCK}, 1, v{vCK}")
        a(f"v_cmp_ne_u32 vcc, 0, v{vCK}")
        a(f"s_mov_b32 s{sSPIN}, 0")
        a(f"s_cbranch_vccz L_gb_ok")
        self.poll("L_gb", gissue(GB, sGR), GREGB, sTAG1, thr=self.opt("gthr", 3))
        a.label("L_gb_ok")
        self.stamp("gb")
        self.stamp(7)
        a(f"s_add_u32 s{sSTEP}, s{sSTEP}, 1")
        a(f"s_and_b32 s{sTAG0}, s{sSTEP}, 1")
        a(f"s_bfe_u32 s{sTAG1}, s{sSTEP}, 0x10001")
        for r in (sJL, sGL): a(f"s_add_u32 s{r}, s{r}, s{sSLOT}")
        for r in (sJR, sGR): a(f"s_add_u32 s{r}, s{r}, 32768")
        a(f"s_sub_u32 s{sSLOT}, 0, s{sSLOT}")
        if self.stamps:
            a.wait_lg0()
            for i in range(8):
                a(f"v_mov_b32 v{TLQ+i}, s{sTM+2*i}")
            for i, r in enumerate([sT5, sT4, sT3, sSPIN]):
                a(f"v_mov_b32 v{TLQ+8+i}, s{r}")
            a(f"v_mov_b32 v{vT1}, 0")
            a(f"s_mov_b64 exec, 1")
            for i in range(3):
                a(f"buffer_store_dwordx4 {vr(TLQ+4*i,4)}, v{vT1}, {sr(sWS,4)}, s{sSTAMP} offen offset:{16*i}")
            a(f"s_mov_b64 exec, -1")
            a(f"s_add_u32 s{sSTAMP}, s{sSTAMP}, 128")

def team_code(a, stamps, opts, exit_label="L_end"):
    t = Team(a, stamps, opts)
    t.setup()
    if "lateinit" not in opts: t.init_buffers()
    if "full" not in opts:
        a(f"s_or_b32 s{sTMP}, s{sX}, s{sR}")
        a(f"s_or_b32 s{sTMP}, s{sTMP}, s{sW}")
        a(f"s_cmp_lg_u32 s{sTMP}, 0")
        a(f"s_cbranch_scc1 L_noprobe")
        probe(a, vT0, opts)
        a.label("L_noprobe")
    if stamps: a(f"s_memtime {sr(sTM+16,2)}")
    t.load_weights()
    t.wait_team(52)
    if stamps:
        a(f"s_memtime {sr(sTM,2)}")
        a.wait_lg0()
        a(f"s_sub_u32 s{sTMP}, s{sTM}, s{sTM+16}")
        a(f"v_mov_b32 v{vT0}, s{sTMP}")
        a(f"v_mov_b32 v{vT1}, 0")
        a(f"buffer_store_dword v{vT0}, v{vT1}, {sr(sWS,4)}, s{sSTAMP} offen offset:64")
        a.wait_vm0()
    if "rt" in opts:
        import gen_full
        gen_full.mark(a, 5, True, 40, 41)
    if "dbgt" in opts: a("s_memrealtime s[92:93]")
    t.prologue()
    if "dbgt" in opts: a("s_memrealtime s[94:95]")
    if "rt" in opts: gen_full.mark(a, 1, True, 60, 61)
    a.label("L_loop")
    t.step(exit_label)
    a("s_branch L_loop")
    a.label("L_last")
    t.exports()
    a(f"s_branch {exit_label}")

def election(a):
    a("s_cmp_ge_u32 s2, 256")
    a("s_cbranch_scc1 L_end")
    a(f"s_load_dwordx2 {sr(sDBG,2)}, s[0:1], 64")
    a(f"s_load_dwordx2 {sr(sWS,2)}, s[0:1], 72")
    a(f"s_getreg_b32 s{sXCC}, hwreg(HW_REG_XCC_ID)")
    a(f"s_and_b32 s{sXCC}, s{sXCC}, 7")
    a(f"v_lshrrev_b32 v1, 6, v0")
    a(f"v_readfirstlane_b32 s{sW}, v1")
    a("s_waitcnt lgkmcnt(0)")
    a(f"s_and_b32 s{sWS+1}, s{sWS+1}, 0xffff")
    a(f"s_mov_b32 s{sWS+2}, {WS_BYTES}")
    a(f"s_mov_b32 s{sWS+3}, 0x00020000")
    a(f"v_mov_b32 v5, 0")
    a(f"s_cmp_lg_u32 s{sW}, 0")
    a("s_cbranch_scc1 L_el_done")
    a("s_mov_b64 exec, 1")
    a(f"s_lshl_b32 s{sTMP}, s{sXCC}, 2")
    a(f"v_mov_b32 v1, s{sTMP}")
    a(f"v_mov_b32 v2, 1")
    a(f"global_atomic_add v3, v1, v2, {sr(sDBG,2)} sc0 sc1")
    a.wait_vm0()
    a(f"v_readfirstlane_b32 s{sR}, v3")
    a(f"s_lshr_b32 s{sT2}, s{sXCC}, 1")
    a(f"s_cmp_lg_u32 s{sR}, 31")
    a("s_cbranch_scc1 L_el_poll0")
    a(f"s_lshl_b32 s{sTMP}, s{sT2}, 2")
    a(f"s_add_u32 s{sTMP}, s{sTMP}, 36")
    a(f"v_mov_b32 v1, s{sTMP}")
    a(f"global_atomic_add v3, v1, v2, {sr(sDBG,2)} sc0 sc1")
    a.wait_vm0()
    a(f"v_readfirstlane_b32 s{sTMP}, v3")
    a(f"s_cmp_lg_u32 s{sTMP}, 1")
    a("s_cbranch_scc1 L_el_poll0")
    a(f"s_add_u32 s{sTMP}, s{sT2}, 1")
    a(f"v_mov_b32 v1, 32")
    a(f"v_mov_b32 v2, s{sTMP}")
    a(f"v_mov_b32 v3, 0")
    a(f"global_atomic_cmpswap v1, v[2:3], {sr(sDBG,2)} sc1")
    a.label("L_el_poll0")
    a(f"v_mov_b32 v1, 32")
    a(f"s_mov_b32 s{sSPIN}, 0")
    a.label("L_el_poll")
    a(f"global_load_dword v2, v1, {sr(sDBG,2)} sc1")
    a(f"s_add_u32 s{sSPIN}, s{sSPIN}, 1")
    a(f"s_mov_b32 s{sTMP}, 0")
    a(f"s_cmp_gt_u32 s{sSPIN}, {SPIN_MAX}")
    a("s_cbranch_scc1 L_el_got")
    a.wait_vm0()
    a(f"v_readfirstlane_b32 s{sTMP}, v2")
    a(f"s_cmp_eq_u32 s{sTMP}, 0")
    a("s_cbranch_scc1 L_el_poll")
    a.label("L_el_got")
    a.wait_vm0()
    a(f"s_add_u32 s{sT2}, s{sT2}, 1")
    a(f"s_cmp_eq_u32 s{sTMP}, s{sT2}")
    a(f"s_cselect_b32 s{sR}, s{sR}, 255")
    a(f"s_min_u32 s{sR}, s{sR}, 255")
    a(f"v_mov_b32 v2, s{sR}")
    a(f"ds_write_b32 v5, v2")
    a.wait_lg0()
    a("s_mov_b64 exec, -1")
    a.label("L_el_done")
    a("s_barrier")
    a(f"ds_read_b32 v2, v5")
    a.wait_lg0()
    a(f"v_readfirstlane_b32 s{sR}, v2")
    a("s_barrier")
    a(f"s_and_b32 s{sX}, s{sXCC}, 1")
    a(f"s_cmp_ge_u32 s{sR}, 32")
    a("s_cbranch_scc1 L_end")

def probe(a, v0, opts=()):
    a(f"s_mov_b64 exec, 1")
    a(f"s_sub_u32 s{sT5}, 0, s{sWS}")
    a(f"s_and_b32 s{sT5}, s{sT5}, 0x1FFFFF")
    a(f"s_lshl_b32 s{sTMP}, s{sXCC}, 15")
    a(f"s_add_u32 s{sT5}, s{sT5}, s{sTMP}")
    a(f"s_mov_b32 s{sTM+4}, 1")
    for blk in range(2):
        a(f"s_mov_b32 s{sT2}, -1")
        a(f"s_mov_b32 s{sT3}, -1")
        for rep in range(3):
            for hf in range(2):
                a(f"v_mov_b32 v{v0}, {IMGR + blk*0x400000 + 0x5000 + hf*8192 + rep*256:#x}")
                a(f"buffer_store_dword v{v0}, v{v0}, {sr(sWS,4)}, s{sT5} offen sc1")
                a.wait_vm0()
                a(f"s_memtime {sr(sTM,2)}")
                a(f"s_waitcnt lgkmcnt(0)")
                a(f"buffer_load_dword v{v0+1}, v{v0}, {sr(sWS,4)}, s{sT5} offen sc1")
                a.wait_vm0()
                a(f"s_memtime {sr(sTM+2,2)}")
                a(f"s_waitcnt lgkmcnt(0)")
                a(f"s_sub_u32 s{sTMP}, s{sTM+2}, s{sTM}")
                a(f"s_min_u32 s{sT2+hf}, s{sT2+hf}, s{sTMP}")
        a(f"s_cmp_lt_u32 s{sT3}, s{sT2}")
        a(f"s_cselect_b32 s{sTMP}, {0x2000 << blk:#x}, 0")
        a(f"s_or_b32 s{sTM+4}, s{sTM+4}, s{sTMP}")
    if "far" in opts: a(f"s_xor_b32 s{sTM+4}, s{sTM+4}, 0x6000")
    a(f"v_mov_b32 v{v0}, 56")
    a(f"v_mov_b32 v{v0+2}, s{sTM+4}")
    a(f"v_mov_b32 v{v0+3}, 0")
    a(f"global_atomic_cmpswap v{v0}, {vr(v0+2,2)}, {sr(sDBG,2)} sc1")
    a.wait_vm0()
    a(f"s_mov_b64 exec, -1")
```

```python
import sys
from asmlib import *
import team9 as T
from team9 import *
import proj as P
import engine as E

NAME = "standalone__memory_aug_recurrent_mem_tr__prompt_kernel"

RT = 0x5800000
def mark(a, idx, on, v0=250, v1=251):
    if not on: return
    a("s_memrealtime s[98:99]")
    a("s_waitcnt lgkmcnt(0)")
    a(f"s_lshl_b32 s100, s2, 7")
    a(f"s_add_u32 s100, s100, {RT:#x}")
    a(f"v_mov_b32 v{v0}, s98")
    a(f"v_mov_b32 v{v1}, 0")
    if isinstance(idx, str):
        a(f"s_lshl_b32 s101, {idx}, 2")
        a(f"s_add_u32 s100, s100, s101")
        a(f"buffer_store_dword v{v0}, v{v1}, {sr(sWS,4)}, s100 offen offset:32")
    else:
        a(f"buffer_store_dword v{v0}, v{v1}, {sr(sWS,4)}, s100 offen offset:{idx*4}")
    a("s_waitcnt vmcnt(0)")

def gen(stamps=False, opts=()):
    rt = "rt" in opts
    a = Asm()
    opts = list(opts) + ["full"]
    if "dbgt" in opts: a("s_memrealtime s[96:97]")
    el = Asm(); election(el)
    for it in el.lines:
        t = it if isinstance(it, str) else it.text
        if t.startswith(f"s_cselect_b32 s{sR}, s{sR}, 255"):
            a(f"s_cselect_b32 s{sT3}, 0, 0x100")
            a(f"s_min_u32 s{sR}, s{sR}, 255")
            a(f"s_or_b32 s{sR}, s{sR}, s{sT3}")
            a(f"s_lshl_b32 s{sTMP}, s{sTMP}, 12")
            a(f"s_or_b32 s{sR}, s{sR}, s{sTMP}")
            continue
        if t.startswith(f"s_min_u32 s{sR}, s{sR}, 255"): continue
        if t.startswith(f"s_cmp_ge_u32 s{sR}, 32"): break
        if isinstance(it, str): a.raw(it)
        else: a(t)
    a.vm = []; a.lg = []
    mark(a, 0, rt)
    a(f"s_lshr_b32 s{sT4}, s{sR}, 12")
    a(f"s_and_b32 s{sR}, s{sR}, 0x1FF")
    a(f"s_cmp_eq_u32 s{sT4}, 0")
    a(f"s_cbranch_scc1 L_fail")
    a(f"s_cmp_ge_u32 s{sR}, 32")
    a(f"s_cbranch_scc1 L_helper")
    team_code(a, stamps, opts, exit_label="L_team_exit")
    a.label("L_team_exit")
    a.wait_all()
    mark(a, 2, rt, 40, 41)
    if "dbgt" in opts:
        a(f"s_or_b32 s{sTMP}, s{sX}, s{sR}")
        a(f"s_or_b32 s{sTMP}, s{sTMP}, s{sW}")
        a(f"s_cmp_lg_u32 s{sTMP}, 0")
        a(f"s_cbranch_scc1 L_end")
        a("s_memrealtime s[98:99]")
        a("s_waitcnt lgkmcnt(0)")
        a("s_sub_u32 s98, s98, s96")
        a("s_sub_u32 s94, s94, s96")
        a("s_sub_u32 s92, s92, s96")
        a("s_lshl_b32 s98, s98, 16")
        a("s_or_b32 s98, s98, s94")
        a("v_mov_b32 v40, 60")
        a("v_mov_b32 v41, s98")
        a("v_mov_b32 v42, s92")
        a("s_mov_b64 exec, 1")
        a(f"global_store_dword v40, v41, {sr(sDBG,2)}")
        a(f"global_store_dword v40, v42, {sr(sDBG,2)} offset:-24")
    a("s_branch L_end")
    a.label("L_helper")
    hXI, hRK, hNH, hH0, hMUL, hQ, hBLK = 70, 71, 72, 73, 74, 75, 76
    a(f"s_and_b32 s{hRK}, s{sR}, 0xFF")
    a(f"s_bitcmp1_b32 s{sR}, 8")
    a(f"s_cbranch_scc0 L_end")
    a(f"s_lshl_b32 s{sTMP}, s{sT4}, 1")
    a(f"s_cmp_ge_u32 s{sXCC}, s{sTMP}")
    a(f"s_cselect_b32 s{sTMP}, 2, 0")
    a(f"s_sub_u32 s{hXI}, s{sXCC}, s{sTMP}")
    a(f"s_cmp_lt_u32 s{hXI}, 2")
    a(f"s_cselect_b32 s{hNH}, 6, 5")
    a(f"s_movk_i32 s{hMUL}, 205")
    a(f"s_cselect_b32 s{hMUL}, 171, s{hMUL}")
    a(f"s_cselect_b32 s{sTMP}, 0, 2")
    a(f"s_mul_i32 s{hH0}, s{hXI}, s{hNH}")
    a(f"s_add_u32 s{hH0}, s{hH0}, s{sTMP}")
    a(f"s_cmp_lg_u32 s{sW}, 0")
    a(f"s_cbranch_scc1 L_h0")
    a(f"s_cmp_ge_u32 s{hRK}, 32")
    a(f"s_cbranch_scc1 L_h0")
    a(f"s_lshl_b32 s{sTMP}, s{hXI}, 7")
    a(f"s_lshl_b32 s{hQ}, s{hRK}, 2")
    a(f"s_add_u32 s{sTMP}, s{sTMP}, s{hQ}")
    a(f"s_add_u32 s{sTMP}, s{sTMP}, {EF:#x}")
    a(f"v_mov_b32 v1, 0")
    a(f"v_mov_b32 v3, 1")
    a(f"s_mov_b64 exec, 1")
    a(f"buffer_store_dword v1, v1, {sr(sWS,4)}, s{sTMP} offen")
    a(f"s_lshl_b32 s{sTMP}, s{hXI}, 2")
    a(f"s_add_u32 s{sTMP}, s{sTMP}, {E.D_ENG}")
    a(f"v_mov_b32 v2, s{sTMP}")
    a.wait_vm0()
    a(f"global_atomic_add v2, v3, {sr(sDBG,2)} sc1")
    a(f"s_mov_b64 exec, -1")
    a.vm = []
    a(f"s_cmp_lg_u32 s{hRK}, 31")
    a(f"s_cbranch_scc1 L_h0")
    a(f"s_sub_u32 s{sTMP}, s{sT4}, 1")
    a(f"s_lshr_b32 s{sTMP}, s{sTMP}, 1")
    a(f"s_lshr_b32 s{hQ}, s{sXCC}, 2")
    a(f"s_cmp_lg_u32 s{sTMP}, s{hQ}")
    a(f"s_cbranch_scc1 L_h0")
    probe(a, 4, opts)
    a.label("L_h0")
    a("s_barrier")
    if "nohelp" in opts: a("s_branch L_end")
    P.proj_setup(a)
    if "warm" in opts:
        P.srd(a, 44, 40, 5242880)
        a(f"s_lshl_b32 s{hQ}, s{hXI}, 5")
        a(f"s_add_u32 s{hQ}, s{hQ}, s{hRK}")
        a(f"s_lshl_b32 s{hQ}, s{hQ}, 2")
        a(f"s_add_u32 s{hQ}, s{hQ}, s{sW}")
        a(f"s_lshl_b32 s{hQ}, s{hQ}, 13")
        a(f"v_lshlrev_b32 v140, 3, v0")
        for sd in (P.pQ, P.pK, P.pV, 44):
            a(f"buffer_load_dword v141, v140, {sr(sd,4)}, s{hQ} offen")
        a.vm = []
    a(f"s_mov_b32 s{hQ}, s{hRK}")
    a.label("L_task")
    a(f"s_mul_i32 s{hBLK}, s{hQ}, s{hMUL}")
    a(f"s_lshr_b32 s{hBLK}, s{hBLK}, 10")
    a(f"s_cmp_ge_u32 s{hBLK}, 24")
    a(f"s_cbranch_scc1 L_engine")
    a(f"s_mul_i32 s{sTMP}, s{hBLK}, s{hNH}")
    a(f"s_sub_u32 s{P.pH}, s{hQ}, s{sTMP}")
    a(f"s_add_u32 s{P.pH}, s{P.pH}, s{hH0}")
    a(f"s_cmp_lt_u32 s{hBLK}, 6")
    a(f"s_cbranch_scc1 L_t1")
    a(f"s_lshl_b32 s{P.pTB}, s{hBLK}, 1")
    a(f"s_sub_u32 s{P.pTB}, s{P.pTB}, 6")
    a(f"s_cmp_lt_u32 s{hBLK}, 12")
    a(f"s_cbranch_scc1 L_t2")
    a(f"s_lshl_b32 s{P.pTB}, s{hBLK}, 2")
    a(f"s_sub_u32 s{P.pTB}, s{P.pTB}, 30")
    a(f"s_cmp_eq_u32 s{hBLK}, 23")
    a(f"s_cbranch_scc1 L_t2")
    P.proj_task(a, "4", nseg=4)
    a("s_branch L_tdone")
    a.label("L_t2")
    P.proj_task(a, "2", nseg=2)
    a("s_branch L_tdone")
    a.label("L_t1")
    a(f"s_mov_b32 s{P.pTB}, s{hBLK}")
    P.proj_task(a, "1", nseg=1)
    a.label("L_tdone")
    a(f"s_cmp_lg_u32 s{sW}, 0")
    a(f"s_cbranch_scc1 L_tnosig")
    a(f"s_lshl_b32 s{sTMP}, s{hBLK}, 2")
    a(f"s_add_u32 s{sTMP}, s{sTMP}, {E.D_BLK}")
    a(f"v_mov_b32 v{P.qT0}, s{sTMP}")
    a(f"v_mov_b32 v{P.qT1}, 1")
    a(f"s_mov_b64 exec, 1")
    a(f"global_atomic_add v{P.qT0}, v{P.qT1}, {sr(sDBG,2)} sc1")
    a(f"s_mov_b64 exec, -1")
    a.vm = []
    a.label("L_tnosig")
    if rt:
        a(f"s_lshr_b32 s97, s{hQ}, 5")
        a(f"s_add_u32 s97, s97, 16")
        mark(a, "s97", rt)
    a(f"s_add_u32 s{hQ}, s{hQ}, 32")
    a("s_branch L_task")
    a.label("L_engine")
    mark(a, 3, rt)
    a(f"s_cmp_ge_u32 s{hRK}, 32")
    a(f"s_cbranch_scc1 L_end")
    if "noengine" in opts: a("s_branch L_end")
    a(f"s_mov_b32 s{E.eE}, s{hXI}")
    a(f"s_mov_b32 s{E.eH}, s{hRK}")
    E.engine_setup(a)
    mark(a, 4, rt, 8, 9)
    E.engine_loop(a, 6, mark=(lambda: mark(a, f"s{E.eIT}", rt, 8, 9)), opts=opts)
    a.label("L_fail")
    a("s_mov_b64 exec, 1")
    a(f"v_mov_b32 v1, 60")
    a(f"v_mov_b32 v2, 1000")
    a(f"global_store_dword v1, v2, {sr(sDBG,2)}")
    a.label("L_end")
    a("s_waitcnt vmcnt(0) lgkmcnt(0)")
    a("s_endpgm")
    body = a.finish(timed="untimed" not in opts)
    print("nop states", a.nnop, "lines", body.count("\n"))
    ref = open("standalone__memory_aug_recurrent_mem_tr__prompt.s.ref").read()
    head = ref[:ref.index("; @launch")]
    head += f"; @launch grid=(256,1,1) block=(256,1,1) lds={LDS_BYTES}\n"
    head += f""".amdgcn_target "amdgcn-amd-amdhsa--gfx950"
.text
.globl {NAME}
.p2align 8
.type {NAME},@function
{NAME}:
"""
    foot = f""".section .rodata,"a"
.p2align 6
.amdhsa_kernel {NAME}
  .amdhsa_next_free_vgpr 512
  .amdhsa_next_free_sgpr 102
  .amdhsa_accum_offset 256
  .amdhsa_group_segment_fixed_size 0
  .amdhsa_kernarg_size 80
  .amdhsa_user_sgpr_count 2
  .amdhsa_user_sgpr_kernarg_segment_ptr 1
  .amdhsa_system_sgpr_workgroup_id_x 1
.end_amdhsa_kernel
"""
    return head + body + foot

if __name__ == "__main__":
    out = sys.argv[1] if len(sys.argv) > 1 else "standalone__memory_aug_recurrent_mem_tr__prompt.s"
    opts = sys.argv[2].split(",") if len(sys.argv) > 2 else ["rs2=4", "rs1=0", "rs0=0", "t1=1", "ad=3", "bd=2", "x2=0"]
    open(out, "w").write(gen("stamps" in opts, opts))
```

```python
import sys
from asmlib import *
import team9 as T
from team9 import *
import proj as P
import engine as E

NAME = "standalone__memory_aug_recurrent_mem_tr__prompt_kernel"

RT = 0x5800000
def mark(a, idx, on, v0=250, v1=251):
    if not on: return
    a("s_memrealtime s[98:99]")
    a("s_waitcnt lgkmcnt(0)")
    a(f"s_lshl_b32 s100, s2, 7")
    a(f"s_add_u32 s100, s100, {RT:#x}")
    a(f"v_mov_b32 v{v0}, s98")
    a(f"v_mov_b32 v{v1}, 0")
    if isinstance(idx, str):
        a(f"s_lshl_b32 s101, {idx}, 2")
        a(f"s_add_u32 s100, s100, s101")
        a(f"buffer_store_dword v{v0}, v{v1}, {sr(sWS,4)}, s100 offen offset:32")
    else:
        a(f"buffer_store_dword v{v0}, v{v1}, {sr(sWS,4)}, s100 offen offset:{idx*4}")
    a("s_waitcnt vmcnt(0)")

def gen(stamps=False, opts=()):
    rt = "rt" in opts
    a = Asm()
    opts = list(opts) + ["full"]
    if "dbgt" in opts: a("s_memrealtime s[96:97]")
    a("s_cmp_ge_u32 s2, 256")
    a("s_cbranch_scc1 L_end")
    a(f"s_load_dwordx2 {sr(sDBG,2)}, s[0:1], 64")
    a(f"s_load_dwordx2 {sr(sWS,2)}, s[0:1], 72")
    a(f"s_getreg_b32 s{sXCC}, hwreg(HW_REG_XCC_ID)")
    a(f"s_and_b32 s{sXCC}, s{sXCC}, 7")
    a(f"v_lshrrev_b32 v1, 6, v0")
    a(f"v_readfirstlane_b32 s{sW}, v1")
    a(f"v_mov_b32 v5, 0")
    a(f"s_lshl_b32 s{sTMP}, s{sXCC}, 2")
    a(f"s_add_u32 s{sT2}, s{sTMP}, 160")
    a(f"s_cmp_lt_u32 s{sXCC}, 2")
    a(f"s_cselect_b32 s{sTMP}, s{sTMP}, s{sT2}")
    a(f"v_mov_b32 v1, s{sTMP}")
    a(f"v_mov_b32 v2, 1")
    a("s_waitcnt lgkmcnt(0)")
    a(f"s_cmp_lg_u32 s{sW}, 0")
    a("s_cbranch_scc1 L_el_done")
    a("s_mov_b64 exec, 1")
    a(f"global_atomic_add v3, v1, v2, {sr(sDBG,2)} sc0 sc1")
    a.wait_vm0()
    a(f"ds_write_b32 v5, v3")
    a.wait_lg0()
    a("s_mov_b64 exec, -1")
    a.label("L_el_done")
    a(f"s_and_b32 s{sWS+1}, s{sWS+1}, 0xffff")
    a(f"s_mov_b32 s{sWS+2}, {WS_BYTES}")
    a(f"s_mov_b32 s{sWS+3}, 0x00020000")
    a("s_barrier")
    a(f"ds_read_b32 v2, v5")
    a.wait_lg0()
    a(f"v_readfirstlane_b32 s{sR}, v2")
    a("s_barrier")
    mark(a, 0, rt)
    a(f"s_min_u32 s{sR}, s{sR}, 255")
    a(f"s_and_b32 s{sX}, s{sXCC}, 1")
    a(f"s_mov_b32 s{sT4}, 1")
    a(f"s_cmp_lt_u32 s{sXCC}, 2")
    a(f"s_cselect_b32 s{sT3}, 0, 0x100")
    a(f"s_or_b32 s{sR}, s{sR}, s{sT3}")
    a(f"s_cmp_ge_u32 s{sR}, 32")
    a(f"s_cbranch_scc1 L_helper")
    team_code(a, stamps, opts, exit_label="L_team_exit")
    a.label("L_team_exit")
    a.wait_all()
    mark(a, 2, rt, 40, 41)
    if "dbgt" in opts:
        a(f"s_or_b32 s{sTMP}, s{sX}, s{sR}")
        a(f"s_or_b32 s{sTMP}, s{sTMP}, s{sW}")
        a(f"s_cmp_lg_u32 s{sTMP}, 0")
        a(f"s_cbranch_scc1 L_end")
        a("s_memrealtime s[98:99]")
        a("s_waitcnt lgkmcnt(0)")
        a("s_sub_u32 s98, s98, s96")
        a("s_sub_u32 s94, s94, s96")
        a("s_sub_u32 s92, s92, s96")
        a("s_lshl_b32 s98, s98, 16")
        a("s_or_b32 s98, s98, s94")
        a("v_mov_b32 v40, 60")
        a("v_mov_b32 v41, s98")
        a("v_mov_b32 v42, s92")
        a("s_mov_b64 exec, 1")
        a(f"global_store_dword v40, v41, {sr(sDBG,2)}")
        a(f"global_store_dword v40, v42, {sr(sDBG,2)} offset:-24")
    a("s_branch L_end")
    a.label("L_helper")
    hXI, hRK, hNH, hH0, hMUL, hQ, hBLK = 70, 71, 72, 73, 74, 75, 76
    a(f"s_and_b32 s{hRK}, s{sR}, 0xFF")
    a(f"s_bitcmp1_b32 s{sR}, 8")
    a(f"s_cbranch_scc0 L_end")
    a(f"s_lshl_b32 s{sTMP}, s{sT4}, 1")
    a(f"s_cmp_ge_u32 s{sXCC}, s{sTMP}")
    a(f"s_cselect_b32 s{sTMP}, 2, 0")
    a(f"s_sub_u32 s{hXI}, s{sXCC}, s{sTMP}")
    a(f"s_cmp_lt_u32 s{hXI}, 2")
    a(f"s_cselect_b32 s{hNH}, 6, 5")
    a(f"s_movk_i32 s{hMUL}, 205")
    a(f"s_cselect_b32 s{hMUL}, 171, s{hMUL}")
    a(f"s_cselect_b32 s{sTMP}, 0, 2")
    a(f"s_mul_i32 s{hH0}, s{hXI}, s{hNH}")
    a(f"s_add_u32 s{hH0}, s{hH0}, s{sTMP}")
    a(f"s_cmp_lg_u32 s{sW}, 0")
    a(f"s_cbranch_scc1 L_h0")
    a(f"s_cmp_ge_u32 s{hRK}, 32")
    a(f"s_cbranch_scc1 L_h0")
    a(f"s_lshl_b32 s{sTMP}, s{hXI}, 7")
    a(f"s_lshl_b32 s{hQ}, s{hRK}, 2")
    a(f"s_add_u32 s{sTMP}, s{sTMP}, s{hQ}")
    a(f"s_add_u32 s{sTMP}, s{sTMP}, {EF:#x}")
    a(f"v_mov_b32 v1, 0")
    a(f"v_mov_b32 v3, 1")
    a(f"s_mov_b64 exec, 1")
    a(f"buffer_store_dword v1, v1, {sr(sWS,4)}, s{sTMP} offen")
    a(f"s_lshl_b32 s{sTMP}, s{hXI}, 2")
    a(f"s_add_u32 s{sTMP}, s{sTMP}, {E.D_ENG}")
    a(f"v_mov_b32 v2, s{sTMP}")
    a.wait_vm0()
    a(f"global_atomic_add v2, v3, {sr(sDBG,2)} sc1")
    a(f"s_mov_b64 exec, -1")
    a.vm = []
    a(f"s_cmp_lg_u32 s{hRK}, 31")
    a(f"s_cbranch_scc1 L_h0")
    a(f"s_sub_u32 s{sTMP}, s{sT4}, 1")
    a(f"s_lshr_b32 s{sTMP}, s{sTMP}, 1")
    a(f"s_lshr_b32 s{hQ}, s{sXCC}, 2")
    a(f"s_cmp_lg_u32 s{sTMP}, s{hQ}")
    a(f"s_cbranch_scc1 L_h0")
    probe(a, 4, opts)
    a.label("L_h0")
    a("s_barrier")
    if "nohelp" in opts: a("s_branch L_end")
    P.proj_setup(a)
    if "warm" in opts:
        P.srd(a, 44, 40, 5242880)
        a(f"s_lshl_b32 s{hQ}, s{hXI}, 5")
        a(f"s_add_u32 s{hQ}, s{hQ}, s{hRK}")
        a(f"s_lshl_b32 s{hQ}, s{hQ}, 2")
        a(f"s_add_u32 s{hQ}, s{hQ}, s{sW}")
        a(f"s_lshl_b32 s{hQ}, s{hQ}, 13")
        a(f"v_lshlrev_b32 v140, 3, v0")
        for sd in (P.pQ, P.pK, P.pV, 44):
            a(f"buffer_load_dword v141, v140, {sr(sd,4)}, s{hQ} offen")
        a.vm = []
    a(f"s_mov_b32 s{hQ}, s{hRK}")
    a.label("L_task")
    a(f"s_mul_i32 s{hBLK}, s{hQ}, s{hMUL}")
    a(f"s_lshr_b32 s{hBLK}, s{hBLK}, 10")
    a(f"s_cmp_ge_u32 s{hBLK}, 24")
    a(f"s_cbranch_scc1 L_engine")
    a(f"s_mul_i32 s{sTMP}, s{hBLK}, s{hNH}")
    a(f"s_sub_u32 s{P.pH}, s{hQ}, s{sTMP}")
    a(f"s_add_u32 s{P.pH}, s{P.pH}, s{hH0}")
    a(f"s_cmp_lt_u32 s{hBLK}, 6")
    a(f"s_cbranch_scc1 L_t1")
    a(f"s_lshl_b32 s{P.pTB}, s{hBLK}, 1")
    a(f"s_sub_u32 s{P.pTB}, s{P.pTB}, 6")
    a(f"s_cmp_lt_u32 s{hBLK}, 12")
    a(f"s_cbranch_scc1 L_t2")
    a(f"s_lshl_b32 s{P.pTB}, s{hBLK}, 2")
    a(f"s_sub_u32 s{P.pTB}, s{P.pTB}, 30")
    a(f"s_cmp_eq_u32 s{hBLK}, 23")
    a(f"s_cbranch_scc1 L_t2")
    P.proj_task(a, "4", nseg=4)
    a("s_branch L_tdone")
    a.label("L_t2")
    P.proj_task(a, "2", nseg=2)
    a("s_branch L_tdone")
    a.label("L_t1")
    a(f"s_mov_b32 s{P.pTB}, s{hBLK}")
    P.proj_task(a, "1", nseg=1)
    a.label("L_tdone")
    a(f"s_cmp_lg_u32 s{sW}, 0")
    a(f"s_cbranch_scc1 L_tnosig")
    a(f"s_lshl_b32 s{sTMP}, s{hBLK}, 2")
    a(f"s_add_u32 s{sTMP}, s{sTMP}, {E.D_BLK}")
    a(f"v_mov_b32 v{P.qT0}, s{sTMP}")
    a(f"v_mov_b32 v{P.qT1}, 1")
    a(f"s_mov_b64 exec, 1")
    a(f"global_atomic_add v{P.qT0}, v{P.qT1}, {sr(sDBG,2)} sc1")
    a(f"s_mov_b64 exec, -1")
    a.vm = []
    a.label("L_tnosig")
    if rt:
        a(f"s_lshr_b32 s97, s{hQ}, 5")
        a(f"s_add_u32 s97, s97, 16")
        mark(a, "s97", rt)
    a(f"s_add_u32 s{hQ}, s{hQ}, 32")
    a("s_branch L_task")
    a.label("L_engine")
    mark(a, 3, rt)
    a(f"s_cmp_ge_u32 s{hRK}, 32")
    a(f"s_cbranch_scc1 L_end")
    if "noengine" in opts: a("s_branch L_end")
    a(f"s_mov_b32 s{E.eE}, s{hXI}")
    a(f"s_mov_b32 s{E.eH}, s{hRK}")
    E.engine_setup(a)
    mark(a, 4, rt, 8, 9)
    E.engine_loop(a, 6, mark=(lambda: mark(a, f"s{E.eIT}", rt, 8, 9)), opts=opts)
    a.label("L_fail")
    a("s_mov_b64 exec, 1")
    a(f"v_mov_b32 v1, 60")
    a(f"v_mov_b32 v2, 1000")
    a(f"global_store_dword v1, v2, {sr(sDBG,2)}")
    a.label("L_end")
    a("s_waitcnt vmcnt(0) lgkmcnt(0)")
    a("s_endpgm")
    body = a.finish(timed="untimed" not in opts)
    print("nop states", a.nnop, "lines", body.count("\n"))
    ref = open("standalone__memory_aug_recurrent_mem_tr__prompt.s.ref").read()
    head = ref[:ref.index("; @launch")]
    head += f"; @launch grid=(256,1,1) block=(256,1,1) lds={LDS_BYTES}\n"
    head += f""".amdgcn_target "amdgcn-amd-amdhsa--gfx950"
.text
.globl {NAME}
.p2align 8
.type {NAME},@function
{NAME}:
"""
    foot = f""".section .rodata,"a"
.p2align 6
.amdhsa_kernel {NAME}
  .amdhsa_next_free_vgpr 512
  .amdhsa_next_free_sgpr 102
  .amdhsa_accum_offset 256
  .amdhsa_group_segment_fixed_size 0
  .amdhsa_kernarg_size 80
  .amdhsa_user_sgpr_count 2
  .amdhsa_user_sgpr_kernarg_segment_ptr 1
  .amdhsa_system_sgpr_workgroup_id_x 1
.end_amdhsa_kernel
"""
    return head + body + foot

if __name__ == "__main__":
    out = sys.argv[1] if len(sys.argv) > 1 else "standalone__memory_aug_recurrent_mem_tr__prompt.s"
    opts = sys.argv[2].split(",") if len(sys.argv) > 2 else ["rs2=4", "rs1=0", "rs0=1", "t1=1", "ad=3", "bd=3", "x2=0", "fastpoll", "nobp", "lin"]
    open(out, "w").write(gen("stamps" in opts, opts))
```

```python
from asmlib import *
import struct

KXI   = 0x0000000
VXI   = 0x1000000
QXI   = 0x2000000
KMI   = 0x3000000
VMI   = 0x3400000
PB    = 0x4000000
PST = 10240 + 128
PBX = 0x80000
IMGL  = 0x41A0000
IMGR  = 0x4400000
TB    = 0x4120000
PROBE = 0x4160000
KF = 0x4170000
EF = 0x4180000
SCR = 0x4190000
STAMP = 0x5000000
WS_BYTES = 268435456

L_IA = 0
L_IB = 10240
L_T  = 20480
L_O  = 22528
L_V  = 23552
L_KV = 24576
NKV = 4
KVD = 2
LDS_BYTES = 163840

vL16, vA, vGW, vAV, vRD, vPB, vPS, vIDX = 0, 1, 2, 3, 4, 5, 6, 7
vID0 = 8; vGG = 10; vSA = 11
vXA = 188
vBLK = 190
vBA = 191
vKMW = 189
vTW, vTQ, vTK, vOW = 12, 13, 14, 15
vG1, vG2 = 16, 17
vKL, vKR, vVX = 19, 20, 21
vL4 = 22
vCK = 23
vT0, vT1, vT2, vT3 = 24, 25, 26, 27
ZQ, ZK, V = 28, 32, 36
GL = 40
AR = 52
KXR = 84
TLQ, TLK, TRQ, TRK = 116, 124, 132, 140
AU = 84
GB = 104
VXR = 148
D3 = 152
TT = 164
DO = 168
PP = 172
VP = 178
vONE = 116
vAG = 180
vBP = 183
vSEL4 = 184
RESV0 = 192
ACC = [AR, AR + 4, AR + 8, AR + 12, AR + 16]
AO = AR + 20
RL = TLQ
vVW = 50
EX = 168
vG0 = 2
vS10, vS01 = 3, 18

sWS = 4; sRA = 8; sDBG = 16
sXCC, sH, sW, sSTEP, sSPIN = 18, 19, 20, 21, 22
sTMP = 23
sX, sR, sU = 24, 25, 26
sKX, sVX, sKM, sVM = 28, 29, 30, 31
sPB0 = 32
sHASJ = 33
sRD = 34
sJL, sJR = 42, 43
sGL, sGR = 44, 45
sTBW, sTBR = 46, 47
sMLO = 48; sMHI = 50; sMPB = 52
sTAG0, sTAG1 = 54, 55
sONE = 56
sC = 58
sSLOT = 59
sKVW, sKVR = 60, 61
sT2, sT3, sT4, sT5 = 62, 63, 64, 65
sSTAMP = 66
sM40 = 68
sGL1, sGL2 = 70, 71
sPT = 72
sKSEG = 76
sRDY = 77
sBL = 78
sKF = 79
sKE = 80
sIB = 81
sKVM = 67
sTM = 84
SPIN_MAX = 200000

def fbits(x):
    return struct.unpack("<I", struct.pack("<f", x))[0]

OPS = [(m, i) for m in "qkv" for i in range(10)] + [("WO", c, j) for c in range(5) for j in range(2)]
PL = {}
for n, op in enumerate(OPS):
    PL[op] = ("a", n * 8) if n < 32 else ("v", RESV0 + (n - 32) * 8)

def breg(op):
    p = PL[op]
    return ar(p[1], 8) if p[0] == "a" else vr(p[1], 8)

class Team:
    def __init__(self, a, stamps=False, opts=()):
        self.a = a
        self.stamps = stamps
        self.opts = set(opts)
    def opt(self, name, default):
        o = [x for x in self.opts if x.startswith(name + "=")]
        return int(o[0][len(name) + 1:]) if o else default
    def smf(self, op, D, A):
        self.a(f"v_smfmac_f32_16x16x64_bf16 {vr(D,4)}, {vr(A,4)}, {breg(op)}, v{vIDX}")
    def stamp(self, i):
        sel = [o for o in self.opts if o.startswith("st=")]
        names = sel[0][3:].split("/") if sel else ["0", "1", "2", "3", "4", "5", "6", "7"]
        if str(i) not in names or not self.stamps: return
        self.a(f"s_memtime {sr(sTM + 2*names.index(str(i)), 2)}")
    def srd(self, dst, karg_off, nbytes):
        a = self.a
        a(f"s_load_dwordx2 {sr(dst,2)}, s[0:1], {karg_off}")
        a(f"s_waitcnt lgkmcnt(0)")
        a(f"s_and_b32 s{dst+1}, s{dst+1}, 0xffff")
        a(f"s_mov_b32 s{dst+2}, {nbytes}")
        a(f"s_mov_b32 s{dst+3}, 0x00020000")

    def setup(self):
        a = self.a
        L, N, Gg, Tt, TH = 100, 101, 102, 103, 104
        a(f"v_and_b32 v{L}, 63, v0")
        a(f"v_and_b32 v{N}, 15, v{L}")
        a(f"v_lshrrev_b32 v{Gg}, 4, v{L}")
        a(f"v_and_b32 v{Tt}, 7, v{L}")
        a(f"v_bfe_u32 v{TH}, v{L}, 3, 1")
        a(f"v_lshlrev_b32 v{vL16}, 4, v{L}")
        a(f"v_lshlrev_b32 v{vL4}, 2, v{L}")
        a(f"v_lshlrev_b32 v{vA}, 7, v{Gg}")
        a(f"v_lshl_add_u32 v{vA}, v{Tt}, 4, v{vA}")
        for b in range(1, 4):
            a(f"s_add_u32 s{sTMP}, s{sW}, {b}")
            a(f"s_and_b32 s{sTMP}, s{sTMP}, 3")
            a(f"s_lshl_b32 s{sTMP}, s{sTMP}, 10")
            a(f"v_add_u32 v{vAG+b-1}, s{sTMP}, v{vL16}")
        a(f"v_mov_b32 v{vS10}, 0x3F80")
        a(f"v_mov_b32 v{vS01}, 0x3F800000")
        a(f"v_lshlrev_b32 v{vBP}, 5, v{TH}")
        a(f"v_and_b32 v107, 1, v{L}")
        a(f"v_lshl_add_u32 v{vBP}, v107, 4, v{vBP}")
        a(f"v_bfe_u32 v107, v{L}, 1, 2")
        a(f"v_add_u32 v{vBP}, v{vBP}, v107")
        a(f"v_lshlrev_b32 v{vBP}, 2, v{vBP}")
        a(f"s_movk_i32 s{sTMP}, {PST}")
        a(f"v_mul_lo_u32 v{vRD}, v{Gg}, s{sTMP}")
        a(f"v_lshl_add_u32 v{vRD}, v{N}, 3, v{vRD}")
        G1, G0 = 105, 106
        a(f"v_lshrrev_b32 v{G1}, 1, v{Gg}")
        a(f"v_and_b32 v{G0}, 1, v{Gg}")
        a(f"v_and_b32 v107, 3, v{L}")
        a(f"v_lshlrev_b32 v{vPB}, 4, v107")
        a(f"v_lshlrev_b32 v{vXA}, 3, v{L}")
        a(f"v_lshl_add_u32 v{vPB}, v{G1}, 6, v{vPB}")
        a(f"v_lshl_add_u32 v{vPB}, v{G0}, 3, v{vPB}")
        a(f"s_lshl_b32 s{sTMP}, s{sW}, 10")
        a(f"v_add_u32 v{vGG}, s{sTMP}, v{vL16}")
        a(f"v_lshrrev_b32 v{vSA}, 1, v{vGG}")
        a(f"v_lshlrev_b32 v{vPS}, 8, v{G0}")
        a(f"v_lshl_add_u32 v{vPS}, v{TH}, 7, v{vPS}")
        a(f"v_lshl_add_u32 v{vPS}, v{Tt}, 4, v{vPS}")
        a(f"v_lshl_add_u32 v{vPS}, v{G1}, 3, v{vPS}")
        a(f"v_mov_b32 v107, 0x8888")
        a(f"v_mov_b32 v108, 0xDDDD")
        a(f"v_cmp_eq_u32 vcc, 0, v{TH}")
        a(f"v_cndmask_b32 v{vIDX}, v108, v107, vcc")
        a(f"v_lshlrev_b32 v107, 2, v{Gg}")
        a(f"v_sub_u32 v107, v{N}, v107")
        a(f"v_mov_b32 v108, 0x3F80")
        a(f"v_mov_b32 v109, 0x3F800000")
        a(f"v_mov_b32 v{vID0}, 0")
        a(f"v_mov_b32 v{vID0+1}, 0")
        for jj in range(4):
            a(f"v_cmp_eq_u32 vcc, {jj}, v107")
            a(f"v_cndmask_b32 v{vID0 + jj//2}, v{vID0 + jj//2}, v{108 + jj%2}, vcc")
        a(f"s_mov_b32 s{sONE}, 0x3F80"); a(f"s_mov_b32 s{sONE+1}, 0")
        a(f"v_lshlrev_b64 {vr(vSEL4,2)}, v{vL16}, {sr(sONE,2)}")
        a(f"v_lshlrev_b64 {vr(vSEL4+2,2)}, v{vL16}, {sr(sONE,2)}")
        a(f"v_lshlrev_b32 v{vTW}, 4, v{N}")
        a(f"v_lshl_add_u32 v{vTW}, v{G1}, 8, v{vTW}")
        a(f"v_lshl_add_u32 v{vTW}, v{G0}, 3, v{vTW}")
        a(f"s_lshl_b32 s{sTMP}, s{sW}, 9")
        a(f"v_add_u32 v{vTW}, s{sTMP}, v{vTW}")
        a(f"v_lshrrev_b32 v107, 3, v{L}")
        a(f"v_lshlrev_b32 v{vKMW}, 8, v107")
        a(f"v_lshl_add_u32 v{vKMW}, v{Tt}, 4, v{vKMW}")
        a(f"v_lshlrev_b32 v107, 8, v{Gg}")
        a(f"v_lshl_add_u32 v{vTQ}, v{Tt}, 4, v107")
        a(f"v_bfe_u32 v108, v{N}, 2, 1")
        a(f"v_lshlrev_b32 v108, 2, v108")
        a(f"v_lshl_add_u32 v108, v{TH}, 1, v108")
        a(f"v_and_b32 v109, 1, v{N}")
        a(f"v_add3_u32 v108, v108, v109, 8")
        a(f"v_lshl_add_u32 v{vTK}, v108, 4, v107")
        a(f"v_lshlrev_b32 v{vOW}, 7, v{G1}")
        a(f"v_lshl_add_u32 v{vOW}, v{Tt}, 4, v{vOW}")
        a(f"v_lshl_add_u32 v{vOW}, v{G0}, 3, v{vOW}")
        a(f"s_lshl_b32 s{sTMP}, s{sW}, 8")
        a(f"v_add_u32 v{vOW}, s{sTMP}, v{vOW}")
        a(f"v_mov_b32 v{VP+1}, 0")
        a(f"v_mov_b32 v{PP+5}, 0")
        a(f"s_mov_b32 s{sMLO}, 0x00FF00FF"); a(f"s_mov_b32 s{sMLO+1}, 0x00FF00FF")
        a(f"s_mov_b32 s{sMHI}, 0xFF00FF00"); a(f"s_mov_b32 s{sMHI+1}, 0xFF00FF00")
        a(f"s_mov_b32 s{sMPB}, 0x000F000F"); a(f"s_mov_b32 s{sMPB+1}, 0x000F000F")
        a(f"s_mov_b32 s{sM40}, 0x33333333"); a(f"s_mov_b32 s{sM40+1}, 0x33333333")
        a(f"s_mov_b32 s{sC}, {fbits(128 ** -0.5 * 1.4426950408889634):#x}")
        a(f"s_and_b32 s{sU}, s{sR}, 1")
        a(f"s_lshr_b32 s{sH}, s{sR}, 1")
        a(f"s_lshl_b32 s{sTMP}, s{sX}, 4")
        a(f"s_add_u32 s{sH}, s{sH}, s{sTMP}")
        a(f"s_lshl_b32 s{sKX}, s{sH}, 13")
        a(f"s_lshl_b32 s{sTMP}, s{sU}, 12")
        a(f"s_add_u32 s{sTMP}, s{sTMP}, {VXI:#x}")
        a(f"s_lshl_b32 s{sT2}, s{sW}, 12")
        a(f"s_cmp_eq_u32 s{sW}, 2")
        a(f"s_cselect_b32 s{sTMP}, s{sTMP}, s{sT2}")
        a(f"s_add_u32 s{sKX}, s{sKX}, s{sTMP}")
        a(f"s_lshl_b32 s{sKM}, s{sH}, 11")
        a(f"s_lshl_b32 s{sTMP}, s{sU}, 10")
        a(f"s_add_u32 s{sKM}, s{sKM}, s{sTMP}")
        a(f"s_add_u32 s{sVM}, s{sKM}, {VMI:#x}")
        a(f"s_add_u32 s{sKM}, s{sKM}, {KMI:#x}")
        a(f"s_mul_i32 s{sPB0}, s{sR}, {PST}")
        a(f"s_mul_i32 s{sTMP}, s{sW}, 2560")
        a(f"s_add_u32 s{sPB0}, s{sPB0}, s{sTMP}")
        a(f"s_mul_i32 s{sT5}, s{sX}, {PBX}")
        a(f"s_add_u32 s{sT5}, s{sT5}, {PB:#x}")
        a(f"s_add_u32 s{sPB0}, s{sPB0}, s{sT5}")
        a(f"s_lshl_b32 s{sTMP}, s{sW}, 1")
        a(f"s_lshr_b32 s{sT2}, s{sR}, 4")
        a(f"s_add_u32 s{sTMP}, s{sTMP}, s{sT2}")
        a(f"s_cmp_le_u32 s{sTMP}, 4")
        a(f"s_cselect_b32 s{sHASJ}, 1, 0")
        a(f"s_cselect_b32 s{sTMP}, s{sTMP}, 4")
        a(f"s_sub_u32 s{sTMP}, 4, s{sTMP}")
        a(f"s_bfe_u32 s{sT2}, s{sR}, 0x20002")
        a(f"s_bfe_u32 s{sT3}, s{sR}, 0x10001")
        a(f"s_and_b32 s{sT4}, s{sR}, 1")
        a(f"s_mul_i32 s{sRD}, s{sT2}, 5")
        a(f"s_add_u32 s{sRD}, s{sRD}, s{sTMP}")
        a(f"s_lshl_b32 s{sRD}, s{sRD}, 9")
        a(f"s_add_u32 s{sRD}, s{sRD}, s{sT5}")
        a(f"s_lshl_b32 s{sT5}, s{sT3}, 8")
        a(f"s_add_u32 s{sRD}, s{sRD}, s{sT5}")
        a(f"s_lshl_b32 s{sT5}, s{sT4}, 7")
        a(f"s_add_u32 s{sRD}, s{sRD}, s{sT5}")
        for i in range(1, 8):
            a(f"s_add_u32 s{sRD+i}, s{sRD+i-1}, {4*PST}")
        a(f"s_lshl_b32 s{sJL}, s{sTMP}, 11")
        a(f"s_lshl_b32 s{sT5}, s{sT2}, 9")
        a(f"s_add_u32 s{sJL}, s{sJL}, s{sT5}")
        a(f"s_lshl_b32 s{sT5}, s{sT4}, 8")
        a(f"s_add_u32 s{sJL}, s{sJL}, s{sT5}")
        a(f"s_lshl_b32 s{sT5}, s{sT3}, 7")
        a(f"s_add_u32 s{sJL}, s{sJL}, s{sT5}")
        a(f"s_and_b32 s{sT5}, s{sJL}, 0x2000")
        a(f"s_add_u32 s{sJL}, s{sJL}, s{sT5}")
        a(f"s_lshl_b32 s{sT5}, s{sX}, 16")
        a(f"s_add_u32 s{sGL}, s{sT5}, {IMGL:#x}")
        a(f"s_lshl_b32 s{sT5}, s{sX}, 22")
        a(f"s_sub_u32 s{sIB}, 0, s{sWS}")
        a(f"s_and_b32 s{sIB}, s{sIB}, 0x1FFFFF")
        a(f"s_add_u32 s{sIB}, s{sIB}, {IMGR:#x}")
        a(f"s_add_u32 s{sGR}, s{sT5}, s{sIB}")
        a(f"s_xor_b32 s{sT5}, s{sT5}, 0x400000")
        a(f"s_add_u32 s{sJR}, s{sJL}, s{sT5}")
        a(f"s_add_u32 s{sJR}, s{sJR}, s{sIB}")
        a(f"s_add_u32 s{sJL}, s{sJL}, s{sGL}")
        a(f"s_mov_b32 s{sSLOT}, 32768")
        for src, dst in ((vGG, vG0), (vSA, vG2)):
            a(f"v_and_b32 v107, 0xFFFFFF3F, v{src}")
            a(f"v_bfe_u32 v108, v{src}, 6, 1")
            a(f"v_lshl_add_u32 v107, v108, 7, v107")
            a(f"v_bfe_u32 v108, v{src}, 7, 1")
            a(f"v_lshl_add_u32 v{dst}, v108, 6, v107")
        a(f"v_add_u32 v{vG1}, 4096, v{vG0}")
        a(f"v_add_u32 v{vG2}, 16384, v{vG2}")
        a(f"s_lshl_b32 s{sTBW}, s{sX}, 5")
        a(f"s_add_u32 s{sTBW}, s{sTBW}, s{sR}")
        a(f"s_lshl_b32 s{sTBW}, s{sTBW}, 11")
        a(f"s_add_u32 s{sTBW}, s{sTBW}, {TB:#x}")
        a(f"s_xor_b32 s{sTBR}, s{sTBW}, 0x800")
        a(f"s_mov_b32 s{sTAG0}, 0")
        a(f"s_mov_b32 s{sTAG1}, 0")
        a(f"s_mov_b32 s{sSTEP}, 0")
        a(f"s_mov_b32 s{sKSEG}, 0")
        a(f"s_mov_b32 s{sRDY}, {-1 if 'nohelp' in self.opts else 0}")
        a(f"s_lshl_b32 s{sKF}, s{sH}, 7")
        a(f"s_lshl_b32 s{sTMP}, s{sU}, 2")
        a(f"s_add_u32 s{sKF}, s{sKF}, s{sTMP}")
        a(f"s_add_u32 s{sKF}, s{sKF}, {KF:#x}")
        a(f"v_min_u32 v{vBA}, 92, v{vL4}")
        a(f"v_add_u32 v{vBA}, 64, v{vBA}")
        if self.stamps:
            a(f"s_lshl_b32 s{sTMP}, s{sX}, 5")
            a(f"s_add_u32 s{sTMP}, s{sTMP}, s{sR}")
            a(f"s_lshl_b32 s{sTMP}, s{sTMP}, 2")
            a(f"s_add_u32 s{sTMP}, s{sTMP}, s{sW}")
            a(f"s_lshl_b32 s{sSTAMP}, s{sTMP}, 13")
            a(f"s_add_u32 s{sSTAMP}, s{sSTAMP}, {STAMP:#x}")

    def init_buffers(self):
        a = self.a
        a(f"v_mov_b64 {vr(vT0,2)}, -1")
        for c in range(5):
            a(f"buffer_store_dwordx2 {vr(vT0,2)}, v{vPS}, {sr(sWS,4)}, s{sPB0} offen offset:{c*512}")
        a(f"buffer_store_dwordx2 {vr(vT0,2)}, v{vTW}, {sr(sWS,4)}, s{sTBW} offen")
        a(f"v_mov_b32 v{vT2}, 0")
        a(f"s_mov_b64 exec, 1")
        for e in range(6):
            a(f"s_add_u32 s{sPT}, s{sKF}, {e*4096}")
            a(f"buffer_store_dword v{vT2}, v{vT2}, {sr(sWS,4)}, s{sPT} offen sc1")
        a(f"s_movk_i32 s{sKE}, {4*4096}")
        a(f"s_mov_b64 exec, -1")
        a(f"s_lshl_b32 s{sPT}, s{sR}, 2")
        a(f"s_add_u32 s{sPT}, s{sPT}, s{sW}")
        a(f"s_bfe_u32 s{sPT+1}, s{sPT}, 0x10002")
        a(f"s_xor_b32 s{sPT+1}, s{sPT+1}, 1")
        for r in range(4): a(f"v_mov_b32 v{ZQ+r}, s{sPT+1}")
        a(f"s_lshr_b32 s{sPT+1}, s{sPT}, 1")
        a(f"s_lshl_b32 s{sPT+1}, s{sPT+1}, 15")
        a(f"s_and_b32 s{sPT}, s{sPT}, 1")
        a(f"s_lshl_b32 s{sPT}, s{sPT}, 13")
        a(f"s_add_u32 s{sPT}, s{sPT}, s{sPT+1}")
        a(f"s_add_u32 s{sPT}, s{sPT}, s{sGR}")
        for k in range(10):
            if k % 4 == 0: a(f"s_add_u32 s{sPT+1}, s{sPT}, {[0, 4096, 16384][k // 4]}")
            a(f"buffer_store_dwordx4 {vr(ZQ,4)}, v{vL16}, {sr(sWS,4)}, s{sPT+1} offen offset:{(k%4)*1024} sc1")
        a(f"s_cmp_eq_u32 s{sHASJ}, 0")
        a(f"s_cbranch_scc1 L_team_noinit")
        save = list(a.vm)
        a(f"s_mov_b64 exec, 0xFFFF")
        for off in (0, 32768):
            a(f"s_add_u32 s{sPT}, s{sJL}, {off}")
            a(f"buffer_store_dwordx2 {vr(vT0,2)}, v{vXA}, {sr(sWS,4)}, s{sPT} offen")
        a(f"s_mov_b64 exec, -1")
        a.vm = save
        a.label("L_team_noinit")

    def signal(self, dbg_off):
        a = self.a
        a(f"s_cmp_lg_u32 s{sW}, 0")
        a(f"s_cbranch_scc1 L_ta_done")
        a(f"s_mov_b64 exec, 1")
        a(f"v_mov_b32 v{vT0}, {dbg_off}")
        a(f"v_mov_b32 v{vT1}, 1")
        save = list(a.vm)
        a(f"global_atomic_add v{vT0}, v{vT1}, {sr(sDBG,2)} sc1")
        a.vm = save
        a(f"s_mov_b64 exec, -1")
        a.label("L_ta_done")

    def wait_team(self, dbg_off):
        a = self.a
        a(f"v_mov_b32 v{vT0}, {dbg_off}")
        a(f"s_mov_b32 s{sSPIN}, 0")
        a(f"s_mov_b64 exec, 1")
        a.label(f"L_tw_poll")
        a(f"global_load_dwordx2 {vr(vT2,2)}, v{vT0}, {sr(sDBG,2)} sc1")
        a(f"s_add_u32 s{sSPIN}, s{sSPIN}, 1")
        a(f"s_cmp_gt_u32 s{sSPIN}, {SPIN_MAX}")
        a(f"s_cbranch_scc1 L_fail")
        a.wait_vm0()
        a(f"v_readfirstlane_b32 s{sTMP}, v{vT2}")
        a(f"s_cmp_lt_u32 s{sTMP}, 64")
        a(f"s_cbranch_scc1 L_tw_poll")
        a(f"v_readfirstlane_b32 s{sTMP}, v{vT3}")
        a(f"s_cmp_lg_u32 s{sTMP}, 0")
        a(f"s_cbranch_scc1 L_tw_have")
        a(f"s_sleep 8")
        a(f"s_cmp_lt_u32 s{sSPIN}, 40")
        a(f"s_cbranch_scc1 L_tw_poll")
        a(f"v_mov_b32 v{vT2}, 1")
        a(f"v_mov_b32 v{vT3}, 0")
        a(f"global_atomic_cmpswap v{vT1}, v{vT0}, {vr(vT2,2)}, {sr(sDBG,2)} offset:4 sc0 sc1")
        a.wait_vm0()
        a(f"v_readfirstlane_b32 s{sTMP}, v{vT1}")
        a.label("L_tw_have")
        a(f"s_mov_b64 exec, -1")
        a(f"s_lshr_b32 s{sT2}, s{sTMP}, s{sX}")
        a(f"s_and_b32 s{sT2}, s{sT2}, 0x2000")
        a(f"s_add_u32 s{sGR}, s{sGR}, s{sT2}")
        a(f"s_xor_b32 s{sT2}, s{sX}, 1")
        a(f"s_lshr_b32 s{sT2}, s{sTMP}, s{sT2}")
        a(f"s_and_b32 s{sT2}, s{sT2}, 0x2000")
        a(f"s_add_u32 s{sJR}, s{sJR}, s{sT2}")

    def load_weights(self):
        a = self.a
        TA = 40
        OUT = 104
        vW, vWo, vSN, vSO, vPSEL = 112, 113, 114, 115, 116
        vSB = 117
        vAD = [124, 125, 126, 127]
        NB = 5; SZ = 32768
        wf = 'nt' if 'wnt' in self.opts else ''
        a(f"v_lshrrev_b32 v{vT0}, 7, v{vL16}")
        a(f"v_and_b32 v{vT1}, 0x70, v{vL16}")
        a(f"v_lshl_add_u32 v{vW}, v{vT0}, 13, v{vT1}")
        a(f"v_lshrrev_b32 v{vT0}, 8, v{vL16}")
        a(f"v_and_b32 v{vT1}, 0xF0, v{vL16}")
        a(f"s_movk_i32 s{sTMP}, 1280")
        a(f"v_mul_lo_u32 v{vWo}, v{vT0}, s{sTMP}")
        a(f"v_add_u32 v{vWo}, v{vWo}, v{vT1}")
        a(f"v_lshrrev_b32 v{vT2}, 5, v{vT1}")
        a(f"v_lshlrev_b32 v{vSN}, 2, v{vT2}")
        a(f"v_lshrrev_b32 v{vT2}, 1, v{vT0}")
        a(f"v_lshl_add_u32 v{vSN}, v{vT2}, 11, v{vSN}")
        a(f"v_and_b32 v{vT2}, 1, v{vT0}")
        a(f"v_lshl_add_u32 v{vSN}, v{vT2}, 9, v{vSN}")
        a(f"s_lshl_b32 s{sTMP}, s{sW}, 5")
        a(f"v_add_u32 v{vSN}, s{sTMP}, v{vSN}")
        a(f"v_mov_b32 v{vT2}, 0x05040100")
        a(f"v_mov_b32 v{vT3}, 0x07060302")
        a(f"v_and_b32 v{vPSEL}, 16, v{vL16}")
        a(f"v_cmp_eq_u32 vcc, 0, v{vPSEL}")
        a(f"v_cndmask_b32 v{vPSEL}, v{vT3}, v{vT2}, vcc")
        for b in range(4):
            a(f"s_add_u32 s{sTMP}, s{sW}, {b}")
            a(f"s_and_b32 s{sTMP}, s{sTMP}, 3")
            a(f"s_lshl_b32 s{sTMP}, s{sTMP}, 13")
            a(f"v_add_u32 v{vSB+b}, s{sTMP}, v{vSN}")
        a(f"v_lshrrev_b32 v{vT1}, 2, v{vT1}")
        a(f"v_lshl_add_u32 v{vSO}, v{vT0}, 10, v{vT1}")
        a(f"s_lshl_b32 s{sTMP}, s{sW}, 6")
        a(f"v_add_u32 v{vSO}, s{sTMP}, v{vSO}")
        sBQ, sBS, sBO, sLD = sT2, sT3, sT4, sT5
        a(f"s_lshl_b32 s{sBS}, s{sH}, 8")
        a(f"s_lshl_b32 s{sTMP}, s{sU}, 7")
        a(f"s_add_u32 s{sBS}, s{sBS}, s{sTMP}")
        a(f"s_mul_i32 s{sTMP}, s{sW}, {64*8192}")
        a(f"s_add_u32 s{sBQ}, s{sBS}, s{sTMP}")
        a(f"s_mul_i32 s{sTMP}, s{sW}, {32*8192}")
        a(f"s_add_u32 s{sBS}, s{sBS}, s{sTMP}")
        a(f"s_mul_i32 s{sBO}, s{sH}, 163840")
        a(f"s_mul_i32 s{sTMP}, s{sU}, {64*1280}")
        a(f"s_add_u32 s{sBO}, s{sBO}, s{sTMP}")
        a(f"s_mul_i32 s{sTMP}, s{sW}, {16*1280}")
        a(f"s_add_u32 s{sBO}, s{sBO}, s{sTMP}")
        a(f"s_lshl_b32 s{sLD}, s{sW}, 12")
        stages = [(m, i) for m in "qkv" for i in range(3)] + [("o", c) for c in range(5)]
        karg = {"q": 16, "k": 24, "v": 32, "o": 40}
        srds = {"q": 8, "k": 12, "v": 8, "o": 12}
        loaded = set()
        hd = {}
        def dma(n):
            kind, i = stages[n]
            if kind not in loaded:
                self.srd(srds[kind], karg[kind], 5242880); loaded.add(kind)
            buf = (n % NB) * SZ
            hs = []
            big = kind != "o" and i < 2
            for m in range(8 if big else 4):
                if big:
                    a(f"s_lshl_b32 m0, s{sLD}, 1")
                    a(f"s_add_u32 m0, m0, {buf + m*1024}")
                else:
                    a(f"s_add_u32 m0, s{sLD}, {buf + m*1024}")
                if kind == "o":
                    a(f"s_add_u32 s{sTMP}, s{sBO}, {4*m*1280 + i*256}")
                    hs.append(a(f"buffer_load_dwordx4 v{vWo}, {sr(srds[kind],4)}, s{sTMP} offen {wf} lds"))
                elif big:
                    a(f"s_add_u32 s{sTMP}, s{sBQ}, {(256*i + 8*m) * 8192}")
                    hs.append(a(f"buffer_load_dwordx4 v{vW}, {sr(srds[kind],4)}, s{sTMP} offen {wf} lds"))
                else:
                    a(f"s_add_u32 s{sTMP}, s{sBS}, {(512 + 8*m) * 8192}")
                    hs.append(a(f"buffer_load_dwordx4 v{vW}, {sr(srds[kind],4)}, s{sTMP} offen {wf} lds"))
            hd[n] = hs
        def combine(op, lo, hi):
            p = PL[op]
            for r in range(8):
                d = p[1] + r if p[0] == "v" else OUT + r
                a(f"v_perm_b32 v{d}, v{hi+r}, v{lo+r}, v{vPSEL}")
            if p[0] == "a":
                for r in range(8): a(f"v_accvgpr_write_b32 a{p[1]+r}, v{OUT+r}")
        AH = self.opt('ah', NB - 1)
        for n in range(AH): dma(n)
        for n, (kind, i) in enumerate(stages):
            a.wait(hd[n])
            a.wait_lg0()
            a("s_barrier")
            if n + AH < len(stages): dma(n + AH)
            if n == 0 and "lateinit" in self.opts:
                self.init_buffers()
            if n == (5 if "lateinit" in self.opts else 0): self.signal(52)
            buf = (n % NB) * SZ
            if kind in "qkv":
                nb = 4 if i < 2 else 2
                hs = {}
                for b in range(nb):
                    if i < 2: a(f"v_add_u32 v{vAD[b]}, {buf}, v{vSB+b}")
                    else: a(f"v_add_u32 v{vAD[b]}, {buf + b*8192}, v{vSN}")
                for b in range(nb):
                    for hf in range(2):
                        for r in range(8):
                            hs[b] = a(f"ds_read_b32 v{TA + 16*b + 8*hf + r}, v{vAD[b]} offset:{(32*(r>>2) + (r&3) + 8*hf)*128}")
                    if b >= 1:
                        a.wait(hs[b-1])
                        combine((kind, 2*(b-1) + i if i < 2 else 8 + b - 1), TA + 16*(b-1), TA + 16*(b-1) + 8)
                b = nb
                a.wait(hs[b-1])
                combine((kind, 2*(b-1) + i if i < 2 else 8 + b - 1), TA + 16*(b-1), TA + 16*(b-1) + 8)
            else:
                a(f"v_add_u32 v{vAD[0]}, {buf}, v{vSO}")
                for j in range(2):
                    p = PL[("WO", i, j)]
                    for r in range(8):
                        a(f"ds_read_b32 {p[0]}{p[1]+r}, v{vAD[0]} offset:{(32*j + (r&3) + 16*(r>>2))*256}")
        a.wait_all()
        a("s_barrier")

    def kv_ready(self, lab):
        a = self.a
        from engine import blk_of_seg, D_BLK
        a(f"s_min_u32 s{sT2}, s{sKSEG}, 63")
        blk_of_seg(a, sT2, sBL)
        a(f"s_add_u32 s{sKSEG}, s{sKSEG}, 1")
        a(f"s_bitcmp1_b32 s{sRDY}, s{sBL}")
        a(f"s_cbranch_scc1 {lab}_ok")
        a(f"s_mov_b32 s{sSPIN}, 0")
        a.label(lab)
        a(f"global_load_dword v{vBLK}, v{vBA}, {sr(sDBG,2)} sc1")
        a(f"s_add_u32 s{sSPIN}, s{sSPIN}, 1")
        a(f"s_cmp_gt_u32 s{sSPIN}, {SPIN_MAX}")
        a(f"s_cbranch_scc1 L_fail")
        a(f"s_waitcnt vmcnt(0)")
        a(f"v_cmp_le_u32 vcc, 32, v{vBLK}")
        a(f"s_nop 3")
        a(f"s_mov_b32 s{sRDY}, vcc_lo")
        a(f"s_bitcmp1_b32 s{sRDY}, s{sBL}")
        a(f"s_cbranch_scc1 {lab}_ok")
        a(f"s_sleep 4")
        a(f"s_branch {lab}")
        a.label(f"{lab}_ok")
    def kv_check(self):
        a = self.a
        if "full" in self.opts:
            self.nkv = getattr(self, "nkv", 0) + 1
            save = list(a.vm)
            self.kv_ready(f"L_kvr{self.nkv}")
            a.vm = save
    def kv_dma(self):
        a = self.a
        a(f"s_lshl_b32 s{sTMP}, s{sKVM}, 1")
        a(f"s_add_u32 m0, s{sTMP}, s{sKVW}")
        a(f"s_add_u32 s{sKVW}, s{sKVW}, 12288")
        for k in range(4):
            a(f"buffer_load_dwordx4 v{vL16}, {sr(sWS,4)}, s{sKX} offen offset:{k*1024} sc1 lds")
        a(f"s_cmp_eq_u32 s{sKVW}, {L_KV + NKV*12288}")
        a(f"s_cselect_b32 s{sKVW}, {L_KV}, s{sKVW}")
        a(f"s_add_u32 s{sKX}, s{sKX}, {32*8192}")

    def prologue(self):
        a = self.a
        a(f"s_lshl_b32 s{sTMP}, s{sW}, 8")
        a(f"v_add_u32 v{vVW}, s{sTMP}, v{vL4}")
        a(f"s_lshl_b32 s{sKVM}, s{sW}, 11")
        a(f"s_mov_b32 s{sKVW}, {L_KV}")
        a(f"s_mov_b32 s{sKVR}, {L_KV}")
        for _ in range(KVD): self.kv_check()
        a(f"s_cmp_eq_u32 s{sW}, 3")
        a(f"s_cbranch_scc1 L_pro3")
        for _ in range(KVD): self.kv_dma()
        a.label("L_pro3")
        self.srd(sRA, 8, 10240)
        a(f"s_movk_i32 s{sTMP}, 1280")
        a(f"v_bfe_u32 v{vT0}, v{vGG}, 4, 3")
        a(f"v_mul_lo_u32 v{vT0}, v{vT0}, s{sTMP}")
        a(f"v_lshrrev_b32 v{vT1}, 7, v{vGG}")
        a(f"v_lshl_add_u32 v{vT0}, v{vT1}, 4, v{vT0}")
        a(f"buffer_load_dwordx4 {vr(GL,4)}, v{vT0}, {sr(sRA,4)}, 0 offen")
        a(f"buffer_load_dwordx4 {vr(GL+4,4)}, v{vT0}, {sr(sRA,4)}, 0 offen offset:512")
        a(f"v_bfe_u32 v{vT2}, v{vSA}, 4, 3")
        a(f"v_mul_lo_u32 v{vT2}, v{vT2}, s{sTMP}")
        a(f"v_lshrrev_b32 v{vT1}, 7, v{vSA}")
        a(f"v_lshl_add_u32 v{vT2}, v{vT1}, 4, v{vT2}")
        a(f"v_and_b32 v{vT1}, 8, v{vSA}")
        a(f"v_add_u32 v{vT2}, v{vT2}, v{vT1}")
        a(f"buffer_load_dwordx2 {vr(GL+8,2)}, v{vT2}, {sr(sRA,4)}, 0 offen offset:1024")
        for r in range(ZQ, ZQ + 12, 2): a(f"v_mov_b64 {vr(r,2)}, 0")
        for r in range(GB, GB + 10, 2): a(f"v_mov_b64 {vr(r,2)}, 0")
        a.wait_all()
        for i in range(10):
            a(f"v_lshlrev_b32 v{AU+2*i}, 16, v{GL+i}")
            a(f"v_and_b32 v{AU+2*i+1}, 0xFFFF0000, v{GL+i}")
        self.kv_check()

    def poll(self, lab, issue, regs, tag, thr=None, sleep=0):
        a = self.a
        a(f"s_mov_b32 s{sSPIN}, 0")
        a.label(lab)
        issue()
        a(f"s_add_u32 s{sSPIN}, s{sSPIN}, 1")
        a(f"s_cmp_gt_u32 s{sSPIN}, {SPIN_MAX}")
        a(f"s_cbranch_scc1 L_fail")
        a(f"s_waitcnt vmcnt({thr if thr is not None else self.opt('thr', 30)})")
        if sleep: a(f"s_sleep {sleep}")
        for n, r in enumerate(regs): self.ck(r, tag, n == 0)
        a(f"v_and_b32 v{vCK}, 1, v{vCK}")
        a(f"v_cmp_ne_u32 vcc, 0, v{vCK}")
        a(f"s_cbranch_vccnz {lab}")
    def bpoll(self, lab, issue, first, regs, per, tag):
        a = self.a
        a(f"s_mov_b32 s{sSPIN}, 0")
        a(f"s_branch {lab}_c")
        save = list(a.vm)
        a.label(lab)
        issue()
        a.vm = save
        a.label(f"{lab}_c")
        a(f"s_add_u32 s{sSPIN}, s{sSPIN}, 1")
        a(f"s_cmp_gt_u32 s{sSPIN}, {SPIN_MAX}")
        a(f"s_cbranch_scc1 L_fail")
        assert a.vm[-len(first):] == first
        for n, r in enumerate(regs):
            a.wait(first[n // per])
            self.ck(r, tag, n == 0)
        a(f"v_and_b32 v{vCK}, 1, v{vCK}")
        a(f"v_cmp_ne_u32 vcc, 0, v{vCK}")
        a(f"s_cbranch_vccnz {lab}")
    def poison(self, regs, tag):
        self.a(f"s_xor_b32 s{sTMP}, s{tag}, 1")
        for r in regs: self.a(f"v_mov_b32 v{r}, s{sTMP}")
    def ck(self, reg, tag, first):
        if first: self.a(f"v_xor_b32 v{vCK}, s{tag}, v{reg}")
        else: self.a(f"v_bitop3_b32 v{vCK}, v{vCK}, v{reg}, s{tag} bitop3:0xF6")

    def step(self, exit_label):
        a = self.a
        def ex_read():
            return [a(f"ds_read_b128 {vr(EX,4)}, v{vKMW} offset:{L_T + 128}"), a(f"ds_read_b128 {vr(EX+4,4)}, v{vL16} offset:{L_V}")]
        def ex_store():
            if "nokm" not in self.opts:
                a(f"buffer_store_dwordx4 {vr(EX,4)}, v{vL16}, {sr(sWS,4)}, s{sKM} offen sc1")
                a(f"buffer_store_dwordx4 {vr(EX+4,4)}, v{vL16}, {sr(sWS,4)}, s{sVM} offen sc1")
            a(f"s_add_u32 s{sKM}, s{sKM}, {32*2048}")
            a(f"s_add_u32 s{sVM}, s{sVM}, {32*2048}")
        def flag(val):
            a(f"v_mov_b32 v{vBLK}, {val}")
            a(f"s_mov_b64 exec, 1")
            a(f"s_add_u32 s{sTMP}, s{sKF}, s{sKE}")
            a(f"buffer_store_dword v{vBLK}, v{vL4}, {sr(sWS,4)}, s{sTMP} offen sc1")
            a(f"s_mov_b64 exec, -1")
            a(f"s_add_u32 s{sKE}, s{sKE}, 4096")
            a(f"s_cmp_eq_u32 s{sKE}, {6*4096}")
            a(f"s_cselect_b32 s{sKE}, 0, s{sKE}")
        def slow_ops():
            a(f"s_cmp_eq_u32 s{sW}, 3")
            a(f"s_cbranch_scc1 L_so3")
            save = list(a.vm)
            self.kv_dma()
            a.vm = save
            a(f"s_branch L_so_done")
            a.label("L_so3")
            a(f"s_cmp_eq_u32 s{sSTEP}, 0")
            a(f"s_cselect_b32 s{sT2}, {SCR:#x}, s{sKM}")
            a(f"s_cselect_b32 s{sBL}, {SCR:#x}, s{sVM}")
            a(f"s_cselect_b32 s{sTMP}, 0, {32*2048}")
            a(f"buffer_store_dwordx4 {vr(EX,4)}, v{vL16}, {sr(sWS,4)}, s{sT2} offen sc1")
            a(f"buffer_store_dwordx4 {vr(EX+4,4)}, v{vL16}, {sr(sWS,4)}, s{sBL} offen sc1")
            a(f"s_add_u32 s{sKM}, s{sKM}, s{sTMP}")
            a(f"s_add_u32 s{sVM}, s{sVM}, s{sTMP}")
            a(f"s_max_u32 s{sT2}, s{sSTEP}, 1")
            a(f"s_sub_u32 s{sT2}, s{sT2}, 1")
            flag(f"s{sT2}")
            a(f"buffer_load_dword v{vT2}, v{vL4}, {sr(sWS,4)}, s{sTBR} offen sc1")
            a.label("L_so_done")
        def last():
            a.wait_lg0()
            a("s_barrier")
            a(f"s_cmp_lg_u32 s{sW}, 3")
            a(f"s_cbranch_scc1 {exit_label}")
            a(f"s_nop 4")
            a.wait(ex_read())
            ex_store()
            a.wait_vm0()
            if "full" in self.opts:
                flag(64); flag(64)
        self.exports = last
        TREG = [r + 1 for r in [TRQ, TRQ + 2, TRK, TRK + 2, TRQ + 4, TRQ + 6, TRK + 4, TRK + 6]]
        if "tmask" in self.opts: TREG = [r + 1 for r in [TRQ, TRQ + 2, TRQ + 4, TRQ + 6, TRK, TRK + 2, TRK + 4, TRK + 6]]
        RREG = [RL + 2*i + 1 for i in range(8)]
        GREG = [GL + 2*i + 1 for i in range(5)]
        areg = lambda k: GL + 4 * k if k < 2 else AR + 4 * (k - 2)
        self.stamp(0)
        def add(lo, hi):
            for i in range(lo, hi):
                a(f"v_dot2_f32_bf16 v{AU+2*i}, v{GB+i}, v{vS10}, v{AU+2*i}")
                a(f"v_dot2_f32_bf16 v{AU+2*i+1}, v{GB+i}, v{vS01}, v{AU+2*i+1}")
        def pk(lo, hi):
            for i in range(lo, hi): a(f"v_cvt_pk_bf16_f32 v{GL+i}, v{AU+2*i}, v{AU+2*i+1}")
        add(0, 6); pk(0, 4)
        a(f"ds_write_b128 v{vGG}, {vr(GL,4)} offset:{L_IA}")
        add(6, 10)
        self.smf(("q", 0), ZQ, areg(0))
        pk(4, 8)
        a(f"ds_write_b128 v{vGG}, {vr(GL+4,4)} offset:{L_IA+4096}")
        self.smf(("k", 0), ZK, areg(0))
        pk(8, 10)
        a(f"ds_write_b64 v{vSA}, {vr(GL+8,2)} offset:{L_IA+8192}")
        self.smf(("q", 1), ZQ, areg(1))
        self.smf(("k", 1), ZK, areg(1))
        a(f"s_lshl_b32 s{sTMP}, s{sU}, 12")
        a(f"s_add_u32 s{sT2}, s{sTMP}, s{sKVR}")
        a(f"v_add_u32 v{vKL}, s{sT2}, v{vL16}")
        a.wait_lg0()
        a("s_barrier")
        self.stamp("b1")
        ah = {}
        for k in range(2, 10):
            if k < 8: ah[k] = a(f"ds_read_b128 {vr(areg(k),4)}, v{vAG + k//2 - 1} offset:{L_IA + (k%2)*4096}")
            else: ah[k] = a(f"ds_read_b128 {vr(areg(k),4)}, v{vL16} offset:{L_IA + k*1024}")
        self.smf(("v", 0), V, areg(0))
        a(f"s_xor_b32 s{sTMP}, s{sTMP}, 0x1000")
        a(f"s_add_u32 s{sT2}, s{sTMP}, s{sKVR}")
        a(f"v_add_u32 v{vKR}, s{sT2}, v{vL16}")
        self.smf(("v", 1), V, areg(1))
        a(f"s_lshr_b32 s{sTMP}, s{sKVM}, 1")
        a(f"s_add_u32 s{sT2}, s{sTMP}, s{sKVR}")
        a(f"v_add_u32 v{vVX}, s{sT2}, v{vL16}")
        for k in range(2, 10):
            a.wait(ah[k])
            self.smf(("q", k), ZQ, areg(k))
            kk = k - 2
            if kk == 5: a(f"s_waitcnt vmcnt(0)")
            a(f"ds_read_b128 {vr(KXR+4*kk,4)}, v{vKL if kk < 4 else vKR} offset:{(kk%4)*1024}")
            self.smf(("k", k), ZK, areg(k))
            if "tmask" in self.opts: a(f"v_mov_b32 v{TREG[kk]}, s{sTAG0}")
        self.stamp(1)
        vs = {"done": 2}
        def vfill(n):
            for _ in range(n):
                k = vs["done"]
                if k >= 10: return
                self.smf(("v", k), V, areg(k))
                vs["done"] += 1
        vfill(2)
        for r in range(4): a(f"v_permlane32_swap_b32 v{ZQ+r}, v{ZK+r}")
        a(f"v_pk_add_f32 {vr(ZQ,2)}, {vr(ZQ,2)}, {vr(ZK,2)}")
        a(f"v_pk_add_f32 {vr(ZQ+2,2)}, {vr(ZQ+2,2)}, {vr(ZK+2,2)}")
        a(f"v_cvt_pk_bf16_f32 v{TT}, v{ZQ}, v{ZQ+1}")
        a(f"v_cvt_pk_bf16_f32 v{TT+1}, v{ZQ+2}, v{ZQ+3}")
        a(f"ds_read_b128 {vr(VXR,4)}, v{vVX} offset:8192")
        a(f"v_mfma_f32_16x16x16_bf16 {vr(ZK,4)}, {vr(TT,2)}, {vr(vID0,2)}, 0")
        vfill(2)
        a(f"v_cvt_pk_bf16_f32 v{TT+1}, v{ZK+2}, v{ZK+3}")
        a(f"v_cvt_pk_bf16_f32 v{TT+2}, v{ZK}, v{ZK+1}")
        a(f"v_and_or_b32 v{TT+3}, v{TT+1}, -2, s{sTAG0}")
        a(f"buffer_store_dwordx2 {vr(TT+2,2)}, v{vTW}, {sr(sWS,4)}, s{sTBW} offen")
        a(f"v_mov_b32 v{TT}, v{TT+2}")
        a(f"ds_write_b64 v{vTW}, {vr(TT,2)} offset:{L_T}")
        self.stamp("ts")
        vfill(2)
        a.wait_lg0()
        a("s_barrier")
        self.stamp(2)
        hq = [a(f"ds_read_b128 {vr(TLQ+4*k,4)}, v{vTQ} offset:{L_T + k*1024}") for k in range(2)]
        hkk = [a(f"ds_read_b128 {vr(TLK+4*k,4)}, v{vTK} offset:{L_T + k*1024}") for k in range(2)]
        def tissue():
            if "tmask" not in self.opts:
                return [a(f"buffer_load_dwordx4 {vr(TRQ,4)}, v{vTQ}, {sr(sWS,4)}, s{sTBR} offen sc1"),
                        a(f"buffer_load_dwordx4 {vr(TRK,4)}, v{vTK}, {sr(sWS,4)}, s{sTBR} offen sc1"),
                        a(f"buffer_load_dwordx4 {vr(TRQ+4,4)}, v{vTQ}, {sr(sWS,4)}, s{sTBR} offen offset:1024 sc1"),
                        a(f"buffer_load_dwordx4 {vr(TRK+4,4)}, v{vTK}, {sr(sWS,4)}, s{sTBR} offen offset:1024 sc1")]
            a(f"s_mov_b64 exec, {sr(sMLO,2)}")
            h0 = a(f"buffer_load_dwordx4 {vr(TRQ,4)}, v{vTQ}, {sr(sWS,4)}, s{sTBR} offen sc1")
            h2 = a(f"buffer_load_dwordx4 {vr(TRQ+4,4)}, v{vTQ}, {sr(sWS,4)}, s{sTBR} offen offset:1024 sc1")
            a(f"s_mov_b64 exec, {sr(sM40,2)}")
            h1 = a(f"buffer_load_dwordx4 {vr(TRK,4)}, v{vTK}, {sr(sWS,4)}, s{sTBR} offen sc1")
            h3 = a(f"buffer_load_dwordx4 {vr(TRK+4,4)}, v{vTK}, {sr(sWS,4)}, s{sTBR} offen offset:1024 sc1")
            a(f"s_mov_b64 exec, -1")
            return [h0, h2, h1, h3]
        vfill(2)
        if self.opt("t1", 0) == 0: ths = tissue()
        def smm(Q, K, kx, first):
            c = lambda d: "0" if first else vr(d, 4)
            a(f"v_mfma_f32_16x16x32_bf16 {vr(D3,4)}, {vr(kx,4)}, {vr(Q,4)}, {c(D3)}")
            a(f"v_mfma_f32_16x16x32_bf16 {vr(D3+4,4)}, {vr(kx+4,4)}, {vr(Q,4)}, {c(D3+4)}")
            a(f"v_mfma_f32_16x16x32_bf16 {vr(D3+8,4)}, {vr(K,4)}, {vr(Q,4)}, {c(D3+8)}")
        a.wait(hq, hkk)
        smm(TLQ, TLK, KXR, True)
        if self.opt("t1", 0) == 1: ths = tissue()
        if self.opt("so", 0) == 1: slow_ops()
        smm(TLQ + 4, TLK + 4, KXR + 8, False)
        a(f"v_permlane32_swap_b32 v{V}, v{V+2}")
        a(f"v_permlane32_swap_b32 v{V+1}, v{V+3}")
        a(f"v_pk_add_f32 {vr(V,2)}, {vr(V,2)}, {vr(V+2,2)}")
        a(f"v_cvt_pk_bf16_f32 v{VP}, v{V}, v{V+1}")
        a(f"ds_write_b32 v{vVW}, v{VP} offset:{L_V}")
        for c in range(5):
            a(f"v_mov_b64 {vr(ACC[c],2)}, 0")
            a(f"v_mov_b64 {vr(ACC[c]+2,2)}, 0")
        a(f"v_mov_b64 {vr(V,2)}, 0")
        a(f"v_mov_b64 {vr(V+2,2)}, 0")
        for r in range(4): a(f"v_mov_b32 v{vONE+r}, 0x3F803F80")
        a(f"v_mov_b64 {vr(ZQ,2)}, 0")
        a(f"v_mov_b64 {vr(ZQ+2,2)}, 0")
        a(f"v_mov_b64 {vr(ZK,2)}, 0")
        a(f"v_mov_b64 {vr(ZK+2,2)}, 0")
        a(f"s_add_u32 s{sKVR}, s{sKVR}, 12288")
        a(f"s_cmp_eq_u32 s{sKVR}, {L_KV + NKV*12288}")
        a(f"s_cselect_b32 s{sKVR}, {L_KV}, s{sKVR}")
        a(f"s_mov_b32 s{sSPIN}, 1")
        for n, r in enumerate(TREG):
            a.wait(ths[n // 2])
            self.ck(r, sTAG0, n == 0)
        a(f"v_and_b32 v{vCK}, 1, v{vCK}")
        a(f"v_cmp_ne_u32 vcc, 0, v{vCK}")
        a(f"s_cbranch_vccz L_tok")
        save = list(a.vm)
        self.poll("L_tpoll", tissue, TREG, sTAG0, thr=0)
        a.vm = save
        a.label("L_tok")
        if self.stamps: a(f"s_mov_b32 s{sT5}, s{sSPIN}")
        self.stamp(3)
        smm(TRQ, TRK, KXR + 16, False)
        smm(TRQ + 4, TRK + 4, KXR + 24, False)
        if self.opt("so", 0) == 0: slow_ops()
        a(f"s_cmp_eq_u32 s{sSTEP}, 63")
        a(f"s_cbranch_scc1 L_last")
        M, M2 = vT0, vT3
        S = [D3, D3+1, D3+2, D3+3, D3+8]
        for r in range(4):
            a(f"v_mov_b32_dpp v{D3+r}, v{D3+4+r} row_ror:8 row_mask:0xf bank_mask:0xc")
        a(f"v_max3_f32 v{M}, v{S[0]}, v{S[1]}, v{S[2]}")
        a(f"v_mov_b32_dpp v{D3+8}, v{D3+9} row_ror:8 row_mask:0xf bank_mask:0xc")
        a(f"v_max3_f32 v{M}, v{M}, v{S[3]}, v{S[4]}")
        a(f"v_max_f32_dpp v{M}, v{M}, v{M} row_ror:8 row_mask:0xf bank_mask:0xf")
        a(f"v_mov_b32 v{M2}, v{M}")
        a(f"v_permlane16_swap_b32 v{M}, v{M2}")
        a(f"v_max_f32 v{M}, v{M}, v{M2}")
        a(f"v_mov_b32 v{M2}, v{M}")
        a(f"v_permlane32_swap_b32 v{M}, v{M2}")
        a(f"v_max_f32 v{M}, v{M}, v{M2}")
        a(f"v_mul_f32 v{M}, s{sC}, v{M}")
        for s_ in S: a(f"v_fma_f32 v{s_}, v{s_}, s{sC}, -v{M}")
        for s_ in S: a(f"v_exp_f32 v{s_}, v{s_}")
        P = PP; PM = PP + 4
        Ls = vT0
        a(f"v_cvt_pk_bf16_f32 v{P}, v{S[0]}, v{S[1]}")
        a(f"v_cvt_pk_bf16_f32 v{P+1}, v{S[2]}, v{S[3]}")
        a(f"v_mov_b32_dpp v{vT2}, v{S[4]} row_ror:8 row_mask:0xf bank_mask:0xf")
        a(f"v_mov_b32_dpp v{P+2}, v{P} row_ror:8 row_mask:0xf bank_mask:0xf")
        a(f"v_mov_b32_dpp v{P+3}, v{P+1} row_ror:8 row_mask:0xf bank_mask:0xf")
        a(f"v_cvt_pk_bf16_f32 v{PM}, v{S[4]}, v{vT2}")
        a(f"s_nop 0")
        a(f"v_mfma_f32_16x16x32_bf16 {vr(D3,4)}, {vr(vONE,4)}, {vr(P,4)}, 0")
        a(f"v_mfma_f32_16x16x16_bf16 {vr(D3+8,4)}, {vr(vONE,2)}, {vr(PM,2)}, 0")
        a(f"v_mfma_f32_16x16x32_bf16 {vr(DO,4)}, {vr(VXR,4)}, {vr(P,4)}, 0")
        a(f"v_mfma_f32_16x16x16_bf16 {vr(D3+4,4)}, {vr(VP,2)}, {vr(PM,2)}, 0")
        self.stamp(4)
        a(f"v_add_f32 v{Ls}, v{D3}, v{D3+8}")
        a(f"v_rcp_f32 v{Ls}, v{Ls}")
        a(f"v_pk_add_f32 {vr(DO,2)}, {vr(DO,2)}, {vr(D3+4,2)}")
        a(f"v_pk_add_f32 {vr(DO+2,2)}, {vr(DO+2,2)}, {vr(D3+6,2)}")
        a(f"s_mov_b64 exec, {sr(sMLO,2)}")
        a(f"v_pk_mul_f32 {vr(DO,2)}, {vr(DO,2)}, {vr(Ls,2)} op_sel_hi:[1,0]")
        a(f"v_pk_mul_f32 {vr(DO+2,2)}, {vr(DO+2,2)}, {vr(Ls,2)} op_sel_hi:[1,0]")
        a(f"v_cvt_pk_bf16_f32 v{DO}, v{DO}, v{DO+1}")
        a(f"v_cvt_pk_bf16_f32 v{DO+1}, v{DO+2}, v{DO+3}")
        a(f"ds_write_b64 v{vOW}, {vr(DO,2)} offset:{L_O}")
        a(f"s_mov_b64 exec, -1")
        self.stamp("pb3")
        a.wait_lg0()
        a("s_barrier")
        self.stamp("b3")
        oh = [a(f"ds_read_b128 {vr(AO+4*j,4)}, v{vA} offset:{L_O + j*512}") for j in range(2)]
        def publish(c):
            A_ = ACC[c]
            a(f"v_cvt_pk_bf16_f32 v{A_}, v{A_}, v{A_+1}")
            a(f"v_cvt_pk_bf16_f32 v{A_+1}, v{A_+2}, v{A_+3}")
            a(f"v_and_or_b32 v{A_+1}, v{A_+1}, -2, s{sTAG0}")
            a(f"buffer_store_dwordx2 {vr(A_,2)}, v{vPS}, {sr(sWS,4)}, s{sPB0} offen offset:{c*512}")
        for c in range(5):
            for j in range(2):
                a.wait(oh[j])
                self.smf(("WO", c, j), ACC[c], AO + 4 * j)
            if c >= 1: publish(c - 1)
        publish(4)
        self.stamp(5)
        a(f"s_cmp_eq_u32 s{sHASJ}, 0")
        a(f"s_cbranch_scc1 L_red_skip")
        D = D3; DB = D3 + 4
        def rissue():
            return [a(f"buffer_load_dwordx2 {vr(RL+2*i,2)}, v{vRD}, {sr(sWS,4)}, s{sRD+i} offen sc1") for i in range(8)]
        a(f"s_cmp_eq_u32 s{sW}, 2")
        a(f"s_cbranch_scc1 L_rs_done")
        if self.opt("rs1", 2): a(f"s_sleep {self.opt('rs1', 2)}")
        a(f"s_cmp_eq_u32 s{sW}, 1")
        a(f"s_cbranch_scc1 L_rs_done")
        if self.opt("rs0", 2): a(f"s_sleep {self.opt('rs0', 2)}")
        a.label("L_rs_done")
        if self.opt("rs2", 0): a(f"s_sleep {self.opt('rs2', 0)}")
        a(f"s_mov_b32 s{sSPIN}, 0")
        self.stamp("r0")
        a.label("L_red")
        hs = rissue()
        self.stamp("r1")
        a(f"s_add_u32 s{sSPIN}, s{sSPIN}, 1")
        a(f"s_cmp_gt_u32 s{sSPIN}, {SPIN_MAX}")
        a(f"s_cbranch_scc1 L_fail")
        for i in range(4):
            a.wait(hs[2*i+1])
            if i == 0: self.stamp("r2")
            if i == 3: self.stamp("r3")
            self.ck(RL + 4*i + 1, sTAG0, i == 0)
            self.ck(RL + 4*i + 3, sTAG0, False)
            a(f"v_mfma_f32_16x16x32_bf16 {vr(D,4)}, {vr(RL+4*i,4)}, {vr(vSEL4,4)}, {vr(D,4) if i else 0}")
        a(f"v_and_b32 v{vCK}, 1, v{vCK}")
        a(f"v_cmp_ne_u32 vcc, 0, v{vCK}")
        a(f"s_cbranch_vccnz L_red")
        if self.stamps: a(f"s_mov_b32 s{sT4}, s{sSPIN}")
        a(f"v_cvt_pk_bf16_f32 v{D}, v{D}, v{D+1}")
        a(f"v_cvt_pk_bf16_f32 v{D+1}, v{D+2}, v{D+3}")
        if "nobp" in self.opts:
            a(f"v_and_or_b32 v{D+1}, v{D+1}, -2, s{sTAG1}")
            a(f"s_mov_b64 exec, {sr(sMPB,2)}")
            a(f"buffer_store_dwordx2 {vr(D,2)}, v{vPB}, {sr(sWS,4)}, s{sJR} offen sc1")
            a(f"buffer_store_dwordx2 {vr(D,2)}, v{vPB}, {sr(sWS,4)}, s{sJL} offen")
            a(f"s_mov_b64 exec, -1")
        else:
            a(f"ds_bpermute_b32 v{DB}, v{vBP}, v{D}")
            a(f"v_and_or_b32 v{D+1}, v{D+1}, -2, s{sTAG1}")
            a(f"ds_bpermute_b32 v{DB+1}, v{vBP}, v{D+1}")
            a(f"s_mov_b64 exec, 0xFFFF")
            a.wait_lg0()
            a(f"buffer_store_dwordx2 {vr(DB,2)}, v{vXA}, {sr(sWS,4)}, s{sJR} offen sc1")
            a(f"buffer_store_dwordx2 {vr(DB,2)}, v{vXA}, {sr(sWS,4)}, s{sJL} offen")
            a(f"s_mov_b64 exec, -1")
        a.label("L_red_skip")
        a(f"s_cmp_lg_u32 s{sW}, 3")
        a(f"s_cbranch_scc1 L_nex")
        ex_read()
        a.wait_lg0()
        a.label("L_nex")
        self.stamp(6)
        a("s_barrier")
        self.stamp("b0")
        GREGB = [GB + 2*i + 1 for i in range(5)]
        def gissue(R, sb):
            return lambda: [a(f"buffer_load_dwordx4 {vr(R,4)}, v{vG0}, {sr(sWS,4)}, s{sb} offen sc1"),
                    a(f"buffer_load_dwordx4 {vr(R+4,4)}, v{vG1}, {sr(sWS,4)}, s{sb} offen sc1"),
                    a(f"buffer_load_dwordx2 {vr(R+8,2)}, v{vG2}, {sr(sWS,4)}, s{sb} offen sc1")]
        self.poison(GREG + GREGB, sTAG1)
        self.kv_check()
        if self.opt("ad", 4): a(f"s_sleep {self.opt('ad', 4)}")
        gissue(GL, sGL)()
        if self.opt("bd", 3): a(f"s_sleep {self.opt('bd', 3)}")
        def both():
            gissue(GB, sGR)()
        gissue(GB, sGR)()
        a(f"s_waitcnt vmcnt(3)")
        for n, r in enumerate(GREG): self.ck(r, sTAG1, n == 0)
        a(f"v_and_b32 v{vCK}, 1, v{vCK}")
        a(f"v_cmp_ne_u32 vcc, 0, v{vCK}")
        a(f"s_mov_b32 s{sSPIN}, 0")
        a(f"s_cbranch_vccz L_ga_ok")
        self.poll("L_ga", gissue(GL, sGL), GREG, sTAG1, thr=0)
        a.label("L_ga_ok")
        if self.stamps: a(f"s_mov_b32 s{sT3}, s{sSPIN}")
        self.stamp("ga")
        x2 = self.opt("x2", 1)
        if x2: gissue(GB, sGR)()
        for i in range(10):
            a(f"v_lshlrev_b32 v{AU+2*i}, 16, v{GL+i}")
            a(f"v_and_b32 v{AU+2*i+1}, 0xFFFF0000, v{GL+i}")
        a(f"s_waitcnt vmcnt({3 if x2 else 0})")
        for n, r in enumerate(GREGB): self.ck(r, sTAG1, n == 0)
        a(f"v_and_b32 v{vCK}, 1, v{vCK}")
        a(f"v_cmp_ne_u32 vcc, 0, v{vCK}")
        a(f"s_mov_b32 s{sSPIN}, 0")
        a(f"s_cbranch_vccz L_gb_ok")
        self.poll("L_gb", gissue(GB, sGR), GREGB, sTAG1, thr=self.opt("gthr", 3))
        a.label("L_gb_ok")
        self.stamp("gb")
        self.stamp(7)
        a(f"s_add_u32 s{sSTEP}, s{sSTEP}, 1")
        a(f"s_and_b32 s{sTAG0}, s{sSTEP}, 1")
        a(f"s_bfe_u32 s{sTAG1}, s{sSTEP}, 0x10001")
        for r in (sJL, sGL): a(f"s_add_u32 s{r}, s{r}, s{sSLOT}")
        for r in (sJR, sGR): a(f"s_add_u32 s{r}, s{r}, 32768")
        a(f"s_sub_u32 s{sSLOT}, 0, s{sSLOT}")
        if self.stamps:
            a.wait_lg0()
            for i in range(8):
                a(f"v_mov_b32 v{TLQ+i}, s{sTM+2*i}")
            for i, r in enumerate([sT5, sT4, sT3, sSPIN]):
                a(f"v_mov_b32 v{TLQ+8+i}, s{r}")
            a(f"v_mov_b32 v{vT1}, 0")
            a(f"s_mov_b64 exec, 1")
            for i in range(3):
                a(f"buffer_store_dwordx4 {vr(TLQ+4*i,4)}, v{vT1}, {sr(sWS,4)}, s{sSTAMP} offen offset:{16*i}")
            a(f"s_mov_b64 exec, -1")
            a(f"s_add_u32 s{sSTAMP}, s{sSTAMP}, 128")

def team_code(a, stamps, opts, exit_label="L_end"):
    t = Team(a, stamps, opts)
    t.setup()
    if "lateinit" not in opts: t.init_buffers()
    if "full" not in opts:
        a(f"s_or_b32 s{sTMP}, s{sX}, s{sR}")
        a(f"s_or_b32 s{sTMP}, s{sTMP}, s{sW}")
        a(f"s_cmp_lg_u32 s{sTMP}, 0")
        a(f"s_cbranch_scc1 L_noprobe")
        probe(a, vT0, opts)
        a.label("L_noprobe")
    if stamps: a(f"s_memtime {sr(sTM+16,2)}")
    t.load_weights()
    t.wait_team(52)
    if stamps:
        a(f"s_memtime {sr(sTM,2)}")
        a.wait_lg0()
        a(f"s_sub_u32 s{sTMP}, s{sTM}, s{sTM+16}")
        a(f"v_mov_b32 v{vT0}, s{sTMP}")
        a(f"v_mov_b32 v{vT1}, 0")
        a(f"buffer_store_dword v{vT0}, v{vT1}, {sr(sWS,4)}, s{sSTAMP} offen offset:64")
        a.wait_vm0()
    if "rt" in opts:
        import gen_full
        gen_full.mark(a, 5, True, 40, 41)
    if "dbgt" in opts: a("s_memrealtime s[92:93]")
    t.prologue()
    if "dbgt" in opts: a("s_memrealtime s[94:95]")
    if "rt" in opts: gen_full.mark(a, 1, True, 60, 61)
    a.label("L_loop")
    t.step(exit_label)
    a("s_branch L_loop")
    a.label("L_last")
    t.exports()
    a(f"s_branch {exit_label}")

def election(a):
    a("s_cmp_ge_u32 s2, 256")
    a("s_cbranch_scc1 L_end")
    a(f"s_load_dwordx2 {sr(sDBG,2)}, s[0:1], 64")
    a(f"s_load_dwordx2 {sr(sWS,2)}, s[0:1], 72")
    a(f"s_getreg_b32 s{sXCC}, hwreg(HW_REG_XCC_ID)")
    a(f"s_and_b32 s{sXCC}, s{sXCC}, 7")
    a(f"v_lshrrev_b32 v1, 6, v0")
    a(f"v_readfirstlane_b32 s{sW}, v1")
    a("s_waitcnt lgkmcnt(0)")
    a(f"s_and_b32 s{sWS+1}, s{sWS+1}, 0xffff")
    a(f"s_mov_b32 s{sWS+2}, {WS_BYTES}")
    a(f"s_mov_b32 s{sWS+3}, 0x00020000")
    a(f"v_mov_b32 v5, 0")
    a(f"s_cmp_lg_u32 s{sW}, 0")
    a("s_cbranch_scc1 L_el_done")
    a("s_mov_b64 exec, 1")
    a(f"s_lshl_b32 s{sTMP}, s{sXCC}, 2")
    a(f"v_mov_b32 v1, s{sTMP}")
    a(f"v_mov_b32 v2, 1")
    a(f"global_atomic_add v3, v1, v2, {sr(sDBG,2)} sc0 sc1")
    a.wait_vm0()
    a(f"v_readfirstlane_b32 s{sR}, v3")
    a(f"s_lshr_b32 s{sT2}, s{sXCC}, 1")
    a(f"s_cmp_lg_u32 s{sR}, 31")
    a("s_cbranch_scc1 L_el_poll0")
    a(f"s_lshl_b32 s{sTMP}, s{sT2}, 2")
    a(f"s_add_u32 s{sTMP}, s{sTMP}, 36")
    a(f"v_mov_b32 v1, s{sTMP}")
    a(f"global_atomic_add v3, v1, v2, {sr(sDBG,2)} sc0 sc1")
    a.wait_vm0()
    a(f"v_readfirstlane_b32 s{sTMP}, v3")
    a(f"s_cmp_lg_u32 s{sTMP}, 1")
    a("s_cbranch_scc1 L_el_poll0")
    a(f"s_add_u32 s{sTMP}, s{sT2}, 1")
    a(f"v_mov_b32 v1, 32")
    a(f"v_mov_b32 v2, s{sTMP}")
    a(f"v_mov_b32 v3, 0")
    a(f"global_atomic_cmpswap v1, v[2:3], {sr(sDBG,2)} sc1")
    a.label("L_el_poll0")
    a(f"v_mov_b32 v1, 32")
    a(f"s_mov_b32 s{sSPIN}, 0")
    a.label("L_el_poll")
    a(f"global_load_dword v2, v1, {sr(sDBG,2)} sc1")
    a(f"s_add_u32 s{sSPIN}, s{sSPIN}, 1")
    a(f"s_mov_b32 s{sTMP}, 0")
    a(f"s_cmp_gt_u32 s{sSPIN}, {SPIN_MAX}")
    a("s_cbranch_scc1 L_el_got")
    a.wait_vm0()
    a(f"v_readfirstlane_b32 s{sTMP}, v2")
    a(f"s_cmp_eq_u32 s{sTMP}, 0")
    a("s_cbranch_scc1 L_el_poll")
    a.label("L_el_got")
    a.wait_vm0()
    a(f"s_add_u32 s{sT2}, s{sT2}, 1")
    a(f"s_cmp_eq_u32 s{sTMP}, s{sT2}")
    a(f"s_cselect_b32 s{sR}, s{sR}, 255")
    a(f"s_min_u32 s{sR}, s{sR}, 255")
    a(f"v_mov_b32 v2, s{sR}")
    a(f"ds_write_b32 v5, v2")
    a.wait_lg0()
    a("s_mov_b64 exec, -1")
    a.label("L_el_done")
    a("s_barrier")
    a(f"ds_read_b32 v2, v5")
    a.wait_lg0()
    a(f"v_readfirstlane_b32 s{sR}, v2")
    a("s_barrier")
    a(f"s_and_b32 s{sX}, s{sXCC}, 1")
    a(f"s_cmp_ge_u32 s{sR}, 32")
    a("s_cbranch_scc1 L_end")

def probe(a, v0, opts=()):
    a(f"s_mov_b64 exec, 1")
    a(f"s_sub_u32 s{sT5}, 0, s{sWS}")
    a(f"s_and_b32 s{sT5}, s{sT5}, 0x1FFFFF")
    a(f"s_lshl_b32 s{sTMP}, s{sXCC}, 15")
    a(f"s_add_u32 s{sT5}, s{sT5}, s{sTMP}")
    a(f"s_mov_b32 s{sTM+4}, 1")
    ad = lambda blk, hf, rep: IMGR + blk*0x400000 + 0x5000 + hf*8192 + rep*256
    for blk in range(2):
        for rep in range(3):
            for hf in range(2):
                a(f"v_mov_b32 v{v0}, {ad(blk, hf, rep):#x}")
                a(f"buffer_store_dword v{v0}, v{v0}, {sr(sWS,4)}, s{sT5} offen sc1")
    a.wait_vm0()
    for blk in range(2):
        a(f"s_mov_b32 s{sT2}, -1")
        a(f"s_mov_b32 s{sT3}, -1")
        for rep in range(3):
            for hf in range(2):
                a(f"v_mov_b32 v{v0}, {ad(blk, hf, rep):#x}")
                a(f"s_memtime {sr(sTM,2)}")
                a(f"s_waitcnt lgkmcnt(0)")
                a(f"buffer_load_dword v{v0+1}, v{v0}, {sr(sWS,4)}, s{sT5} offen sc1")
                a.wait_vm0()
                a(f"s_memtime {sr(sTM+2,2)}")
                a(f"s_waitcnt lgkmcnt(0)")
                a(f"s_sub_u32 s{sTMP}, s{sTM+2}, s{sTM}")
                a(f"s_min_u32 s{sT2+hf}, s{sT2+hf}, s{sTMP}")
        a(f"s_cmp_lt_u32 s{sT3}, s{sT2}")
        a(f"s_cselect_b32 s{sTMP}, {0x2000 << blk:#x}, 0")
        a(f"s_or_b32 s{sTM+4}, s{sTM+4}, s{sTMP}")
    if "far" in opts: a(f"s_xor_b32 s{sTM+4}, s{sTM+4}, 0x6000")
    a(f"v_mov_b32 v{v0}, 56")
    a(f"v_mov_b32 v{v0+2}, s{sTM+4}")
    a(f"v_mov_b32 v{v0+3}, 0")
    a(f"global_atomic_cmpswap v{v0}, {vr(v0+2,2)}, {sr(sDBG,2)} sc1")
    a.wait_vm0()
    a(f"s_mov_b64 exec, -1")
```

```python
from asmlib import *
import struct

KXI   = 0x0000000
VXI   = 0x1000000
QXI   = 0x2000000
KMI   = 0x3000000
VMI   = 0x3400000
PB    = 0x4000000
PST = 10240 + 128
PBX = 0x80000
IMGL  = 0x41A0000
IMGR  = 0x4400000
TB    = 0x4120000
PROBE = 0x4160000
KF = 0x4170000
EF = 0x4180000
SCR = 0x4190000
STAMP = 0x5000000
WS_BYTES = 268435456

L_IA = 0
L_IB = 10240
L_T  = 20480
L_O  = 22528
L_V  = 23552
L_KV = 24576
NKV = 4
KVD = 2
LDS_BYTES = 163840

vL16, vA, vGW, vAV, vRD, vPB, vPS, vIDX = 0, 1, 2, 3, 4, 5, 6, 7
vID0 = 8; vGG = 10; vSA = 11
vXA = 188
vBLK = 190
vBA = 191
vKMW = 189
vTW, vTQ, vTK, vOW = 12, 13, 14, 15
vG1, vG2 = 16, 17
vKL, vKR, vVX = 19, 20, 21
vL4 = 22
vCK = 23
vT0, vT1, vT2, vT3 = 24, 25, 26, 27
ZQ, ZK, V = 28, 32, 36
GL = 40
AR = 52
KXR = 84
TLQ, TLK, TRQ, TRK = 116, 124, 132, 140
AU = 84
GB = 104
VXR = 148
D3 = 152
TT = 164
DO = 168
PP = 172
VP = 178
vONE = 116
vAG = 180
vBP = 183
vSEL4 = 184
RESV0 = 192
ACC = [AR, AR + 4, AR + 8, AR + 12, AR + 16]
AO = AR + 20
RL = TLQ
vVW = 50
EX = 168
vG0 = 2
vS10, vS01 = 3, 18

sWS = 4; sRA = 8; sDBG = 16
sXCC, sH, sW, sSTEP, sSPIN = 18, 19, 20, 21, 22
sTMP = 23
sX, sR, sU = 24, 25, 26
sKX, sVX, sKM, sVM = 28, 29, 30, 31
sPB0 = 32
sHASJ = 33
sRD = 34
sJL, sJR = 42, 43
sGL, sGR = 44, 45
sTBW, sTBR = 46, 47
sMLO = 48; sMHI = 50; sMPB = 52
sTAG0, sTAG1 = 54, 55
sONE = 56
sC = 58
sSLOT = 59
sKVW, sKVR = 60, 61
sT2, sT3, sT4, sT5 = 62, 63, 64, 65
sSTAMP = 66
sM40 = 68
sGL1, sGL2 = 70, 71
sPT = 72
sKSEG = 76
sRDY = 77
sBL = 78
sKF = 79
sKE = 80
sIB = 81
sKVM = 67
sTM = 84
SPIN_MAX = 200000

def fbits(x):
    return struct.unpack("<I", struct.pack("<f", x))[0]

OPS = [(m, i) for m in "qkv" for i in range(10)] + [("WO", c, j) for c in range(5) for j in range(2)]
PL = {}
for n, op in enumerate(OPS):
    PL[op] = ("a", n * 8) if n < 32 else ("v", RESV0 + (n - 32) * 8)

def breg(op):
    p = PL[op]
    return ar(p[1], 8) if p[0] == "a" else vr(p[1], 8)

class Team:
    def __init__(self, a, stamps=False, opts=()):
        self.a = a
        self.stamps = stamps
        self.opts = set(opts)
    def opt(self, name, default):
        o = [x for x in self.opts if x.startswith(name + "=")]
        return int(o[0][len(name) + 1:]) if o else default
    def smf(self, op, D, A):
        self.a(f"v_smfmac_f32_16x16x64_bf16 {vr(D,4)}, {vr(A,4)}, {breg(op)}, v{vIDX}")
    def stamp(self, i):
        sel = [o for o in self.opts if o.startswith("st=")]
        names = sel[0][3:].split("/") if sel else ["0", "1", "2", "3", "4", "5", "6", "7"]
        if str(i) not in names or not self.stamps: return
        self.a(f"s_memtime {sr(sTM + 2*names.index(str(i)), 2)}")
    def srd(self, dst, karg_off, nbytes):
        a = self.a
        a(f"s_load_dwordx2 {sr(dst,2)}, s[0:1], {karg_off}")
        a(f"s_waitcnt lgkmcnt(0)")
        a(f"s_and_b32 s{dst+1}, s{dst+1}, 0xffff")
        a(f"s_mov_b32 s{dst+2}, {nbytes}")
        a(f"s_mov_b32 s{dst+3}, 0x00020000")

    def setup(self):
        a = self.a
        L, N, Gg, Tt, TH = 100, 101, 102, 103, 104
        a(f"v_and_b32 v{L}, 63, v0")
        a(f"v_and_b32 v{N}, 15, v{L}")
        a(f"v_lshrrev_b32 v{Gg}, 4, v{L}")
        a(f"v_and_b32 v{Tt}, 7, v{L}")
        a(f"v_bfe_u32 v{TH}, v{L}, 3, 1")
        a(f"v_lshlrev_b32 v{vL16}, 4, v{L}")
        a(f"v_lshlrev_b32 v{vL4}, 2, v{L}")
        a(f"v_lshlrev_b32 v{vA}, 7, v{Gg}")
        a(f"v_lshl_add_u32 v{vA}, v{Tt}, 4, v{vA}")
        for b in range(1, 4):
            a(f"s_add_u32 s{sTMP}, s{sW}, {b}")
            a(f"s_and_b32 s{sTMP}, s{sTMP}, 3")
            a(f"s_lshl_b32 s{sTMP}, s{sTMP}, 10")
            a(f"v_add_u32 v{vAG+b-1}, s{sTMP}, v{vL16}")
        a(f"v_mov_b32 v{vS10}, 0x3F80")
        a(f"v_mov_b32 v{vS01}, 0x3F800000")
        a(f"v_lshlrev_b32 v{vBP}, 5, v{TH}")
        a(f"v_and_b32 v107, 1, v{L}")
        a(f"v_lshl_add_u32 v{vBP}, v107, 4, v{vBP}")
        a(f"v_bfe_u32 v107, v{L}, 1, 2")
        a(f"v_add_u32 v{vBP}, v{vBP}, v107")
        a(f"v_lshlrev_b32 v{vBP}, 2, v{vBP}")
        a(f"s_movk_i32 s{sTMP}, {PST}")
        a(f"v_mul_lo_u32 v{vRD}, v{Gg}, s{sTMP}")
        a(f"v_lshl_add_u32 v{vRD}, v{N}, 3, v{vRD}")
        G1, G0 = 105, 106
        a(f"v_lshrrev_b32 v{G1}, 1, v{Gg}")
        a(f"v_and_b32 v{G0}, 1, v{Gg}")
        a(f"v_and_b32 v107, 3, v{L}")
        a(f"v_lshlrev_b32 v{vPB}, 4, v107")
        a(f"v_lshlrev_b32 v{vXA}, 3, v{L}")
        a(f"v_lshl_add_u32 v{vPB}, v{G1}, {7 if 'lin' in self.opts else 6}, v{vPB}")
        a(f"v_lshl_add_u32 v{vPB}, v{G0}, 3, v{vPB}")
        a(f"s_lshl_b32 s{sTMP}, s{sW}, 10")
        a(f"v_add_u32 v{vGG}, s{sTMP}, v{vL16}")
        a(f"v_lshrrev_b32 v{vSA}, 1, v{vGG}")
        a(f"v_lshlrev_b32 v{vPS}, 8, v{G0}")
        a(f"v_lshl_add_u32 v{vPS}, v{TH}, 7, v{vPS}")
        a(f"v_lshl_add_u32 v{vPS}, v{Tt}, 4, v{vPS}")
        a(f"v_lshl_add_u32 v{vPS}, v{G1}, 3, v{vPS}")
        a(f"v_mov_b32 v107, 0x8888")
        a(f"v_mov_b32 v108, 0xDDDD")
        a(f"v_cmp_eq_u32 vcc, 0, v{TH}")
        a(f"v_cndmask_b32 v{vIDX}, v108, v107, vcc")
        a(f"v_lshlrev_b32 v107, 2, v{Gg}")
        a(f"v_sub_u32 v107, v{N}, v107")
        a(f"v_mov_b32 v108, 0x3F80")
        a(f"v_mov_b32 v109, 0x3F800000")
        a(f"v_mov_b32 v{vID0}, 0")
        a(f"v_mov_b32 v{vID0+1}, 0")
        for jj in range(4):
            a(f"v_cmp_eq_u32 vcc, {jj}, v107")
            a(f"v_cndmask_b32 v{vID0 + jj//2}, v{vID0 + jj//2}, v{108 + jj%2}, vcc")
        a(f"s_mov_b32 s{sONE}, 0x3F80"); a(f"s_mov_b32 s{sONE+1}, 0")
        a(f"v_lshlrev_b64 {vr(vSEL4,2)}, v{vL16}, {sr(sONE,2)}")
        a(f"v_lshlrev_b64 {vr(vSEL4+2,2)}, v{vL16}, {sr(sONE,2)}")
        a(f"v_lshlrev_b32 v{vTW}, 4, v{N}")
        a(f"v_lshl_add_u32 v{vTW}, v{G1}, 8, v{vTW}")
        a(f"v_lshl_add_u32 v{vTW}, v{G0}, 3, v{vTW}")
        a(f"s_lshl_b32 s{sTMP}, s{sW}, 9")
        a(f"v_add_u32 v{vTW}, s{sTMP}, v{vTW}")
        a(f"v_lshrrev_b32 v107, 3, v{L}")
        a(f"v_lshlrev_b32 v{vKMW}, 8, v107")
        a(f"v_lshl_add_u32 v{vKMW}, v{Tt}, 4, v{vKMW}")
        a(f"v_lshlrev_b32 v107, 8, v{Gg}")
        a(f"v_lshl_add_u32 v{vTQ}, v{Tt}, 4, v107")
        a(f"v_bfe_u32 v108, v{N}, 2, 1")
        a(f"v_lshlrev_b32 v108, 2, v108")
        a(f"v_lshl_add_u32 v108, v{TH}, 1, v108")
        a(f"v_and_b32 v109, 1, v{N}")
        a(f"v_add3_u32 v108, v108, v109, 8")
        a(f"v_lshl_add_u32 v{vTK}, v108, 4, v107")
        a(f"v_lshlrev_b32 v{vOW}, 7, v{G1}")
        a(f"v_lshl_add_u32 v{vOW}, v{Tt}, 4, v{vOW}")
        a(f"v_lshl_add_u32 v{vOW}, v{G0}, 3, v{vOW}")
        a(f"s_lshl_b32 s{sTMP}, s{sW}, 8")
        a(f"v_add_u32 v{vOW}, s{sTMP}, v{vOW}")
        a(f"v_mov_b32 v{VP+1}, 0")
        a(f"v_mov_b32 v{PP+5}, 0")
        a(f"s_mov_b32 s{sMLO}, 0x00FF00FF"); a(f"s_mov_b32 s{sMLO+1}, 0x00FF00FF")
        a(f"s_mov_b32 s{sMHI}, 0xFF00FF00"); a(f"s_mov_b32 s{sMHI+1}, 0xFF00FF00")
        a(f"s_mov_b32 s{sMPB}, 0x000F000F"); a(f"s_mov_b32 s{sMPB+1}, 0x000F000F")
        a(f"s_mov_b32 s{sM40}, 0x33333333"); a(f"s_mov_b32 s{sM40+1}, 0x33333333")
        a(f"s_mov_b32 s{sC}, {fbits(128 ** -0.5 * 1.4426950408889634):#x}")
        a(f"s_and_b32 s{sU}, s{sR}, 1")
        a(f"s_lshr_b32 s{sH}, s{sR}, 1")
        a(f"s_lshl_b32 s{sTMP}, s{sX}, 4")
        a(f"s_add_u32 s{sH}, s{sH}, s{sTMP}")
        a(f"s_lshl_b32 s{sKX}, s{sH}, 13")
        a(f"s_lshl_b32 s{sTMP}, s{sU}, 12")
        a(f"s_add_u32 s{sTMP}, s{sTMP}, {VXI:#x}")
        a(f"s_lshl_b32 s{sT2}, s{sW}, 12")
        a(f"s_cmp_eq_u32 s{sW}, 2")
        a(f"s_cselect_b32 s{sTMP}, s{sTMP}, s{sT2}")
        a(f"s_add_u32 s{sKX}, s{sKX}, s{sTMP}")
        a(f"s_lshl_b32 s{sKM}, s{sH}, 11")
        a(f"s_lshl_b32 s{sTMP}, s{sU}, 10")
        a(f"s_add_u32 s{sKM}, s{sKM}, s{sTMP}")
        a(f"s_add_u32 s{sVM}, s{sKM}, {VMI:#x}")
        a(f"s_add_u32 s{sKM}, s{sKM}, {KMI:#x}")
        a(f"s_mul_i32 s{sPB0}, s{sR}, {PST}")
        a(f"s_mul_i32 s{sTMP}, s{sW}, 2560")
        a(f"s_add_u32 s{sPB0}, s{sPB0}, s{sTMP}")
        a(f"s_mul_i32 s{sT5}, s{sX}, {PBX}")
        a(f"s_add_u32 s{sT5}, s{sT5}, {PB:#x}")
        a(f"s_add_u32 s{sPB0}, s{sPB0}, s{sT5}")
        a(f"s_lshl_b32 s{sTMP}, s{sW}, 1")
        a(f"s_lshr_b32 s{sT2}, s{sR}, 4")
        a(f"s_add_u32 s{sTMP}, s{sTMP}, s{sT2}")
        a(f"s_cmp_le_u32 s{sTMP}, 4")
        a(f"s_cselect_b32 s{sHASJ}, 1, 0")
        a(f"s_cselect_b32 s{sTMP}, s{sTMP}, 4")
        a(f"s_sub_u32 s{sTMP}, 4, s{sTMP}")
        a(f"s_bfe_u32 s{sT2}, s{sR}, 0x20002")
        a(f"s_bfe_u32 s{sT3}, s{sR}, 0x10001")
        a(f"s_and_b32 s{sT4}, s{sR}, 1")
        a(f"s_mul_i32 s{sRD}, s{sT2}, 5")
        a(f"s_add_u32 s{sRD}, s{sRD}, s{sTMP}")
        a(f"s_lshl_b32 s{sRD}, s{sRD}, 9")
        a(f"s_add_u32 s{sRD}, s{sRD}, s{sT5}")
        a(f"s_lshl_b32 s{sT5}, s{sT3}, 8")
        a(f"s_add_u32 s{sRD}, s{sRD}, s{sT5}")
        a(f"s_lshl_b32 s{sT5}, s{sT4}, 7")
        a(f"s_add_u32 s{sRD}, s{sRD}, s{sT5}")
        for i in range(1, 8):
            a(f"s_add_u32 s{sRD+i}, s{sRD+i-1}, {4*PST}")
        a(f"s_lshl_b32 s{sJL}, s{sTMP}, 11")
        a(f"s_lshl_b32 s{sT5}, s{sT2}, 9")
        a(f"s_add_u32 s{sJL}, s{sJL}, s{sT5}")
        a(f"s_lshl_b32 s{sT5}, s{sT4}, 8")
        a(f"s_add_u32 s{sJL}, s{sJL}, s{sT5}")
        a(f"s_lshl_b32 s{sT5}, s{sT3}, {6 if 'lin' in self.opts else 7}")
        a(f"s_add_u32 s{sJL}, s{sJL}, s{sT5}")
        a(f"s_and_b32 s{sT5}, s{sJL}, 0x2000")
        a(f"s_add_u32 s{sJL}, s{sJL}, s{sT5}")
        a(f"s_lshl_b32 s{sT5}, s{sX}, 16")
        a(f"s_add_u32 s{sGL}, s{sT5}, {IMGL:#x}")
        a(f"s_lshl_b32 s{sT5}, s{sX}, 22")
        a(f"s_sub_u32 s{sIB}, 0, s{sWS}")
        a(f"s_and_b32 s{sIB}, s{sIB}, 0x1FFFFF")
        a(f"s_add_u32 s{sIB}, s{sIB}, {IMGR:#x}")
        a(f"s_add_u32 s{sGR}, s{sT5}, s{sIB}")
        a(f"s_xor_b32 s{sT5}, s{sT5}, 0x400000")
        a(f"s_add_u32 s{sJR}, s{sJL}, s{sT5}")
        a(f"s_add_u32 s{sJR}, s{sJR}, s{sIB}")
        a(f"s_add_u32 s{sJL}, s{sJL}, s{sGL}")
        a(f"s_mov_b32 s{sSLOT}, 32768")
        for src, dst in ((vGG, vG0), (vSA, vG2)):
            a(f"v_and_b32 v107, 0xFFFFFF3F, v{src}")
            a(f"v_bfe_u32 v108, v{src}, 6, 1")
            a(f"v_lshl_add_u32 v107, v108, 7, v107")
            a(f"v_bfe_u32 v108, v{src}, 7, 1")
            a(f"v_lshl_add_u32 v{dst}, v108, 6, v107")
        if "lin" in self.opts:
            a(f"v_mov_b32 v{vG0}, v{vGG}")
            a(f"v_mov_b32 v{vG2}, v{vSA}")
        a(f"v_add_u32 v{vG1}, 4096, v{vG0}")
        a(f"v_add_u32 v{vG2}, 16384, v{vG2}")
        a(f"s_lshl_b32 s{sTBW}, s{sX}, 5")
        a(f"s_add_u32 s{sTBW}, s{sTBW}, s{sR}")
        a(f"s_lshl_b32 s{sTBW}, s{sTBW}, 11")
        a(f"s_add_u32 s{sTBW}, s{sTBW}, {TB:#x}")
        a(f"s_xor_b32 s{sTBR}, s{sTBW}, 0x800")
        a(f"s_mov_b32 s{sTAG0}, 0")
        a(f"s_mov_b32 s{sTAG1}, 0")
        a(f"s_mov_b32 s{sSTEP}, 0")
        a(f"s_mov_b32 s{sKSEG}, 0")
        a(f"s_mov_b32 s{sRDY}, {-1 if 'nohelp' in self.opts else 0}")
        a(f"s_lshl_b32 s{sKF}, s{sH}, 7")
        a(f"s_lshl_b32 s{sTMP}, s{sU}, 2")
        a(f"s_add_u32 s{sKF}, s{sKF}, s{sTMP}")
        a(f"s_add_u32 s{sKF}, s{sKF}, {KF:#x}")
        a(f"v_min_u32 v{vBA}, 92, v{vL4}")
        a(f"v_add_u32 v{vBA}, 64, v{vBA}")
        if self.stamps:
            a(f"s_lshl_b32 s{sTMP}, s{sX}, 5")
            a(f"s_add_u32 s{sTMP}, s{sTMP}, s{sR}")
            a(f"s_lshl_b32 s{sTMP}, s{sTMP}, 2")
            a(f"s_add_u32 s{sTMP}, s{sTMP}, s{sW}")
            a(f"s_lshl_b32 s{sSTAMP}, s{sTMP}, 13")
            a(f"s_add_u32 s{sSTAMP}, s{sSTAMP}, {STAMP:#x}")

    def init_buffers(self):
        a = self.a
        a(f"v_mov_b64 {vr(vT0,2)}, -1")
        for c in range(5):
            a(f"buffer_store_dwordx2 {vr(vT0,2)}, v{vPS}, {sr(sWS,4)}, s{sPB0} offen offset:{c*512}")
        a(f"buffer_store_dwordx2 {vr(vT0,2)}, v{vTW}, {sr(sWS,4)}, s{sTBW} offen")
        a(f"v_mov_b32 v{vT2}, 0")
        a(f"s_mov_b64 exec, 1")
        for e in range(6):
            a(f"s_add_u32 s{sPT}, s{sKF}, {e*4096}")
            a(f"buffer_store_dword v{vT2}, v{vT2}, {sr(sWS,4)}, s{sPT} offen sc1")
        a(f"s_movk_i32 s{sKE}, {4*4096}")
        a(f"s_mov_b64 exec, -1")
        a(f"s_lshl_b32 s{sPT}, s{sR}, 2")
        a(f"s_add_u32 s{sPT}, s{sPT}, s{sW}")
        a(f"s_bfe_u32 s{sPT+1}, s{sPT}, 0x10002")
        a(f"s_xor_b32 s{sPT+1}, s{sPT+1}, 1")
        for r in range(4): a(f"v_mov_b32 v{ZQ+r}, s{sPT+1}")
        a(f"s_lshr_b32 s{sPT+1}, s{sPT}, 1")
        a(f"s_lshl_b32 s{sPT+1}, s{sPT+1}, 15")
        a(f"s_and_b32 s{sPT}, s{sPT}, 1")
        a(f"s_lshl_b32 s{sPT}, s{sPT}, 13")
        a(f"s_add_u32 s{sPT}, s{sPT}, s{sPT+1}")
        a(f"s_add_u32 s{sPT}, s{sPT}, s{sGR}")
        for k in range(10):
            if k % 4 == 0: a(f"s_add_u32 s{sPT+1}, s{sPT}, {[0, 4096, 16384][k // 4]}")
            a(f"buffer_store_dwordx4 {vr(ZQ,4)}, v{vL16}, {sr(sWS,4)}, s{sPT+1} offen offset:{(k%4)*1024} sc1")
        a(f"s_cmp_eq_u32 s{sHASJ}, 0")
        a(f"s_cbranch_scc1 L_team_noinit")
        save = list(a.vm)
        a(f"s_mov_b64 exec, {sr(sMPB,2)}")
        for off in (0, 32768):
            a(f"s_add_u32 s{sPT}, s{sJL}, {off}")
            a(f"buffer_store_dwordx2 {vr(vT0,2)}, v{vPB}, {sr(sWS,4)}, s{sPT} offen")
        a(f"s_mov_b64 exec, -1")
        a.vm = save
        a.label("L_team_noinit")

    def signal(self, dbg_off):
        a = self.a
        a(f"s_cmp_lg_u32 s{sW}, 0")
        a(f"s_cbranch_scc1 L_ta_done")
        a(f"s_mov_b64 exec, 1")
        a(f"v_mov_b32 v{vT0}, {dbg_off}")
        a(f"v_mov_b32 v{vT1}, 1")
        save = list(a.vm)
        a(f"global_atomic_add v{vT0}, v{vT1}, {sr(sDBG,2)} sc1")
        a.vm = save
        a(f"s_mov_b64 exec, -1")
        a.label("L_ta_done")

    def wait_team(self, dbg_off):
        a = self.a
        a(f"v_mov_b32 v{vT0}, {dbg_off}")
        a(f"s_mov_b32 s{sSPIN}, 0")
        a(f"s_mov_b64 exec, 1")
        a.label(f"L_tw_poll")
        a(f"global_load_dwordx2 {vr(vT2,2)}, v{vT0}, {sr(sDBG,2)} sc1")
        a(f"s_add_u32 s{sSPIN}, s{sSPIN}, 1")
        a(f"s_cmp_gt_u32 s{sSPIN}, {SPIN_MAX}")
        a(f"s_cbranch_scc1 L_fail")
        a.wait_vm0()
        a(f"v_readfirstlane_b32 s{sTMP}, v{vT2}")
        a(f"s_cmp_lt_u32 s{sTMP}, 64")
        a(f"s_cbranch_scc1 L_tw_poll")
        a(f"v_readfirstlane_b32 s{sTMP}, v{vT3}")
        a(f"s_cmp_lg_u32 s{sTMP}, 0")
        a(f"s_cbranch_scc1 L_tw_have")
        a(f"s_sleep 8")
        a(f"s_cmp_lt_u32 s{sSPIN}, 40")
        a(f"s_cbranch_scc1 L_tw_poll")
        a(f"v_mov_b32 v{vT2}, 1")
        a(f"v_mov_b32 v{vT3}, 0")
        a(f"global_atomic_cmpswap v{vT1}, v{vT0}, {vr(vT2,2)}, {sr(sDBG,2)} offset:4 sc0 sc1")
        a.wait_vm0()
        a(f"v_readfirstlane_b32 s{sTMP}, v{vT1}")
        a.label("L_tw_have")
        a(f"s_mov_b64 exec, -1")
        a(f"s_lshr_b32 s{sT2}, s{sTMP}, s{sX}")
        a(f"s_and_b32 s{sT2}, s{sT2}, 0x2000")
        a(f"s_add_u32 s{sGR}, s{sGR}, s{sT2}")
        a(f"s_xor_b32 s{sT2}, s{sX}, 1")
        a(f"s_lshr_b32 s{sT2}, s{sTMP}, s{sT2}")
        a(f"s_and_b32 s{sT2}, s{sT2}, 0x2000")
        a(f"s_add_u32 s{sJR}, s{sJR}, s{sT2}")

    def load_weights(self):
        a = self.a
        TA = 40
        OUT = 104
        vW, vWo, vSN, vSO, vPSEL = 112, 113, 114, 115, 116
        vSB = 117
        vAD = [124, 125, 126, 127]
        NB = 5; SZ = 32768
        wf = 'nt' if 'wnt' in self.opts else ''
        a(f"v_lshrrev_b32 v{vT0}, 7, v{vL16}")
        a(f"v_and_b32 v{vT1}, 0x70, v{vL16}")
        a(f"v_lshl_add_u32 v{vW}, v{vT0}, 13, v{vT1}")
        a(f"v_lshrrev_b32 v{vT0}, 8, v{vL16}")
        a(f"v_and_b32 v{vT1}, 0xF0, v{vL16}")
        a(f"s_movk_i32 s{sTMP}, 1280")
        a(f"v_mul_lo_u32 v{vWo}, v{vT0}, s{sTMP}")
        a(f"v_add_u32 v{vWo}, v{vWo}, v{vT1}")
        a(f"v_lshrrev_b32 v{vT2}, 5, v{vT1}")
        a(f"v_lshlrev_b32 v{vSN}, 2, v{vT2}")
        a(f"v_lshrrev_b32 v{vT2}, 1, v{vT0}")
        a(f"v_lshl_add_u32 v{vSN}, v{vT2}, 11, v{vSN}")
        a(f"v_and_b32 v{vT2}, 1, v{vT0}")
        a(f"v_lshl_add_u32 v{vSN}, v{vT2}, 9, v{vSN}")
        a(f"s_lshl_b32 s{sTMP}, s{sW}, 5")
        a(f"v_add_u32 v{vSN}, s{sTMP}, v{vSN}")
        a(f"v_mov_b32 v{vT2}, 0x05040100")
        a(f"v_mov_b32 v{vT3}, 0x07060302")
        a(f"v_and_b32 v{vPSEL}, 16, v{vL16}")
        a(f"v_cmp_eq_u32 vcc, 0, v{vPSEL}")
        a(f"v_cndmask_b32 v{vPSEL}, v{vT3}, v{vT2}, vcc")
        for b in range(4):
            a(f"s_add_u32 s{sTMP}, s{sW}, {b}")
            a(f"s_and_b32 s{sTMP}, s{sTMP}, 3")
            a(f"s_lshl_b32 s{sTMP}, s{sTMP}, 13")
            a(f"v_add_u32 v{vSB+b}, s{sTMP}, v{vSN}")
        a(f"v_lshrrev_b32 v{vT1}, 2, v{vT1}")
        a(f"v_lshl_add_u32 v{vSO}, v{vT0}, 10, v{vT1}")
        a(f"s_lshl_b32 s{sTMP}, s{sW}, 6")
        a(f"v_add_u32 v{vSO}, s{sTMP}, v{vSO}")
        sBQ, sBS, sBO, sLD = sT2, sT3, sT4, sT5
        a(f"s_lshl_b32 s{sBS}, s{sH}, 8")
        a(f"s_lshl_b32 s{sTMP}, s{sU}, 7")
        a(f"s_add_u32 s{sBS}, s{sBS}, s{sTMP}")
        a(f"s_mul_i32 s{sTMP}, s{sW}, {64*8192}")
        a(f"s_add_u32 s{sBQ}, s{sBS}, s{sTMP}")
        a(f"s_mul_i32 s{sTMP}, s{sW}, {32*8192}")
        a(f"s_add_u32 s{sBS}, s{sBS}, s{sTMP}")
        a(f"s_mul_i32 s{sBO}, s{sH}, 163840")
        a(f"s_mul_i32 s{sTMP}, s{sU}, {64*1280}")
        a(f"s_add_u32 s{sBO}, s{sBO}, s{sTMP}")
        a(f"s_mul_i32 s{sTMP}, s{sW}, {16*1280}")
        a(f"s_add_u32 s{sBO}, s{sBO}, s{sTMP}")
        a(f"s_lshl_b32 s{sLD}, s{sW}, 12")
        stages = [(m, i) for m in "qkv" for i in range(3)] + [("o", c) for c in range(5)]
        karg = {"q": 16, "k": 24, "v": 32, "o": 40}
        srds = {"q": 8, "k": 12, "v": 8, "o": 12}
        loaded = set()
        hd = {}
        def dma(n):
            kind, i = stages[n]
            if kind not in loaded:
                self.srd(srds[kind], karg[kind], 5242880); loaded.add(kind)
            buf = (n % NB) * SZ
            hs = []
            big = kind != "o" and i < 2
            for m in range(8 if big else 4):
                if big:
                    a(f"s_lshl_b32 m0, s{sLD}, 1")
                    a(f"s_add_u32 m0, m0, {buf + m*1024}")
                else:
                    a(f"s_add_u32 m0, s{sLD}, {buf + m*1024}")
                if kind == "o":
                    a(f"s_add_u32 s{sTMP}, s{sBO}, {4*m*1280 + i*256}")
                    hs.append(a(f"buffer_load_dwordx4 v{vWo}, {sr(srds[kind],4)}, s{sTMP} offen {wf} lds"))
                elif big:
                    a(f"s_add_u32 s{sTMP}, s{sBQ}, {(256*i + 8*m) * 8192}")
                    hs.append(a(f"buffer_load_dwordx4 v{vW}, {sr(srds[kind],4)}, s{sTMP} offen {wf} lds"))
                else:
                    a(f"s_add_u32 s{sTMP}, s{sBS}, {(512 + 8*m) * 8192}")
                    hs.append(a(f"buffer_load_dwordx4 v{vW}, {sr(srds[kind],4)}, s{sTMP} offen {wf} lds"))
            hd[n] = hs
        def combine(op, lo, hi):
            p = PL[op]
            for r in range(8):
                d = p[1] + r if p[0] == "v" else OUT + r
                a(f"v_perm_b32 v{d}, v{hi+r}, v{lo+r}, v{vPSEL}")
            if p[0] == "a":
                for r in range(8): a(f"v_accvgpr_write_b32 a{p[1]+r}, v{OUT+r}")
        AH = self.opt('ah', NB - 1)
        for n in range(AH): dma(n)
        for n, (kind, i) in enumerate(stages):
            a.wait(hd[n])
            a.wait_lg0()
            a("s_barrier")
            if n + AH < len(stages): dma(n + AH)
            if n == 0 and "lateinit" in self.opts:
                self.init_buffers()
            if n == (5 if "lateinit" in self.opts else 0): self.signal(52)
            buf = (n % NB) * SZ
            if kind in "qkv":
                nb = 4 if i < 2 else 2
                hs = {}
                for b in range(nb):
                    if i < 2: a(f"v_add_u32 v{vAD[b]}, {buf}, v{vSB+b}")
                    else: a(f"v_add_u32 v{vAD[b]}, {buf + b*8192}, v{vSN}")
                for b in range(nb):
                    for hf in range(2):
                        for r in range(8):
                            hs[b] = a(f"ds_read_b32 v{TA + 16*b + 8*hf + r}, v{vAD[b]} offset:{(32*(r>>2) + (r&3) + 8*hf)*128}")
                    if b >= 1:
                        a.wait(hs[b-1])
                        combine((kind, 2*(b-1) + i if i < 2 else 8 + b - 1), TA + 16*(b-1), TA + 16*(b-1) + 8)
                b = nb
                a.wait(hs[b-1])
                combine((kind, 2*(b-1) + i if i < 2 else 8 + b - 1), TA + 16*(b-1), TA + 16*(b-1) + 8)
            else:
                a(f"v_add_u32 v{vAD[0]}, {buf}, v{vSO}")
                for j in range(2):
                    p = PL[("WO", i, j)]
                    for r in range(8):
                        a(f"ds_read_b32 {p[0]}{p[1]+r}, v{vAD[0]} offset:{(32*j + (r&3) + 16*(r>>2))*256}")
        a.wait_all()
        a("s_barrier")

    def kv_ready(self, lab):
        a = self.a
        from engine import blk_of_seg, D_BLK
        a(f"s_min_u32 s{sT2}, s{sKSEG}, 63")
        blk_of_seg(a, sT2, sBL)
        a(f"s_add_u32 s{sKSEG}, s{sKSEG}, 1")
        a(f"s_bitcmp1_b32 s{sRDY}, s{sBL}")
        a(f"s_cbranch_scc1 {lab}_ok")
        a(f"s_mov_b32 s{sSPIN}, 0")
        a.label(lab)
        a(f"global_load_dword v{vBLK}, v{vBA}, {sr(sDBG,2)} sc1")
        a(f"s_add_u32 s{sSPIN}, s{sSPIN}, 1")
        a(f"s_cmp_gt_u32 s{sSPIN}, {SPIN_MAX}")
        a(f"s_cbranch_scc1 L_fail")
        a(f"s_waitcnt vmcnt(0)")
        a(f"v_cmp_le_u32 vcc, 32, v{vBLK}")
        a(f"s_nop 3")
        a(f"s_mov_b32 s{sRDY}, vcc_lo")
        a(f"s_bitcmp1_b32 s{sRDY}, s{sBL}")
        a(f"s_cbranch_scc1 {lab}_ok")
        a(f"s_sleep 4")
        a(f"s_branch {lab}")
        a.label(f"{lab}_ok")
    def kv_check(self):
        a = self.a
        if "full" in self.opts:
            self.nkv = getattr(self, "nkv", 0) + 1
            save = list(a.vm)
            self.kv_ready(f"L_kvr{self.nkv}")
            a.vm = save
    def kv_dma(self):
        a = self.a
        a(f"s_lshl_b32 s{sTMP}, s{sKVM}, 1")
        a(f"s_add_u32 m0, s{sTMP}, s{sKVW}")
        a(f"s_add_u32 s{sKVW}, s{sKVW}, 12288")
        for k in range(4):
            a(f"buffer_load_dwordx4 v{vL16}, {sr(sWS,4)}, s{sKX} offen offset:{k*1024} sc1 lds")
        a(f"s_cmp_eq_u32 s{sKVW}, {L_KV + NKV*12288}")
        a(f"s_cselect_b32 s{sKVW}, {L_KV}, s{sKVW}")
        a(f"s_add_u32 s{sKX}, s{sKX}, {32*8192}")

    def prologue(self):
        a = self.a
        a(f"s_lshl_b32 s{sTMP}, s{sW}, 8")
        a(f"v_add_u32 v{vVW}, s{sTMP}, v{vL4}")
        a(f"s_lshl_b32 s{sKVM}, s{sW}, 11")
        a(f"s_mov_b32 s{sKVW}, {L_KV}")
        a(f"s_mov_b32 s{sKVR}, {L_KV}")
        for _ in range(KVD): self.kv_check()
        a(f"s_cmp_eq_u32 s{sW}, 3")
        a(f"s_cbranch_scc1 L_pro3")
        for _ in range(KVD): self.kv_dma()
        a.label("L_pro3")
        self.srd(sRA, 8, 10240)
        a(f"s_movk_i32 s{sTMP}, 1280")
        a(f"v_bfe_u32 v{vT0}, v{vGG}, 4, 3")
        a(f"v_mul_lo_u32 v{vT0}, v{vT0}, s{sTMP}")
        a(f"v_lshrrev_b32 v{vT1}, 7, v{vGG}")
        a(f"v_lshl_add_u32 v{vT0}, v{vT1}, 4, v{vT0}")
        a(f"buffer_load_dwordx4 {vr(GL,4)}, v{vT0}, {sr(sRA,4)}, 0 offen")
        a(f"buffer_load_dwordx4 {vr(GL+4,4)}, v{vT0}, {sr(sRA,4)}, 0 offen offset:512")
        a(f"v_bfe_u32 v{vT2}, v{vSA}, 4, 3")
        a(f"v_mul_lo_u32 v{vT2}, v{vT2}, s{sTMP}")
        a(f"v_lshrrev_b32 v{vT1}, 7, v{vSA}")
        a(f"v_lshl_add_u32 v{vT2}, v{vT1}, 4, v{vT2}")
        a(f"v_and_b32 v{vT1}, 8, v{vSA}")
        a(f"v_add_u32 v{vT2}, v{vT2}, v{vT1}")
        a(f"buffer_load_dwordx2 {vr(GL+8,2)}, v{vT2}, {sr(sRA,4)}, 0 offen offset:1024")
        for r in range(ZQ, ZQ + 12, 2): a(f"v_mov_b64 {vr(r,2)}, 0")
        for r in range(GB, GB + 10, 2): a(f"v_mov_b64 {vr(r,2)}, 0")
        a.wait_all()
        for i in range(10):
            a(f"v_lshlrev_b32 v{AU+2*i}, 16, v{GL+i}")
            a(f"v_and_b32 v{AU+2*i+1}, 0xFFFF0000, v{GL+i}")
        self.kv_check()

    def poll(self, lab, issue, regs, tag, thr=None, sleep=0):
        a = self.a
        a(f"s_mov_b32 s{sSPIN}, 0")
        a.label(lab)
        issue()
        a(f"s_add_u32 s{sSPIN}, s{sSPIN}, 1")
        a(f"s_cmp_gt_u32 s{sSPIN}, {SPIN_MAX}")
        a(f"s_cbranch_scc1 L_fail")
        a(f"s_waitcnt vmcnt({thr if thr is not None else self.opt('thr', 30)})")
        if sleep: a(f"s_sleep {sleep}")
        for n, r in enumerate(regs): self.ck(r, tag, n == 0)
        a(f"v_and_b32 v{vCK}, 1, v{vCK}")
        a(f"v_cmp_ne_u32 vcc, 0, v{vCK}")
        a(f"s_cbranch_vccnz {lab}")
    def bpoll(self, lab, issue, first, regs, per, tag):
        a = self.a
        a(f"s_mov_b32 s{sSPIN}, 0")
        a(f"s_branch {lab}_c")
        save = list(a.vm)
        a.label(lab)
        issue()
        a.vm = save
        a.label(f"{lab}_c")
        a(f"s_add_u32 s{sSPIN}, s{sSPIN}, 1")
        a(f"s_cmp_gt_u32 s{sSPIN}, {SPIN_MAX}")
        a(f"s_cbranch_scc1 L_fail")
        assert a.vm[-len(first):] == first
        for n, r in enumerate(regs):
            a.wait(first[n // per])
            self.ck(r, tag, n == 0)
        a(f"v_and_b32 v{vCK}, 1, v{vCK}")
        a(f"v_cmp_ne_u32 vcc, 0, v{vCK}")
        a(f"s_cbranch_vccnz {lab}")
    def poison(self, regs, tag):
        self.a(f"s_xor_b32 s{sTMP}, s{tag}, 1")
        for r in regs: self.a(f"v_mov_b32 v{r}, s{sTMP}")
    def ck(self, reg, tag, first):
        if first: self.a(f"v_xor_b32 v{vCK}, s{tag}, v{reg}")
        else: self.a(f"v_bitop3_b32 v{vCK}, v{vCK}, v{reg}, s{tag} bitop3:0xF6")

    def step(self, exit_label):
        a = self.a
        def ex_read():
            return [a(f"ds_read_b128 {vr(EX,4)}, v{vKMW} offset:{L_T + 128}"), a(f"ds_read_b128 {vr(EX+4,4)}, v{vL16} offset:{L_V}")]
        def ex_store():
            if "nokm" not in self.opts:
                a(f"buffer_store_dwordx4 {vr(EX,4)}, v{vL16}, {sr(sWS,4)}, s{sKM} offen sc1")
                a(f"buffer_store_dwordx4 {vr(EX+4,4)}, v{vL16}, {sr(sWS,4)}, s{sVM} offen sc1")
            a(f"s_add_u32 s{sKM}, s{sKM}, {32*2048}")
            a(f"s_add_u32 s{sVM}, s{sVM}, {32*2048}")
        def flag(val):
            a(f"v_mov_b32 v{vBLK}, {val}")
            a(f"s_mov_b64 exec, 1")
            a(f"s_add_u32 s{sTMP}, s{sKF}, s{sKE}")
            a(f"buffer_store_dword v{vBLK}, v{vL4}, {sr(sWS,4)}, s{sTMP} offen sc1")
            a(f"s_mov_b64 exec, -1")
            a(f"s_add_u32 s{sKE}, s{sKE}, 4096")
            a(f"s_cmp_eq_u32 s{sKE}, {6*4096}")
            a(f"s_cselect_b32 s{sKE}, 0, s{sKE}")
        def slow_ops():
            a(f"s_cmp_eq_u32 s{sW}, 3")
            a(f"s_cbranch_scc1 L_so3")
            save = list(a.vm)
            self.kv_dma()
            a.vm = save
            a(f"s_branch L_so_done")
            a.label("L_so3")
            a(f"s_cmp_eq_u32 s{sSTEP}, 0")
            a(f"s_cselect_b32 s{sT2}, {SCR:#x}, s{sKM}")
            a(f"s_cselect_b32 s{sBL}, {SCR:#x}, s{sVM}")
            a(f"s_cselect_b32 s{sTMP}, 0, {32*2048}")
            a(f"buffer_store_dwordx4 {vr(EX,4)}, v{vL16}, {sr(sWS,4)}, s{sT2} offen sc1")
            a(f"buffer_store_dwordx4 {vr(EX+4,4)}, v{vL16}, {sr(sWS,4)}, s{sBL} offen sc1")
            a(f"s_add_u32 s{sKM}, s{sKM}, s{sTMP}")
            a(f"s_add_u32 s{sVM}, s{sVM}, s{sTMP}")
            a(f"s_max_u32 s{sT2}, s{sSTEP}, 1")
            a(f"s_sub_u32 s{sT2}, s{sT2}, 1")
            flag(f"s{sT2}")
            a(f"buffer_load_dword v{vT2}, v{vL4}, {sr(sWS,4)}, s{sTBR} offen sc1")
            a.label("L_so_done")
        def last():
            a.wait_lg0()
            a("s_barrier")
            a(f"s_cmp_lg_u32 s{sW}, 3")
            a(f"s_cbranch_scc1 {exit_label}")
            a(f"s_nop 4")
            a.wait(ex_read())
            ex_store()
            a.wait_vm0()
            if "full" in self.opts:
                flag(64); flag(64)
        self.exports = last
        TREG = [r + 1 for r in [TRQ, TRQ + 2, TRK, TRK + 2, TRQ + 4, TRQ + 6, TRK + 4, TRK + 6]]
        if "tmask" in self.opts: TREG = [r + 1 for r in [TRQ, TRQ + 2, TRQ + 4, TRQ + 6, TRK, TRK + 2, TRK + 4, TRK + 6]]
        RREG = [RL + 2*i + 1 for i in range(8)]
        GREG = [GL + 2*i + 1 for i in range(5)]
        areg = lambda k: GL + 4 * k if k < 2 else AR + 4 * (k - 2)
        self.stamp(0)
        def add(lo, hi):
            for i in range(lo, hi):
                a(f"v_dot2_f32_bf16 v{AU+2*i}, v{GB+i}, v{vS10}, v{AU+2*i}")
                a(f"v_dot2_f32_bf16 v{AU+2*i+1}, v{GB+i}, v{vS01}, v{AU+2*i+1}")
        def pk(lo, hi):
            for i in range(lo, hi): a(f"v_cvt_pk_bf16_f32 v{GL+i}, v{AU+2*i}, v{AU+2*i+1}")
        add(0, 6); pk(0, 4)
        a(f"ds_write_b128 v{vGG}, {vr(GL,4)} offset:{L_IA}")
        add(6, 10)
        self.smf(("q", 0), ZQ, areg(0))
        pk(4, 8)
        a(f"ds_write_b128 v{vGG}, {vr(GL+4,4)} offset:{L_IA+4096}")
        self.smf(("k", 0), ZK, areg(0))
        pk(8, 10)
        a(f"ds_write_b64 v{vSA}, {vr(GL+8,2)} offset:{L_IA+8192}")
        self.smf(("q", 1), ZQ, areg(1))
        self.smf(("k", 1), ZK, areg(1))
        a(f"s_lshl_b32 s{sTMP}, s{sU}, 12")
        a(f"s_add_u32 s{sT2}, s{sTMP}, s{sKVR}")
        a(f"v_add_u32 v{vKL}, s{sT2}, v{vL16}")
        a.wait_lg0()
        a("s_barrier")
        self.stamp("b1")
        ah = {}
        for k in range(2, 10):
            if k < 8: ah[k] = a(f"ds_read_b128 {vr(areg(k),4)}, v{vAG + k//2 - 1} offset:{L_IA + (k%2)*4096}")
            else: ah[k] = a(f"ds_read_b128 {vr(areg(k),4)}, v{vL16} offset:{L_IA + k*1024}")
        self.smf(("v", 0), V, areg(0))
        a(f"s_xor_b32 s{sTMP}, s{sTMP}, 0x1000")
        a(f"s_add_u32 s{sT2}, s{sTMP}, s{sKVR}")
        a(f"v_add_u32 v{vKR}, s{sT2}, v{vL16}")
        self.smf(("v", 1), V, areg(1))
        a(f"s_lshr_b32 s{sTMP}, s{sKVM}, 1")
        a(f"s_add_u32 s{sT2}, s{sTMP}, s{sKVR}")
        a(f"v_add_u32 v{vVX}, s{sT2}, v{vL16}")
        for k in range(2, 10):
            a.wait(ah[k])
            self.smf(("q", k), ZQ, areg(k))
            kk = k - 2
            if kk == 5: a(f"s_waitcnt vmcnt(0)")
            a(f"ds_read_b128 {vr(KXR+4*kk,4)}, v{vKL if kk < 4 else vKR} offset:{(kk%4)*1024}")
            self.smf(("k", k), ZK, areg(k))
            if "tmask" in self.opts: a(f"v_mov_b32 v{TREG[kk]}, s{sTAG0}")
        self.stamp(1)
        vs = {"done": 2}
        def vfill(n):
            for _ in range(n):
                k = vs["done"]
                if k >= 10: return
                self.smf(("v", k), V, areg(k))
                vs["done"] += 1
        vfill(2)
        for r in range(4): a(f"v_permlane32_swap_b32 v{ZQ+r}, v{ZK+r}")
        a(f"v_pk_add_f32 {vr(ZQ,2)}, {vr(ZQ,2)}, {vr(ZK,2)}")
        a(f"v_pk_add_f32 {vr(ZQ+2,2)}, {vr(ZQ+2,2)}, {vr(ZK+2,2)}")
        a(f"v_cvt_pk_bf16_f32 v{TT}, v{ZQ}, v{ZQ+1}")
        a(f"v_cvt_pk_bf16_f32 v{TT+1}, v{ZQ+2}, v{ZQ+3}")
        a(f"ds_read_b128 {vr(VXR,4)}, v{vVX} offset:8192")
        a(f"v_mfma_f32_16x16x16_bf16 {vr(ZK,4)}, {vr(TT,2)}, {vr(vID0,2)}, 0")
        vfill(2)
        a(f"v_cvt_pk_bf16_f32 v{TT+1}, v{ZK+2}, v{ZK+3}")
        a(f"v_cvt_pk_bf16_f32 v{TT+2}, v{ZK}, v{ZK+1}")
        a(f"v_and_or_b32 v{TT+3}, v{TT+1}, -2, s{sTAG0}")
        a(f"buffer_store_dwordx2 {vr(TT+2,2)}, v{vTW}, {sr(sWS,4)}, s{sTBW} offen")
        a(f"v_mov_b32 v{TT}, v{TT+2}")
        a(f"ds_write_b64 v{vTW}, {vr(TT,2)} offset:{L_T}")
        self.stamp("ts")
        vfill(2)
        a.wait_lg0()
        a("s_barrier")
        self.stamp(2)
        hq = [a(f"ds_read_b128 {vr(TLQ+4*k,4)}, v{vTQ} offset:{L_T + k*1024}") for k in range(2)]
        hkk = [a(f"ds_read_b128 {vr(TLK+4*k,4)}, v{vTK} offset:{L_T + k*1024}") for k in range(2)]
        def tissue():
            if "tmask" not in self.opts:
                return [a(f"buffer_load_dwordx4 {vr(TRQ,4)}, v{vTQ}, {sr(sWS,4)}, s{sTBR} offen sc1"),
                        a(f"buffer_load_dwordx4 {vr(TRK,4)}, v{vTK}, {sr(sWS,4)}, s{sTBR} offen sc1"),
                        a(f"buffer_load_dwordx4 {vr(TRQ+4,4)}, v{vTQ}, {sr(sWS,4)}, s{sTBR} offen offset:1024 sc1"),
                        a(f"buffer_load_dwordx4 {vr(TRK+4,4)}, v{vTK}, {sr(sWS,4)}, s{sTBR} offen offset:1024 sc1")]
            a(f"s_mov_b64 exec, {sr(sMLO,2)}")
            h0 = a(f"buffer_load_dwordx4 {vr(TRQ,4)}, v{vTQ}, {sr(sWS,4)}, s{sTBR} offen sc1")
            h2 = a(f"buffer_load_dwordx4 {vr(TRQ+4,4)}, v{vTQ}, {sr(sWS,4)}, s{sTBR} offen offset:1024 sc1")
            a(f"s_mov_b64 exec, {sr(sM40,2)}")
            h1 = a(f"buffer_load_dwordx4 {vr(TRK,4)}, v{vTK}, {sr(sWS,4)}, s{sTBR} offen sc1")
            h3 = a(f"buffer_load_dwordx4 {vr(TRK+4,4)}, v{vTK}, {sr(sWS,4)}, s{sTBR} offen offset:1024 sc1")
            a(f"s_mov_b64 exec, -1")
            return [h0, h2, h1, h3]
        vfill(2)
        if self.opt("t1", 0) == 0: ths = tissue()
        def smm(Q, K, kx, first):
            c = lambda d: "0" if first else vr(d, 4)
            a(f"v_mfma_f32_16x16x32_bf16 {vr(D3,4)}, {vr(kx,4)}, {vr(Q,4)}, {c(D3)}")
            a(f"v_mfma_f32_16x16x32_bf16 {vr(D3+4,4)}, {vr(kx+4,4)}, {vr(Q,4)}, {c(D3+4)}")
            a(f"v_mfma_f32_16x16x32_bf16 {vr(D3+8,4)}, {vr(K,4)}, {vr(Q,4)}, {c(D3+8)}")
        a.wait(hq, hkk)
        smm(TLQ, TLK, KXR, True)
        if self.opt("t1", 0) == 1: ths = tissue()
        if self.opt("so", 0) == 1: slow_ops()
        smm(TLQ + 4, TLK + 4, KXR + 8, False)
        a(f"v_permlane32_swap_b32 v{V}, v{V+2}")
        a(f"v_permlane32_swap_b32 v{V+1}, v{V+3}")
        a(f"v_pk_add_f32 {vr(V,2)}, {vr(V,2)}, {vr(V+2,2)}")
        a(f"v_cvt_pk_bf16_f32 v{VP}, v{V}, v{V+1}")
        a(f"ds_write_b32 v{vVW}, v{VP} offset:{L_V}")
        for c in range(5):
            a(f"v_mov_b64 {vr(ACC[c],2)}, 0")
            a(f"v_mov_b64 {vr(ACC[c]+2,2)}, 0")
        a(f"v_mov_b64 {vr(V,2)}, 0")
        a(f"v_mov_b64 {vr(V+2,2)}, 0")
        for r in range(4): a(f"v_mov_b32 v{vONE+r}, 0x3F803F80")
        a(f"v_mov_b64 {vr(ZQ,2)}, 0")
        a(f"v_mov_b64 {vr(ZQ+2,2)}, 0")
        a(f"v_mov_b64 {vr(ZK,2)}, 0")
        a(f"v_mov_b64 {vr(ZK+2,2)}, 0")
        a(f"s_add_u32 s{sKVR}, s{sKVR}, 12288")
        a(f"s_cmp_eq_u32 s{sKVR}, {L_KV + NKV*12288}")
        a(f"s_cselect_b32 s{sKVR}, {L_KV}, s{sKVR}")
        a(f"s_mov_b32 s{sSPIN}, 1")
        for n, r in enumerate(TREG):
            a.wait(ths[n // 2])
            self.ck(r, sTAG0, n == 0)
        a(f"v_and_b32 v{vCK}, 1, v{vCK}")
        a(f"v_cmp_ne_u32 vcc, 0, v{vCK}")
        a(f"s_cbranch_vccz L_tok")
        save = list(a.vm)
        self.poll("L_tpoll", tissue, TREG, sTAG0, thr=0)
        a.vm = save
        a.label("L_tok")
        if self.stamps: a(f"s_mov_b32 s{sT5}, s{sSPIN}")
        self.stamp(3)
        smm(TRQ, TRK, KXR + 16, False)
        smm(TRQ + 4, TRK + 4, KXR + 24, False)
        if self.opt("so", 0) == 0: slow_ops()
        a(f"s_cmp_eq_u32 s{sSTEP}, 63")
        a(f"s_cbranch_scc1 L_last")
        M, M2 = vT0, vT3
        S = [D3, D3+1, D3+2, D3+3, D3+8]
        for r in range(4):
            a(f"v_mov_b32_dpp v{D3+r}, v{D3+4+r} row_ror:8 row_mask:0xf bank_mask:0xc")
        a(f"v_max3_f32 v{M}, v{S[0]}, v{S[1]}, v{S[2]}")
        a(f"v_mov_b32_dpp v{D3+8}, v{D3+9} row_ror:8 row_mask:0xf bank_mask:0xc")
        a(f"v_max3_f32 v{M}, v{M}, v{S[3]}, v{S[4]}")
        a(f"v_max_f32_dpp v{M}, v{M}, v{M} row_ror:8 row_mask:0xf bank_mask:0xf")
        a(f"v_mov_b32 v{M2}, v{M}")
        a(f"v_permlane16_swap_b32 v{M}, v{M2}")
        a(f"v_max_f32 v{M}, v{M}, v{M2}")
        a(f"v_mov_b32 v{M2}, v{M}")
        a(f"v_permlane32_swap_b32 v{M}, v{M2}")
        a(f"v_max_f32 v{M}, v{M}, v{M2}")
        a(f"v_mul_f32 v{M}, s{sC}, v{M}")
        for s_ in S: a(f"v_fma_f32 v{s_}, v{s_}, s{sC}, -v{M}")
        for s_ in S: a(f"v_exp_f32 v{s_}, v{s_}")
        P = PP; PM = PP + 4
        Ls = vT0
        a(f"v_cvt_pk_bf16_f32 v{P}, v{S[0]}, v{S[1]}")
        a(f"v_cvt_pk_bf16_f32 v{P+1}, v{S[2]}, v{S[3]}")
        a(f"v_mov_b32_dpp v{vT2}, v{S[4]} row_ror:8 row_mask:0xf bank_mask:0xf")
        a(f"v_mov_b32_dpp v{P+2}, v{P} row_ror:8 row_mask:0xf bank_mask:0xf")
        a(f"v_mov_b32_dpp v{P+3}, v{P+1} row_ror:8 row_mask:0xf bank_mask:0xf")
        a(f"v_cvt_pk_bf16_f32 v{PM}, v{S[4]}, v{vT2}")
        a(f"s_nop 0")
        a(f"v_mfma_f32_16x16x32_bf16 {vr(D3,4)}, {vr(vONE,4)}, {vr(P,4)}, 0")
        a(f"v_mfma_f32_16x16x16_bf16 {vr(D3+8,4)}, {vr(vONE,2)}, {vr(PM,2)}, 0")
        a(f"v_mfma_f32_16x16x32_bf16 {vr(DO,4)}, {vr(VXR,4)}, {vr(P,4)}, 0")
        a(f"v_mfma_f32_16x16x16_bf16 {vr(D3+4,4)}, {vr(VP,2)}, {vr(PM,2)}, 0")
        self.stamp(4)
        a(f"v_add_f32 v{Ls}, v{D3}, v{D3+8}")
        a(f"v_rcp_f32 v{Ls}, v{Ls}")
        a(f"v_pk_add_f32 {vr(DO,2)}, {vr(DO,2)}, {vr(D3+4,2)}")
        a(f"v_pk_add_f32 {vr(DO+2,2)}, {vr(DO+2,2)}, {vr(D3+6,2)}")
        a(f"s_mov_b64 exec, {sr(sMLO,2)}")
        a(f"v_pk_mul_f32 {vr(DO,2)}, {vr(DO,2)}, {vr(Ls,2)} op_sel_hi:[1,0]")
        a(f"v_pk_mul_f32 {vr(DO+2,2)}, {vr(DO+2,2)}, {vr(Ls,2)} op_sel_hi:[1,0]")
        a(f"v_cvt_pk_bf16_f32 v{DO}, v{DO}, v{DO+1}")
        a(f"v_cvt_pk_bf16_f32 v{DO+1}, v{DO+2}, v{DO+3}")
        a(f"ds_write_b64 v{vOW}, {vr(DO,2)} offset:{L_O}")
        a(f"s_mov_b64 exec, -1")
        self.stamp("pb3")
        a.wait_lg0()
        a("s_barrier")
        self.stamp("b3")
        oh = [a(f"ds_read_b128 {vr(AO+4*j,4)}, v{vA} offset:{L_O + j*512}") for j in range(2)]
        def publish(c):
            A_ = ACC[c]
            a(f"v_cvt_pk_bf16_f32 v{A_}, v{A_}, v{A_+1}")
            a(f"v_cvt_pk_bf16_f32 v{A_+1}, v{A_+2}, v{A_+3}")
            a(f"v_and_or_b32 v{A_+1}, v{A_+1}, -2, s{sTAG0}")
            a(f"buffer_store_dwordx2 {vr(A_,2)}, v{vPS}, {sr(sWS,4)}, s{sPB0} offen offset:{c*512}")
        for c in range(5):
            for j in range(2):
                a.wait(oh[j])
                self.smf(("WO", c, j), ACC[c], AO + 4 * j)
            if c >= 1: publish(c - 1)
        publish(4)
        self.stamp(5)
        a(f"s_cmp_eq_u32 s{sHASJ}, 0")
        a(f"s_cbranch_scc1 L_red_skip")
        D = D3; DB = D3 + 4
        def rissue():
            return [a(f"buffer_load_dwordx2 {vr(RL+2*i,2)}, v{vRD}, {sr(sWS,4)}, s{sRD+i} offen sc1") for i in range(8)]
        a(f"s_cmp_eq_u32 s{sW}, 2")
        a(f"s_cbranch_scc1 L_rs_done")
        if self.opt("rs1", 2): a(f"s_sleep {self.opt('rs1', 2)}")
        a(f"s_cmp_eq_u32 s{sW}, 1")
        a(f"s_cbranch_scc1 L_rs_done")
        if self.opt("rs0", 2): a(f"s_sleep {self.opt('rs0', 2)}")
        a.label("L_rs_done")
        if self.opt("rs2", 0): a(f"s_sleep {self.opt('rs2', 0)}")
        a(f"s_mov_b32 s{sSPIN}, 0")
        self.stamp("r0")
        a.label("L_red")
        hs = rissue()
        self.stamp("r1")
        a(f"s_add_u32 s{sSPIN}, s{sSPIN}, 1")
        a(f"s_cmp_gt_u32 s{sSPIN}, {SPIN_MAX}")
        a(f"s_cbranch_scc1 L_fail")
        for i in range(4):
            a.wait(hs[2*i+1])
            if i == 0: self.stamp("r2")
            if i == 3: self.stamp("r3")
            self.ck(RL + 4*i + 1, sTAG0, i == 0)
            self.ck(RL + 4*i + 3, sTAG0, False)
            a(f"v_mfma_f32_16x16x32_bf16 {vr(D,4)}, {vr(RL+4*i,4)}, {vr(vSEL4,4)}, {vr(D,4) if i else 0}")
        a(f"v_and_b32 v{vCK}, 1, v{vCK}")
        a(f"v_cmp_ne_u32 vcc, 0, v{vCK}")
        a(f"s_cbranch_vccnz L_red")
        if self.stamps: a(f"s_mov_b32 s{sT4}, s{sSPIN}")
        a(f"v_cvt_pk_bf16_f32 v{D}, v{D}, v{D+1}")
        a(f"v_cvt_pk_bf16_f32 v{D+1}, v{D+2}, v{D+3}")
        if "nobp" in self.opts:
            a(f"v_and_or_b32 v{D+1}, v{D+1}, -2, s{sTAG1}")
            a(f"s_mov_b64 exec, {sr(sMPB,2)}")
            a(f"buffer_store_dwordx2 {vr(D,2)}, v{vPB}, {sr(sWS,4)}, s{sJR} offen sc1")
            a(f"buffer_store_dwordx2 {vr(D,2)}, v{vPB}, {sr(sWS,4)}, s{sJL} offen")
            a(f"s_mov_b64 exec, -1")
        else:
            a(f"ds_bpermute_b32 v{DB}, v{vBP}, v{D}")
            a(f"v_and_or_b32 v{D+1}, v{D+1}, -2, s{sTAG1}")
            a(f"ds_bpermute_b32 v{DB+1}, v{vBP}, v{D+1}")
            a(f"s_mov_b64 exec, 0xFFFF")
            a.wait_lg0()
            a(f"buffer_store_dwordx2 {vr(DB,2)}, v{vXA}, {sr(sWS,4)}, s{sJR} offen sc1")
            a(f"buffer_store_dwordx2 {vr(DB,2)}, v{vXA}, {sr(sWS,4)}, s{sJL} offen")
            a(f"s_mov_b64 exec, -1")
        a.label("L_red_skip")
        a(f"s_cmp_lg_u32 s{sW}, 3")
        a(f"s_cbranch_scc1 L_nex")
        ex_read()
        a.wait_lg0()
        a.label("L_nex")
        self.stamp(6)
        a("s_barrier")
        self.stamp("b0")
        GREGB = [GB + 2*i + 1 for i in range(5)]
        def gissue(R, sb):
            return lambda: [a(f"buffer_load_dwordx4 {vr(R,4)}, v{vG0}, {sr(sWS,4)}, s{sb} offen sc1"),
                    a(f"buffer_load_dwordx4 {vr(R+4,4)}, v{vG1}, {sr(sWS,4)}, s{sb} offen sc1"),
                    a(f"buffer_load_dwordx2 {vr(R+8,2)}, v{vG2}, {sr(sWS,4)}, s{sb} offen sc1")]
        self.poison(GREG + GREGB, sTAG1)
        self.kv_check()
        if self.opt("ad", 4): a(f"s_sleep {self.opt('ad', 4)}")
        gissue(GL, sGL)()
        if self.opt("bd", 3): a(f"s_sleep {self.opt('bd', 3)}")
        def both():
            gissue(GB, sGR)()
        gissue(GB, sGR)()
        a(f"s_waitcnt vmcnt(3)")
        for n, r in enumerate(GREG): self.ck(r, sTAG1, n == 0)
        a(f"v_and_b32 v{vCK}, 1, v{vCK}")
        a(f"v_cmp_ne_u32 vcc, 0, v{vCK}")
        a(f"s_mov_b32 s{sSPIN}, 0")
        a(f"s_cbranch_vccz L_ga_ok")
        self.poll("L_ga", gissue(GL, sGL), GREG, sTAG1, thr=0)
        a.label("L_ga_ok")
        if self.stamps: a(f"s_mov_b32 s{sT3}, s{sSPIN}")
        self.stamp("ga")
        x2 = self.opt("x2", 1)
        if x2: gissue(GB, sGR)()
        for i in range(10):
            a(f"v_lshlrev_b32 v{AU+2*i}, 16, v{GL+i}")
            a(f"v_and_b32 v{AU+2*i+1}, 0xFFFF0000, v{GL+i}")
        a(f"s_waitcnt vmcnt({3 if x2 else 0})")
        for n, r in enumerate(GREGB): self.ck(r, sTAG1, n == 0)
        a(f"v_and_b32 v{vCK}, 1, v{vCK}")
        a(f"v_cmp_ne_u32 vcc, 0, v{vCK}")
        a(f"s_mov_b32 s{sSPIN}, 0")
        a(f"s_cbranch_vccz L_gb_ok")
        self.poll("L_gb", gissue(GB, sGR), GREGB, sTAG1, thr=self.opt("gthr", 0))
        a.label("L_gb_ok")
        self.stamp("gb")
        self.stamp(7)
        a(f"s_add_u32 s{sSTEP}, s{sSTEP}, 1")
        a(f"s_and_b32 s{sTAG0}, s{sSTEP}, 1")
        a(f"s_bfe_u32 s{sTAG1}, s{sSTEP}, 0x10001")
        for r in (sJL, sGL): a(f"s_add_u32 s{r}, s{r}, s{sSLOT}")
        for r in (sJR, sGR): a(f"s_add_u32 s{r}, s{r}, 32768")
        a(f"s_sub_u32 s{sSLOT}, 0, s{sSLOT}")
        if self.stamps:
            a.wait_lg0()
            for i in range(8):
                a(f"v_mov_b32 v{TLQ+i}, s{sTM+2*i}")
            for i, r in enumerate([sT5, sT4, sT3, sSPIN]):
                a(f"v_mov_b32 v{TLQ+8+i}, s{r}")
            a(f"v_mov_b32 v{vT1}, 0")
            a(f"s_mov_b64 exec, 1")
            for i in range(3):
                a(f"buffer_store_dwordx4 {vr(TLQ+4*i,4)}, v{vT1}, {sr(sWS,4)}, s{sSTAMP} offen offset:{16*i}")
            a(f"s_mov_b64 exec, -1")
            a(f"s_add_u32 s{sSTAMP}, s{sSTAMP}, 128")

def team_code(a, stamps, opts, exit_label="L_end"):
    t = Team(a, stamps, opts)
    t.setup()
    if "lateinit" not in opts: t.init_buffers()
    if "full" not in opts:
        a(f"s_or_b32 s{sTMP}, s{sX}, s{sR}")
        a(f"s_or_b32 s{sTMP}, s{sTMP}, s{sW}")
        a(f"s_cmp_lg_u32 s{sTMP}, 0")
        a(f"s_cbranch_scc1 L_noprobe")
        probe(a, vT0, opts)
        a.label("L_noprobe")
    if stamps: a(f"s_memtime {sr(sTM+16,2)}")
    t.load_weights()
    t.wait_team(52)
    if stamps:
        a(f"s_memtime {sr(sTM,2)}")
        a.wait_lg0()
        a(f"s_sub_u32 s{sTMP}, s{sTM}, s{sTM+16}")
        a(f"v_mov_b32 v{vT0}, s{sTMP}")
        a(f"v_mov_b32 v{vT1}, 0")
        a(f"buffer_store_dword v{vT0}, v{vT1}, {sr(sWS,4)}, s{sSTAMP} offen offset:64")
        a.wait_vm0()
    if "rt" in opts:
        import gen_full
        gen_full.mark(a, 5, True, 40, 41)
    if "dbgt" in opts: a("s_memrealtime s[92:93]")
    t.prologue()
    if "dbgt" in opts: a("s_memrealtime s[94:95]")
    if "rt" in opts: gen_full.mark(a, 1, True, 60, 61)
    a.label("L_loop")
    t.step(exit_label)
    a("s_branch L_loop")
    a.label("L_last")
    t.exports()
    a(f"s_branch {exit_label}")

def election(a):
    a("s_cmp_ge_u32 s2, 256")
    a("s_cbranch_scc1 L_end")
    a(f"s_load_dwordx2 {sr(sDBG,2)}, s[0:1], 64")
    a(f"s_load_dwordx2 {sr(sWS,2)}, s[0:1], 72")
    a(f"s_getreg_b32 s{sXCC}, hwreg(HW_REG_XCC_ID)")
    a(f"s_and_b32 s{sXCC}, s{sXCC}, 7")
    a(f"v_lshrrev_b32 v1, 6, v0")
    a(f"v_readfirstlane_b32 s{sW}, v1")
    a("s_waitcnt lgkmcnt(0)")
    a(f"s_and_b32 s{sWS+1}, s{sWS+1}, 0xffff")
    a(f"s_mov_b32 s{sWS+2}, {WS_BYTES}")
    a(f"s_mov_b32 s{sWS+3}, 0x00020000")
    a(f"v_mov_b32 v5, 0")
    a(f"s_cmp_lg_u32 s{sW}, 0")
    a("s_cbranch_scc1 L_el_done")
    a("s_mov_b64 exec, 1")
    a(f"s_lshl_b32 s{sTMP}, s{sXCC}, 2")
    a(f"v_mov_b32 v1, s{sTMP}")
    a(f"v_mov_b32 v2, 1")
    a(f"global_atomic_add v3, v1, v2, {sr(sDBG,2)} sc0 sc1")
    a.wait_vm0()
    a(f"v_readfirstlane_b32 s{sR}, v3")
    a(f"s_lshr_b32 s{sT2}, s{sXCC}, 1")
    a(f"s_cmp_lg_u32 s{sR}, 31")
    a("s_cbranch_scc1 L_el_poll0")
    a(f"s_lshl_b32 s{sTMP}, s{sT2}, 2")
    a(f"s_add_u32 s{sTMP}, s{sTMP}, 36")
    a(f"v_mov_b32 v1, s{sTMP}")
    a(f"global_atomic_add v3, v1, v2, {sr(sDBG,2)} sc0 sc1")
    a.wait_vm0()
    a(f"v_readfirstlane_b32 s{sTMP}, v3")
    a(f"s_cmp_lg_u32 s{sTMP}, 1")
    a("s_cbranch_scc1 L_el_poll0")
    a(f"s_add_u32 s{sTMP}, s{sT2}, 1")
    a(f"v_mov_b32 v1, 32")
    a(f"v_mov_b32 v2, s{sTMP}")
    a(f"v_mov_b32 v3, 0")
    a(f"global_atomic_cmpswap v1, v[2:3], {sr(sDBG,2)} sc1")
    a.label("L_el_poll0")
    a(f"v_mov_b32 v1, 32")
    a(f"s_mov_b32 s{sSPIN}, 0")
    a.label("L_el_poll")
    a(f"global_load_dword v2, v1, {sr(sDBG,2)} sc1")
    a(f"s_add_u32 s{sSPIN}, s{sSPIN}, 1")
    a(f"s_mov_b32 s{sTMP}, 0")
    a(f"s_cmp_gt_u32 s{sSPIN}, {SPIN_MAX}")
    a("s_cbranch_scc1 L_el_got")
    a.wait_vm0()
    a(f"v_readfirstlane_b32 s{sTMP}, v2")
    a(f"s_cmp_eq_u32 s{sTMP}, 0")
    a("s_cbranch_scc1 L_el_poll")
    a.label("L_el_got")
    a.wait_vm0()
    a(f"s_add_u32 s{sT2}, s{sT2}, 1")
    a(f"s_cmp_eq_u32 s{sTMP}, s{sT2}")
    a(f"s_cselect_b32 s{sR}, s{sR}, 255")
    a(f"s_min_u32 s{sR}, s{sR}, 255")
    a(f"v_mov_b32 v2, s{sR}")
    a(f"ds_write_b32 v5, v2")
    a.wait_lg0()
    a("s_mov_b64 exec, -1")
    a.label("L_el_done")
    a("s_barrier")
    a(f"ds_read_b32 v2, v5")
    a.wait_lg0()
    a(f"v_readfirstlane_b32 s{sR}, v2")
    a("s_barrier")
    a(f"s_and_b32 s{sX}, s{sXCC}, 1")
    a(f"s_cmp_ge_u32 s{sR}, 32")
    a("s_cbranch_scc1 L_end")

def probe(a, v0, opts=()):
    a(f"s_mov_b64 exec, 1")
    a(f"s_sub_u32 s{sT5}, 0, s{sWS}")
    a(f"s_and_b32 s{sT5}, s{sT5}, 0x1FFFFF")
    a(f"s_lshl_b32 s{sTMP}, s{sXCC}, 15")
    a(f"s_add_u32 s{sT5}, s{sT5}, s{sTMP}")
    a(f"s_mov_b32 s{sTM+4}, 1")
    ad = lambda blk, hf, rep: IMGR + blk*0x400000 + 0x5000 + hf*8192 + rep*256
    for blk in range(2):
        for rep in range(3):
            for hf in range(2):
                a(f"v_mov_b32 v{v0}, {ad(blk, hf, rep):#x}")
                a(f"buffer_store_dword v{v0}, v{v0}, {sr(sWS,4)}, s{sT5} offen sc1")
    a.wait_vm0()
    for blk in range(2):
        a(f"s_mov_b32 s{sT2}, -1")
        a(f"s_mov_b32 s{sT3}, -1")
        for rep in range(3):
            for hf in range(2):
                a(f"v_mov_b32 v{v0}, {ad(blk, hf, rep):#x}")
                a(f"s_memtime {sr(sTM,2)}")
                a(f"s_waitcnt lgkmcnt(0)")
                a(f"buffer_load_dword v{v0+1}, v{v0}, {sr(sWS,4)}, s{sT5} offen sc1")
                a.wait_vm0()
                a(f"s_memtime {sr(sTM+2,2)}")
                a(f"s_waitcnt lgkmcnt(0)")
                a(f"s_sub_u32 s{sTMP}, s{sTM+2}, s{sTM}")
                a(f"s_min_u32 s{sT2+hf}, s{sT2+hf}, s{sTMP}")
        a(f"s_cmp_lt_u32 s{sT3}, s{sT2}")
        a(f"s_cselect_b32 s{sTMP}, {0x2000 << blk:#x}, 0")
        a(f"s_or_b32 s{sTM+4}, s{sTM+4}, s{sTMP}")
    if "far" in opts: a(f"s_xor_b32 s{sTM+4}, s{sTM+4}, 0x6000")
    a(f"v_mov_b32 v{v0}, 56")
    a(f"v_mov_b32 v{v0+2}, s{sTM+4}")
    a(f"v_mov_b32 v{v0+3}, 0")
    a(f"global_atomic_cmpswap v{v0}, {vr(v0+2,2)}, {sr(sDBG,2)} sc1")
    a.wait_vm0()
    a(f"s_mov_b64 exec, -1")
```

```python
from asmlib import *
from team9 import KF, EF, KXI, VXI, QXI, KMI, VMI, sWS, sDBG, sW, sTMP, sSPIN, SPIN_MAX, fbits
from proj import srd

EP = 0x6000000
eWO = 8; eOUT = 12
eE, eH, eSEG, eIT = 28, 29, 30, 31
eA, eB, eC2, eD = 32, 33, 34, 35
eMSK = 36
eC = 52
eEPW, eEPR = 53, 54
eJ = 55
eM32 = 56
eT = 58
eKF, eEF = 66, 67
D_BLK = 64
D_Q = 160
D_ENG = 192
D_KM = 208
gL16, gL4, gKM, gOW, gPS, gRD, gOUT = 0, 1, 2, 3, 4, 5, 6
gT0, gT1, gT2, gT3 = 8, 9, 10, 11
gSEL = 12
KX = 16
QF = 48
KMF = 64
VXF = 80
WOF = 96
L_OI = 0

def blk_of_seg(a, sseg, sdst):
    a(f"s_sub_u32 s{sTMP}, s{sseg}, 18")
    a(f"s_lshr_b32 s{sTMP}, s{sTMP}, 2")
    a(f"s_add_u32 s{sdst}, s{sTMP}, 12")
    a(f"s_add_u32 s{sTMP}, s{sseg}, 6")
    a(f"s_lshr_b32 s{sTMP}, s{sTMP}, 1")
    a(f"s_cmp_lt_u32 s{sseg}, 18")
    a(f"s_cselect_b32 s{sdst}, s{sTMP}, s{sdst}")
    a(f"s_cmp_lt_u32 s{sseg}, 6")
    a(f"s_cselect_b32 s{sdst}, s{sseg}, s{sdst}")

def wait_ctr(a, lab, soff, sthr, vt0, vt1, sleep=8):
    a(f"v_mov_b32 v{vt0}, s{soff}")
    a(f"s_mov_b32 s{sSPIN}, 0")
    a.label(lab)
    a(f"global_load_dword v{vt1}, v{vt0}, {sr(sDBG,2)} sc1")
    a(f"s_add_u32 s{sSPIN}, s{sSPIN}, 1")
    a(f"s_cmp_gt_u32 s{sSPIN}, {SPIN_MAX}")
    a(f"s_cbranch_scc1 L_fail")
    a.wait_vm0()
    a(f"v_readfirstlane_b32 s{sTMP}, v{vt1}")
    a(f"s_cmp_ge_u32 s{sTMP}, s{sthr}")
    a(f"s_cbranch_scc1 {lab}_ok")
    a(f"s_sleep {sleep}")
    a(f"s_branch {lab}")
    a.label(f"{lab}_ok")

def wait_vec(a, lab, soff, nl, sthr, sleep):
    a(f"s_mov_b32 s{sSPIN}, 0")
    a(f"s_mov_b64 exec, {hex((1 << nl) - 1)}")
    a.label(lab)
    a(f"buffer_load_dword v{gT1}, v{gL4}, {sr(sWS,4)}, s{soff} offen sc1")
    a(f"s_add_u32 s{sSPIN}, s{sSPIN}, 1")
    a(f"s_cmp_gt_u32 s{sSPIN}, {SPIN_MAX}")
    a(f"s_cbranch_scc1 L_fail")
    a.wait_vm0()
    a(f"v_cmp_gt_u32 vcc, s{sthr}, v{gT1}")
    a(f"s_cbranch_vccz {lab}_ok")
    a(f"s_sleep {sleep}")
    a(f"s_branch {lab}")
    a.label(f"{lab}_ok")
    a(f"s_mov_b64 exec, -1")

def engine_setup(a):
    srd(a, eWO, 40, 5242880); srd(a, eOUT, 56, 2621440)
    L, N, G_, R, C = 16, 17, 18, 19, 20
    a(f"v_lshrrev_b32 v{L}, 4, v{gL16}")
    a(f"v_lshrrev_b32 v{gL4}, 2, v{gL16}")
    a(f"v_and_b32 v{N}, 15, v{L}")
    a(f"v_lshrrev_b32 v{G_}, 4, v{L}")
    a(f"v_lshrrev_b32 v{R}, 2, v{N}")
    a(f"v_and_b32 v{C}, 3, v{N}")
    a(f"s_mul_i32 s{eA}, s{eH}, 163840")
    a(f"s_mul_i32 s{eB}, s{sW}, 40960")
    a(f"s_add_u32 s{eA}, s{eA}, s{eB}")
    for i in range(40):
        if i % 4 == 0:
            a(f"s_add_u32 m0, s{eB}, {i*1024}")
            a(f"s_add_u32 s{eC2}, s{eA}, {i*1024}")
        a(f"buffer_load_dwordx4 v{gL16}, {sr(eWO,4)}, s{eC2} offen offset:{(i%4)*1024} lds")
    a(f"v_and_b32 v21, 1, v{R}")
    a(f"v_lshlrev_b32 v21, 2, v21")
    a(f"v_lshrrev_b32 v22, 3, v{N}")
    a(f"v_lshl_add_u32 v21, v22, 1, v21")
    a(f"v_and_b32 v22, 1, v{N}")
    a(f"v_add_u32 v21, v21, v22")
    a(f"v_lshlrev_b32 v{gKM}, 7, v{G_}")
    a(f"v_lshl_add_u32 v{gKM}, v21, 4, v{gKM}")
    a(f"v_lshrrev_b32 v21, 1, v{G_}")
    a(f"v_and_b32 v22, 1, v{G_}")
    a(f"v_lshlrev_b32 v{gOW}, 8, v21")
    a(f"v_lshl_add_u32 v{gOW}, v{N}, 4, v{gOW}")
    a(f"v_lshl_add_u32 v{gOW}, v22, 3, v{gOW}")
    a(f"s_and_b32 s{eC2}, s{sW}, 1")
    a(f"s_lshl_b32 s{eD}, s{eC2}, 10")
    a(f"s_lshr_b32 s{sTMP}, s{sW}, 1")
    a(f"s_lshl_b32 s{sTMP}, s{sTMP}, 12")
    a(f"s_add_u32 s{eD}, s{eD}, s{sTMP}")
    a(f"v_add_u32 v{gOW}, s{eD}, v{gOW}")
    a(f"v_lshlrev_b32 v{gPS}, 6, v{N}")
    a(f"v_lshl_add_u32 v{gPS}, v{G_}, 4, v{gPS}")
    a(f"s_mov_b32 s{sTMP}, 40960")
    a(f"v_mul_lo_u32 v{gRD}, v{G_}, s{sTMP}")
    a(f"v_lshl_add_u32 v{gRD}, v{N}, 4, v{gRD}")
    a(f"s_movk_i32 s{sTMP}, 1280")
    a(f"v_mul_lo_u32 v{gOUT}, v{R}, s{sTMP}")
    a(f"v_lshl_add_u32 v{gOUT}, v{C}, 4, v{gOUT}")
    a(f"v_lshl_add_u32 v{gOUT}, v{G_}, 3, v{gOUT}")
    a(f"v_and_b32 v21, 7, v{N}")
    a(f"v_mov_b32 v22, 0x3F80")
    a(f"v_mov_b32 v23, 0x3F800000")
    for k in range(4): a(f"v_mov_b32 v{gSEL+k}, 0")
    for jj in range(8):
        a(f"v_cmp_eq_u32 vcc, {jj}, v21")
        a(f"v_cndmask_b32 v{gSEL + jj//2}, v{gSEL + jj//2}, v{22 + jj%2}, vcc")
    a(f"v_sub_u32 v21, v{R}, v{G_}")
    a(f"v_lshlrev_b32 v21, 3, v21")
    a(f"v_add_u32 v21, v21, v{C}")
    a(f"s_lshl_b32 s{sTMP}, s{eC2}, 2")
    a(f"v_add_u32 v21, s{sTMP}, v21")
    for k in range(8):
        a(f"v_cmp_le_i32 {sr(eMSK+2*k,2)}, {k}, v21")
    a(f"s_mov_b32 s{eC}, {fbits(128 ** -0.5 * 1.4426950408889634):#x}")
    a(f"s_mov_b32 s{eM32}, -1"); a(f"s_mov_b32 s{eM32+1}, 0")
    a(f"v_lshlrev_b32 v21, 3, v{G_}")
    a(f"v_add_u32 v21, v21, v{R}")
    a(f"s_movk_i32 s{sTMP}, 1280")
    a(f"v_mul_lo_u32 v21, v21, s{sTMP}")
    a(f"v_lshl_add_u32 v21, v{C}, 4, v21")
    a(f"s_mul_i32 s{sTMP}, s{sW}, 320")
    a(f"v_add_u32 v21, s{sTMP}, v21")
    a.wait_vm0()
    a("s_barrier")
    for kp in range(4):
        if kp: a(f"v_add_u32 v21, {32*1280}, v21")
        for p in range(5):
            for tile in range(2):
                f = WOF + ((p * 2 + tile) * 4 + kp) * 4
                for hh in range(2):
                    a(f"ds_read_b64_tr_b16 {vr(f + 2*hh, 2)}, v21 offset:{4*hh*1280 + p*64 + tile*8}")
    a.wait_lg0()
    a("s_barrier")
    a(f"s_lshl_b32 s{eEPR}, s{eE}, 22")
    a(f"s_add_u32 s{eEPR}, s{eEPR}, {EP:#x}")
    a(f"s_mul_i32 s{eEPW}, s{eH}, 40960")
    a(f"s_mul_i32 s{sTMP}, s{sW}, 5120")
    a(f"s_add_u32 s{eEPW}, s{eEPW}, s{sTMP}")
    a(f"s_add_u32 s{eEPW}, s{eEPW}, s{eEPR}")
    a(f"s_mov_b32 s{eSEG}, s{eE}")
    a(f"s_mov_b32 s{eIT}, 0")
    a(f"s_lshl_b32 s{eKF}, s{eH}, 7")
    a(f"s_lshl_b32 s{sTMP}, s{eE}, 12")
    a(f"s_add_u32 s{eKF}, s{eKF}, s{sTMP}")
    a(f"s_add_u32 s{eKF}, s{eKF}, {KF:#x}")
    a(f"s_lshl_b32 s{eEF}, s{eE}, 7")
    a(f"s_add_u32 s{eEF}, s{eEF}, {EF:#x}")
    a(f"s_cmp_lg_u32 s{sW}, 0")
    a(f"s_cbranch_scc1 L_en_s1")
    a(f"s_lshl_b32 s{eA}, s{eE}, 2")
    a(f"s_add_u32 s{eA}, s{eA}, {D_ENG}")
    a(f"s_mov_b32 s{eB}, 32")
    wait_ctr(a, "L_en_i1", eA, eB, gT0, gT1)
    a(f"s_mov_b32 s{eA}, 52")
    a(f"s_mov_b32 s{eB}, 64")
    wait_ctr(a, "L_en_i2", eA, eB, gT0, gT1)
    a.label("L_en_s1")

def engine_loop(a, nE, standalone=False, mark=None, opts=()):
    a.label("L_en_loop")
    a(f"s_cmp_ge_u32 s{eSEG}, 64")
    a(f"s_cbranch_scc1 L_end")
    a(f"s_cmp_lg_u32 s{sW}, 0")
    a(f"s_cbranch_scc1 L_en_go")
    blk_of_seg(a, eSEG, eA)
    a(f"s_lshl_b32 s{eA}, s{eA}, 2")
    a(f"s_add_u32 s{eA}, s{eA}, {D_BLK}")
    a(f"s_mov_b32 s{eB}, 32")
    wait_ctr(a, "L_en_w1", eA, eB, gT0, gT1, sleep=16)
    a.label("L_en_go")
    a("s_barrier")
    a(f"s_lshl_b32 s{eA}, s{eSEG}, 5")
    a(f"s_add_u32 s{eA}, s{eA}, s{eH}")
    a(f"s_lshl_b32 s{eB}, s{eA}, 11")
    a(f"s_lshl_b32 s{eA}, s{eA}, 13")
    a(f"s_add_u32 s{eT}, s{eA}, 4096")
    hk = []
    for k in range(8):
        hk.append(a(f"buffer_load_dwordx4 {vr(KX+4*k,4)}, v{gL16}, {sr(sWS,4)}, s{eA if k < 4 else eT} offen offset:{(k%4)*1024} sc1"))
    a(f"s_and_b32 s{sTMP}, s{sW}, 1")
    a(f"s_lshl_b32 s{sTMP}, s{sTMP}, 10")
    a(f"s_add_u32 s{eT+1}, s{eA}, s{sTMP}")
    a(f"s_add_u32 s{eT+1}, s{eT+1}, {QXI:#x}")
    a(f"s_add_u32 s{eT+2}, s{eT+1}, 4096")
    hq = [a(f"buffer_load_dwordx4 {vr(QF+4*k,4)}, v{gL16}, {sr(sWS,4)}, s{eT+1+k//2} offen offset:{(k%2)*2048} sc1") for k in range(4)]
    a(f"s_lshr_b32 s{sTMP}, s{sW}, 1")
    a(f"s_lshl_b32 s{eT+4}, s{sTMP}, 10")
    a(f"s_lshl_b32 s{sTMP}, s{sTMP}, 12")
    a(f"s_add_u32 s{eT+3}, s{eA}, s{sTMP}")
    a(f"s_add_u32 s{eT+3}, s{eT+3}, {VXI:#x}")
    hv = [a(f"buffer_load_dwordx4 {vr(VXF+4*k,4)}, v{gL16}, {sr(sWS,4)}, s{eT+3} offen offset:{k*1024} sc1") for k in range(4)]
    a(f"s_cmp_lg_u32 s{sW}, 0")
    a(f"s_cbranch_scc1 L_en_go2")
    a(f"s_add_u32 s{eD}, s{eSEG}, 1")
    save = list(a.vm)
    wait_vec(a, "L_en_w2", eKF, 2, eD, 3 if "fastpoll" in opts else 6)
    a.vm = save
    a.label("L_en_go2")
    a("s_barrier")
    a(f"s_add_u32 s{eT+5}, s{eB}, {KMI:#x}")
    hm = [a(f"buffer_load_dwordx4 {vr(KMF+4*k,4)}, v{gKM}, {sr(sWS,4)}, s{eT+5} offen offset:{k*512} sc1") for k in range(4)]
    a(f"s_add_u32 s{eT+4}, s{eT+4}, s{eB}")
    a(f"s_add_u32 s{eT+4}, s{eT+4}, {VMI:#x}")
    for k in range(4): a(f"v_accvgpr_write_b32 a{97+2*k}, 0")
    hvm = [a(f"buffer_load_dword a{96+2*k}, v{gL4}, {sr(sWS,4)}, s{eT+4} offen offset:{k*256} sc1") for k in range(4)]
    SA = 104
    for k in range(4):
        a.wait(hk[2*k+1], hq[k])
        c = lambda d: "0" if k == 0 else ar(d, 4)
        a(f"v_mfma_f32_16x16x32_bf16 {ar(SA,4)}, {vr(KX+8*k,4)}, {vr(QF+4*k,4)}, {c(SA)}")
        a(f"v_mfma_f32_16x16x32_bf16 {ar(SA+4,4)}, {vr(KX+8*k+4,4)}, {vr(QF+4*k,4)}, {c(SA+4)}")
    for k in range(4):
        a.wait(hm[k])
        a(f"v_mfma_f32_16x16x32_bf16 {ar(SA+8,4)}, {vr(KMF+4*k,4)}, {vr(QF+4*k,4)}, {'0' if k == 0 else ar(SA+8,4)}")
    S = [KX + i for i in range(10)]
    a(f"v_mov_b32 v{gT2}, 0xf149f2ca")
    for i in range(10): a(f"v_accvgpr_read_b32 v{S[i]}, a{SA+i}")
    for i in range(8): a(f"v_cndmask_b32 v{S[i]}, v{gT2}, v{S[i]}, {sr(eMSK+2*i,2)}")
    M, M2 = gT0, gT1
    a(f"v_max3_f32 v{M}, v{S[0]}, v{S[1]}, v{S[2]}")
    a(f"v_max3_f32 v{M2}, v{S[3]}, v{S[4]}, v{S[5]}")
    a(f"v_max3_f32 v{M}, v{M}, v{S[6]}, v{S[7]}")
    a(f"v_max3_f32 v{M2}, v{M2}, v{S[8]}, v{S[9]}")
    a(f"v_max_f32 v{M}, v{M}, v{M2}")
    a(f"v_mov_b32 v{M2}, v{M}")
    a(f"v_permlane16_swap_b32 v{M}, v{M2}")
    a(f"v_max_f32 v{M}, v{M}, v{M2}")
    a(f"v_mov_b32 v{M2}, v{M}")
    a(f"v_permlane32_swap_b32 v{M}, v{M2}")
    a(f"v_max_f32 v{M}, v{M}, v{M2}")
    a(f"v_mul_f32 v{M}, s{eC}, v{M}")
    for s_ in S: a(f"v_fma_f32 v{s_}, v{s_}, s{eC}, -v{M}")
    for s_ in S: a(f"v_exp_f32 v{s_}, v{s_}")
    P = KX + 12; PM = KX + 16
    for k in range(5): a(f"v_cvt_pk_bf16_f32 v{P+k}, v{S[2*k]}, v{S[2*k+1]}")
    a(f"v_mov_b32 v{PM+1}, 0")
    Ls = gT0
    a(f"v_add_f32 v{Ls}, v{S[0]}, v{S[1]}")
    for i in range(2, 10): a(f"v_add_f32 v{Ls}, v{Ls}, v{S[i]}")
    DO = QF; DM = KMF
    a.wait(hv, hvm)
    for t in range(4):
        a(f"v_mfma_f32_16x16x32_bf16 {vr(DO+4*t,4)}, {vr(VXF+4*t,4)}, {vr(P,4)}, 0")
    for t in range(4):
        a(f"v_mfma_f32_16x16x16_bf16 {vr(DM+4*t,4)}, {ar(96+2*t,2)}, {vr(PM,2)}, 0")
    a(f"v_mov_b32 v{M2}, v{Ls}")
    a(f"v_permlane16_swap_b32 v{Ls}, v{M2}")
    a(f"v_add_f32 v{Ls}, v{Ls}, v{M2}")
    a(f"v_mov_b32 v{M2}, v{Ls}")
    a(f"v_permlane32_swap_b32 v{Ls}, v{M2}")
    a(f"v_add_f32 v{Ls}, v{Ls}, v{M2}")
    a(f"v_rcp_f32 v{Ls}, v{Ls}")
    for t in range(4):
        for r in range(4):
            a(f"v_add_f32 v{DO+4*t+r}, v{DO+4*t+r}, v{DM+4*t+r}")
            a(f"v_mul_f32 v{DO+4*t+r}, v{DO+4*t+r}, v{Ls}")
        a(f"v_cvt_pk_bf16_f32 v{DO+4*t}, v{DO+4*t}, v{DO+4*t+1}")
        a(f"v_cvt_pk_bf16_f32 v{DO+4*t+1}, v{DO+4*t+2}, v{DO+4*t+3}")
        a(f"ds_write_b64 v{gOW}, {vr(DO+4*t,2)} offset:{L_OI + (t>>1)*2048 + (t&1)*512}")
    a.wait_lg0()
    a("s_barrier")
    OF = KX
    ho = [a(f"ds_read_b128 {vr(OF+4*i,4)}, v{gL16} offset:{L_OI + i*1024}") for i in range(8)]
    a(f"s_add_u32 s{eT}, s{eEPW}, 4096")
    a(f"s_add_u32 s{eT+1}, s{eEPW}, 20480")
    a(f"s_add_u32 s{eT+2}, s{eEPW}, {20480+4096}")
    cnt = [0]
    def store_ops(p):
        ops = []
        for aa in range(2):
            t = QF + (cnt[0] % 4) * 12; cnt[0] += 1
            d = (p * 2 + aa) * 8
            for r in range(8): ops.append(f"v_accvgpr_read_b32 v{t+4+r}, a{d+r}")
            for k in range(4): ops.append(f"v_cvt_pk_bf16_f32 v{t+k}, v{t+4+2*k}, v{t+5+2*k}")
            so = [[eEPW, eT], [eT+1, eT+2]][aa][p // 4]
            ops.append(f"buffer_store_dwordx4 {vr(t,4)}, v{gPS}, {sr(sWS,4)}, s{so} offen offset:{(p%4)*1024}")
        return ops
    pend = []
    for p in range(5):
        nm = 0
        for kp in range(4):
            for aa in range(2):
                a.wait(ho[kp*2 + aa])
                for tile in range(2):
                    d = ((p * 2 + aa) * 2 + tile) * 4
                    f = WOF + ((p * 2 + tile) * 4 + kp) * 4
                    a(f"v_mfma_f32_16x16x32_bf16 {ar(d,4)}, {vr(f,4)}, {vr(OF+4*(kp*2+aa),4)}, {'0' if kp == 0 else ar(d,4)}")
                    nm += 1
                    if nm >= 3:
                        for _ in range(2):
                            if pend: a(pend.pop(0))
        assert not pend
        pend = store_ops(p)
    for o in pend: a(o)
    a.wait_vm0()
    a("s_barrier")
    a(f"s_add_u32 s{eIT}, s{eIT}, 1")
    a(f"s_cmp_lg_u32 s{sW}, 0")
    a(f"s_cbranch_scc1 L_en_nosig")
    a(f"s_lshl_b32 s{eA}, s{eH}, 2")
    a(f"s_add_u32 s{eA}, s{eA}, s{eEF}")
    a(f"v_mov_b32 v{gT0}, s{eIT}")
    a(f"s_mov_b64 exec, 1")
    a(f"buffer_store_dword v{gT0}, v{gL4}, {sr(sWS,4)}, s{eA} offen")
    wait_vec(a, "L_en_w3", eEF, 32, eIT, 1)
    a.label("L_en_nosig")
    a("s_barrier")
    a(f"s_lshl_b32 s{eJ}, s{eH}, 2")
    a(f"s_add_u32 s{eJ}, s{eJ}, s{sW}")
    a.label("L_en_job")
    a(f"s_lshl_b32 s{eA}, s{eJ}, 8")
    a(f"s_add_u32 s{eA}, s{eA}, s{eEPR}")
    hs = []
    for i in range(8):
        hs.append(a(f"buffer_load_dwordx4 {vr(KX+4*i,4)}, v{gRD}, {sr(sWS,4)}, s{eA} offen sc1"))
        if i < 7: a(f"s_add_u32 s{eA}, s{eA}, {4*40960}")
    a(f"s_lshr_b32 s{eB}, s{eJ}, 2")
    a(f"s_cmp_ge_u32 s{eB}, 20")
    a(f"s_cselect_b32 s{eC2}, 4, 0")
    a(f"s_cselect_b32 s{eD}, 20, 0")
    a(f"s_sub_u32 s{eB}, s{eB}, s{eD}")
    a(f"s_and_b32 s{eD}, s{eJ}, 3")
    a(f"s_lshl_b32 s{eD}, s{eD}, 3")
    a(f"s_add_u32 s{eC2}, s{eC2}, s{eD}")
    a(f"s_lshl_b32 s{eD}, s{eSEG}, 5")
    a(f"s_add_u32 s{eC2}, s{eC2}, s{eD}")
    a(f"s_mul_i32 s{eC2}, s{eC2}, 1280")
    a(f"s_lshl_b32 s{eB}, s{eB}, 6")
    a(f"s_add_u32 s{eC2}, s{eC2}, s{eB}")
    D = QF
    for i in range(8):
        a.wait(hs[i])
        a(f"v_mfma_f32_16x16x32_bf16 {vr(D,4)}, {vr(gSEL,4)}, {vr(KX+4*i,4)}, {'0' if i == 0 else vr(D,4)}")
    a(f"v_cvt_pk_bf16_f32 v{D}, v{D}, v{D+1}")
    a(f"v_cvt_pk_bf16_f32 v{D+1}, v{D+2}, v{D+3}")
    a(f"s_mov_b64 exec, {sr(eM32,2)}")
    a(f"buffer_store_dwordx2 {vr(D,2)}, v{gOUT}, {sr(eOUT,4)}, s{eC2} offen")
    a(f"s_mov_b64 exec, -1")
    a(f"s_add_u32 s{eJ}, s{eJ}, 128")
    a(f"s_cmp_lt_u32 s{eJ}, 160")
    a(f"s_cbranch_scc1 L_en_job")
    if "wb" in opts:
        a(f"s_lshl_b32 s{eA}, s{eH}, 2")
        a(f"s_add_u32 s{eA}, s{eA}, s{sW}")
        a(f"s_cmp_lg_u32 s{eA}, 127")
        a(f"s_cbranch_scc1 L_en_nowb")
        a(f"buffer_wbl2 sc1")
        a.label("L_en_nowb")
    if mark: mark()
    a(f"s_xor_b32 s{eEPW}, s{eEPW}, 0x200000")
    a(f"s_xor_b32 s{eEPR}, s{eEPR}, 0x200000")
    a(f"s_add_u32 s{eSEG}, s{eSEG}, {nE}")
    a(f"s_branch L_en_loop")
```

```python
from asmlib import *
import struct

KXI   = 0x0000000
VXI   = 0x1000000
QXI   = 0x2000000
KMI   = 0x3000000
VMI   = 0x3400000
PB    = 0x4000000
PST = 10240 + 128
PBX = 0x80000
IMGL  = 0x41A0000
IMGR  = 0x4400000
TB    = 0x4120000
PROBE = 0x4160000
KF = 0x4170000
EF = 0x4180000
SCR = 0x4190000
STAMP = 0x5000000
WS_BYTES = 268435456

L_IA = 0
L_IB = 10240
L_T  = 20480
L_O  = 22528
L_V  = 23552
L_KV = 24576
NKV = 4
KVD = 2
LDS_BYTES = 163840

vL16, vA, vGW, vAV, vRD, vPB, vPS, vIDX = 0, 1, 2, 3, 4, 5, 6, 7
vID0 = 8; vGG = 10; vSA = 11
vXA = 188
vBLK = 190
vBA = 191
vKMW = 189
vTW, vTQ, vTK, vOW = 12, 13, 14, 15
vG1, vG2 = 16, 17
vKL, vKR, vVX = 19, 20, 21
vL4 = 22
vCK = 23
vT0, vT1, vT2, vT3 = 24, 25, 26, 27
ZQ, ZK, V = 28, 32, 36
GL = 40
AR = 52
KXR = 84
TLQ, TLK, TRQ, TRK = 116, 124, 132, 140
AU = 84
GB = 104
VXR = 148
D3 = 152
TT = 164
DO = 168
PP = 172
VP = 178
vONE = 116
vAG = 180
vBP = 183
vSEL4 = 184
RESV0 = 192
ACC = [AR, AR + 4, AR + 8, AR + 12, AR + 16]
AO = AR + 20
RL = TLQ
vVW = 50
EX = 168
vG0 = 2
vS10, vS01 = 3, 18

sWS = 4; sRA = 8; sDBG = 16
sXCC, sH, sW, sSTEP, sSPIN = 18, 19, 20, 21, 22
sTMP = 23
sX, sR, sU = 24, 25, 26
sKX, sVX, sKM, sVM = 28, 29, 30, 31
sPB0 = 32
sHASJ = 33
sRD = 34
sJL, sJR = 42, 43
sGL, sGR = 44, 45
sTBW, sTBR = 46, 47
sMLO = 48; sMHI = 50; sMPB = 52
sTAG0, sTAG1 = 54, 55
sONE = 56
sC = 58
sSLOT = 59
sKVW, sKVR = 60, 61
sT2, sT3, sT4, sT5 = 62, 63, 64, 65
sSTAMP = 66
sM40 = 68
sGL1, sGL2 = 70, 71
sPT = 72
sKSEG = 76
sRDY = 77
sBL = 78
sKF = 79
sKE = 80
sIB = 81
sKVM = 67
sTM = 84
SPIN_MAX = 200000

def fbits(x):
    return struct.unpack("<I", struct.pack("<f", x))[0]

OPS = [(m, i) for m in "qkv" for i in range(10)] + [("WO", c, j) for c in range(5) for j in range(2)]
PL = {}
for n, op in enumerate(OPS):
    PL[op] = ("a", n * 8) if n < 32 else ("v", RESV0 + (n - 32) * 8)

def breg(op):
    p = PL[op]
    return ar(p[1], 8) if p[0] == "a" else vr(p[1], 8)

class Team:
    def __init__(self, a, stamps=False, opts=()):
        self.a = a
        self.stamps = stamps
        self.opts = set(opts)
    def opt(self, name, default):
        o = [x for x in self.opts if x.startswith(name + "=")]
        return int(o[0][len(name) + 1:]) if o else default
    def smf(self, op, D, A):
        self.a(f"v_smfmac_f32_16x16x64_bf16 {vr(D,4)}, {vr(A,4)}, {breg(op)}, v{vIDX}")
    def stamp(self, i):
        sel = [o for o in self.opts if o.startswith("st=")]
        names = sel[0][3:].split("/") if sel else ["0", "1", "2", "3", "4", "5", "6", "7"]
        if str(i) not in names or not self.stamps: return
        self.a(f"s_memtime {sr(sTM + 2*names.index(str(i)), 2)}")
    def srd(self, dst, karg_off, nbytes):
        a = self.a
        a(f"s_load_dwordx2 {sr(dst,2)}, s[0:1], {karg_off}")
        a(f"s_waitcnt lgkmcnt(0)")
        a(f"s_and_b32 s{dst+1}, s{dst+1}, 0xffff")
        a(f"s_mov_b32 s{dst+2}, {nbytes}")
        a(f"s_mov_b32 s{dst+3}, 0x00020000")

    def setup(self):
        a = self.a
        L, N, Gg, Tt, TH = 100, 101, 102, 103, 104
        a(f"v_and_b32 v{L}, 63, v0")
        a(f"v_and_b32 v{N}, 15, v{L}")
        a(f"v_lshrrev_b32 v{Gg}, 4, v{L}")
        a(f"v_and_b32 v{Tt}, 7, v{L}")
        a(f"v_bfe_u32 v{TH}, v{L}, 3, 1")
        a(f"v_lshlrev_b32 v{vL16}, 4, v{L}")
        a(f"v_lshlrev_b32 v{vL4}, 2, v{L}")
        a(f"v_lshlrev_b32 v{vA}, 7, v{Gg}")
        a(f"v_lshl_add_u32 v{vA}, v{Tt}, 4, v{vA}")
        for b in range(1, 4):
            a(f"s_add_u32 s{sTMP}, s{sW}, {b}")
            a(f"s_and_b32 s{sTMP}, s{sTMP}, 3")
            a(f"s_lshl_b32 s{sTMP}, s{sTMP}, 10")
            a(f"v_add_u32 v{vAG+b-1}, s{sTMP}, v{vL16}")
        a(f"v_mov_b32 v{vS10}, 0x3F80")
        a(f"v_mov_b32 v{vS01}, 0x3F800000")
        a(f"v_lshlrev_b32 v{vBP}, 5, v{TH}")
        a(f"v_and_b32 v107, 1, v{L}")
        a(f"v_lshl_add_u32 v{vBP}, v107, 4, v{vBP}")
        a(f"v_bfe_u32 v107, v{L}, 1, 2")
        a(f"v_add_u32 v{vBP}, v{vBP}, v107")
        a(f"v_lshlrev_b32 v{vBP}, 2, v{vBP}")
        a(f"s_movk_i32 s{sTMP}, {PST}")
        a(f"v_mul_lo_u32 v{vRD}, v{Gg}, s{sTMP}")
        a(f"v_lshl_add_u32 v{vRD}, v{N}, 3, v{vRD}")
        G1, G0 = 105, 106
        a(f"v_lshrrev_b32 v{G1}, 1, v{Gg}")
        a(f"v_and_b32 v{G0}, 1, v{Gg}")
        a(f"v_and_b32 v107, 3, v{L}")
        a(f"v_lshlrev_b32 v{vPB}, 4, v107")
        a(f"v_lshlrev_b32 v{vXA}, 3, v{L}")
        a(f"v_lshl_add_u32 v{vPB}, v{G1}, {7 if 'lin' in self.opts else 6}, v{vPB}")
        a(f"v_lshl_add_u32 v{vPB}, v{G0}, 3, v{vPB}")
        a(f"s_lshl_b32 s{sTMP}, s{sW}, 10")
        a(f"v_add_u32 v{vGG}, s{sTMP}, v{vL16}")
        a(f"v_lshrrev_b32 v{vSA}, 1, v{vGG}")
        a(f"v_lshlrev_b32 v{vPS}, 8, v{G0}")
        a(f"v_lshl_add_u32 v{vPS}, v{TH}, 7, v{vPS}")
        a(f"v_lshl_add_u32 v{vPS}, v{Tt}, 4, v{vPS}")
        a(f"v_lshl_add_u32 v{vPS}, v{G1}, 3, v{vPS}")
        a(f"v_mov_b32 v107, 0x8888")
        a(f"v_mov_b32 v108, 0xDDDD")
        a(f"v_cmp_eq_u32 vcc, 0, v{TH}")
        a(f"v_cndmask_b32 v{vIDX}, v108, v107, vcc")
        a(f"v_lshlrev_b32 v107, 2, v{Gg}")
        a(f"v_sub_u32 v107, v{N}, v107")
        a(f"v_mov_b32 v108, 0x3F80")
        a(f"v_mov_b32 v109, 0x3F800000")
        a(f"v_mov_b32 v{vID0}, 0")
        a(f"v_mov_b32 v{vID0+1}, 0")
        for jj in range(4):
            a(f"v_cmp_eq_u32 vcc, {jj}, v107")
            a(f"v_cndmask_b32 v{vID0 + jj//2}, v{vID0 + jj//2}, v{108 + jj%2}, vcc")
        a(f"s_mov_b32 s{sONE}, 0x3F80"); a(f"s_mov_b32 s{sONE+1}, 0")
        a(f"v_lshlrev_b64 {vr(vSEL4,2)}, v{vL16}, {sr(sONE,2)}")
        a(f"v_lshlrev_b64 {vr(vSEL4+2,2)}, v{vL16}, {sr(sONE,2)}")
        a(f"v_lshlrev_b32 v{vTW}, 4, v{N}")
        a(f"v_lshl_add_u32 v{vTW}, v{G1}, 8, v{vTW}")
        a(f"v_lshl_add_u32 v{vTW}, v{G0}, 3, v{vTW}")
        a(f"s_lshl_b32 s{sTMP}, s{sW}, 9")
        a(f"v_add_u32 v{vTW}, s{sTMP}, v{vTW}")
        a(f"v_lshrrev_b32 v107, 3, v{L}")
        a(f"v_lshlrev_b32 v{vKMW}, 8, v107")
        a(f"v_lshl_add_u32 v{vKMW}, v{Tt}, 4, v{vKMW}")
        a(f"v_lshlrev_b32 v107, 8, v{Gg}")
        a(f"v_lshl_add_u32 v{vTQ}, v{Tt}, 4, v107")
        a(f"v_bfe_u32 v108, v{N}, 2, 1")
        a(f"v_lshlrev_b32 v108, 2, v108")
        a(f"v_lshl_add_u32 v108, v{TH}, 1, v108")
        a(f"v_and_b32 v109, 1, v{N}")
        a(f"v_add3_u32 v108, v108, v109, 8")
        a(f"v_lshl_add_u32 v{vTK}, v108, 4, v107")
        a(f"v_lshlrev_b32 v{vOW}, 7, v{G1}")
        a(f"v_lshl_add_u32 v{vOW}, v{Tt}, 4, v{vOW}")
        a(f"v_lshl_add_u32 v{vOW}, v{G0}, 3, v{vOW}")
        a(f"s_lshl_b32 s{sTMP}, s{sW}, 8")
        a(f"v_add_u32 v{vOW}, s{sTMP}, v{vOW}")
        a(f"v_mov_b32 v{VP+1}, 0")
        a(f"v_mov_b32 v{PP+5}, 0")
        a(f"s_mov_b32 s{sMLO}, 0x00FF00FF"); a(f"s_mov_b32 s{sMLO+1}, 0x00FF00FF")
        a(f"s_mov_b32 s{sMHI}, 0xFF00FF00"); a(f"s_mov_b32 s{sMHI+1}, 0xFF00FF00")
        a(f"s_mov_b32 s{sMPB}, 0x000F000F"); a(f"s_mov_b32 s{sMPB+1}, 0x000F000F")
        a(f"s_mov_b32 s{sM40}, 0x33333333"); a(f"s_mov_b32 s{sM40+1}, 0x33333333")
        a(f"s_mov_b32 s{sC}, {fbits(128 ** -0.5 * 1.4426950408889634):#x}")
        a(f"s_and_b32 s{sU}, s{sR}, 1")
        a(f"s_lshr_b32 s{sH}, s{sR}, 1")
        a(f"s_lshl_b32 s{sTMP}, s{sX}, 4")
        a(f"s_add_u32 s{sH}, s{sH}, s{sTMP}")
        a(f"s_lshl_b32 s{sKX}, s{sH}, 13")
        a(f"s_lshl_b32 s{sTMP}, s{sU}, 12")
        a(f"s_add_u32 s{sTMP}, s{sTMP}, {VXI:#x}")
        a(f"s_lshl_b32 s{sT2}, s{sW}, 12")
        a(f"s_cmp_eq_u32 s{sW}, 2")
        a(f"s_cselect_b32 s{sTMP}, s{sTMP}, s{sT2}")
        a(f"s_add_u32 s{sKX}, s{sKX}, s{sTMP}")
        a(f"s_lshl_b32 s{sKM}, s{sH}, 11")
        a(f"s_lshl_b32 s{sTMP}, s{sU}, 10")
        a(f"s_add_u32 s{sKM}, s{sKM}, s{sTMP}")
        a(f"s_add_u32 s{sVM}, s{sKM}, {VMI:#x}")
        a(f"s_add_u32 s{sKM}, s{sKM}, {KMI:#x}")
        a(f"s_mul_i32 s{sPB0}, s{sR}, {PST}")
        a(f"s_mul_i32 s{sTMP}, s{sW}, 2560")
        a(f"s_add_u32 s{sPB0}, s{sPB0}, s{sTMP}")
        a(f"s_mul_i32 s{sT5}, s{sX}, {PBX}")
        a(f"s_add_u32 s{sT5}, s{sT5}, {PB:#x}")
        a(f"s_add_u32 s{sPB0}, s{sPB0}, s{sT5}")
        a(f"s_lshl_b32 s{sTMP}, s{sW}, 1")
        a(f"s_lshr_b32 s{sT2}, s{sR}, 4")
        a(f"s_add_u32 s{sTMP}, s{sTMP}, s{sT2}")
        a(f"s_cmp_le_u32 s{sTMP}, 4")
        a(f"s_cselect_b32 s{sHASJ}, 1, 0")
        a(f"s_cselect_b32 s{sTMP}, s{sTMP}, 4")
        a(f"s_sub_u32 s{sTMP}, 4, s{sTMP}")
        a(f"s_bfe_u32 s{sT2}, s{sR}, 0x20002")
        a(f"s_bfe_u32 s{sT3}, s{sR}, 0x10001")
        a(f"s_and_b32 s{sT4}, s{sR}, 1")
        a(f"s_mul_i32 s{sRD}, s{sT2}, 5")
        a(f"s_add_u32 s{sRD}, s{sRD}, s{sTMP}")
        a(f"s_lshl_b32 s{sRD}, s{sRD}, 9")
        a(f"s_add_u32 s{sRD}, s{sRD}, s{sT5}")
        a(f"s_lshl_b32 s{sT5}, s{sT3}, 8")
        a(f"s_add_u32 s{sRD}, s{sRD}, s{sT5}")
        a(f"s_lshl_b32 s{sT5}, s{sT4}, 7")
        a(f"s_add_u32 s{sRD}, s{sRD}, s{sT5}")
        for i in range(1, 8):
            a(f"s_add_u32 s{sRD+i}, s{sRD+i-1}, {4*PST}")
        a(f"s_lshl_b32 s{sJL}, s{sTMP}, 11")
        a(f"s_lshl_b32 s{sT5}, s{sT2}, 9")
        a(f"s_add_u32 s{sJL}, s{sJL}, s{sT5}")
        a(f"s_lshl_b32 s{sT5}, s{sT4}, 8")
        a(f"s_add_u32 s{sJL}, s{sJL}, s{sT5}")
        a(f"s_lshl_b32 s{sT5}, s{sT3}, {6 if 'lin' in self.opts else 7}")
        a(f"s_add_u32 s{sJL}, s{sJL}, s{sT5}")
        a(f"s_and_b32 s{sT5}, s{sJL}, 0x2000")
        a(f"s_add_u32 s{sJL}, s{sJL}, s{sT5}")
        a(f"s_lshl_b32 s{sT5}, s{sX}, 16")
        a(f"s_add_u32 s{sGL}, s{sT5}, {IMGL:#x}")
        a(f"s_lshl_b32 s{sT5}, s{sX}, 22")
        a(f"s_sub_u32 s{sIB}, 0, s{sWS}")
        a(f"s_and_b32 s{sIB}, s{sIB}, 0x1FFFFF")
        a(f"s_add_u32 s{sIB}, s{sIB}, {IMGR:#x}")
        a(f"s_add_u32 s{sGR}, s{sT5}, s{sIB}")
        a(f"s_xor_b32 s{sT5}, s{sT5}, 0x400000")
        a(f"s_add_u32 s{sJR}, s{sJL}, s{sT5}")
        a(f"s_add_u32 s{sJR}, s{sJR}, s{sIB}")
        a(f"s_add_u32 s{sJL}, s{sJL}, s{sGL}")
        a(f"s_mov_b32 s{sSLOT}, 32768")
        for src, dst in ((vGG, vG0), (vSA, vG2)):
            a(f"v_and_b32 v107, 0xFFFFFF3F, v{src}")
            a(f"v_bfe_u32 v108, v{src}, 6, 1")
            a(f"v_lshl_add_u32 v107, v108, 7, v107")
            a(f"v_bfe_u32 v108, v{src}, 7, 1")
            a(f"v_lshl_add_u32 v{dst}, v108, 6, v107")
        if "lin" in self.opts:
            a(f"v_mov_b32 v{vG0}, v{vGG}")
            a(f"v_mov_b32 v{vG2}, v{vSA}")
        a(f"v_add_u32 v{vG1}, 4096, v{vG0}")
        a(f"v_add_u32 v{vG2}, 16384, v{vG2}")
        a(f"s_lshl_b32 s{sTBW}, s{sX}, 5")
        a(f"s_add_u32 s{sTBW}, s{sTBW}, s{sR}")
        a(f"s_lshl_b32 s{sTBW}, s{sTBW}, 11")
        a(f"s_add_u32 s{sTBW}, s{sTBW}, {TB:#x}")
        a(f"s_xor_b32 s{sTBR}, s{sTBW}, 0x800")
        a(f"s_mov_b32 s{sTAG0}, 0")
        a(f"s_mov_b32 s{sTAG1}, 0")
        a(f"s_mov_b32 s{sSTEP}, 0")
        a(f"s_mov_b32 s{sKSEG}, 0")
        a(f"s_mov_b32 s{sRDY}, {-1 if 'nohelp' in self.opts else 0}")
        a(f"s_lshl_b32 s{sKF}, s{sH}, 7")
        a(f"s_lshl_b32 s{sTMP}, s{sU}, 2")
        a(f"s_add_u32 s{sKF}, s{sKF}, s{sTMP}")
        a(f"s_add_u32 s{sKF}, s{sKF}, {KF:#x}")
        a(f"v_min_u32 v{vBA}, 92, v{vL4}")
        a(f"v_add_u32 v{vBA}, 64, v{vBA}")
        if self.stamps:
            a(f"s_lshl_b32 s{sTMP}, s{sX}, 5")
            a(f"s_add_u32 s{sTMP}, s{sTMP}, s{sR}")
            a(f"s_lshl_b32 s{sTMP}, s{sTMP}, 2")
            a(f"s_add_u32 s{sTMP}, s{sTMP}, s{sW}")
            a(f"s_lshl_b32 s{sSTAMP}, s{sTMP}, 13")
            a(f"s_add_u32 s{sSTAMP}, s{sSTAMP}, {STAMP:#x}")

    def init_buffers(self):
        a = self.a
        a(f"v_mov_b64 {vr(vT0,2)}, -1")
        for c in range(5):
            a(f"buffer_store_dwordx2 {vr(vT0,2)}, v{vPS}, {sr(sWS,4)}, s{sPB0} offen offset:{c*512}")
        a(f"buffer_store_dwordx2 {vr(vT0,2)}, v{vTW}, {sr(sWS,4)}, s{sTBW} offen")
        a(f"v_mov_b32 v{vT2}, 0")
        a(f"s_mov_b64 exec, 1")
        for e in range(6):
            a(f"s_add_u32 s{sPT}, s{sKF}, {e*4096}")
            a(f"buffer_store_dword v{vT2}, v{vT2}, {sr(sWS,4)}, s{sPT} offen sc1")
        a(f"s_movk_i32 s{sKE}, {4*4096}")
        a(f"s_mov_b64 exec, -1")
        a(f"s_lshl_b32 s{sPT}, s{sR}, 2")
        a(f"s_add_u32 s{sPT}, s{sPT}, s{sW}")
        a(f"s_bfe_u32 s{sPT+1}, s{sPT}, 0x10002")
        a(f"s_xor_b32 s{sPT+1}, s{sPT+1}, 1")
        for r in range(4): a(f"v_mov_b32 v{ZQ+r}, s{sPT+1}")
        a(f"s_lshr_b32 s{sPT+1}, s{sPT}, 1")
        a(f"s_lshl_b32 s{sPT+1}, s{sPT+1}, 15")
        a(f"s_and_b32 s{sPT}, s{sPT}, 1")
        a(f"s_lshl_b32 s{sPT}, s{sPT}, 13")
        a(f"s_add_u32 s{sPT}, s{sPT}, s{sPT+1}")
        a(f"s_add_u32 s{sPT}, s{sPT}, s{sGR}")
        for k in range(10):
            if k % 4 == 0: a(f"s_add_u32 s{sPT+1}, s{sPT}, {[0, 4096, 16384][k // 4]}")
            a(f"buffer_store_dwordx4 {vr(ZQ,4)}, v{vL16}, {sr(sWS,4)}, s{sPT+1} offen offset:{(k%4)*1024} sc1")
        a(f"s_cmp_eq_u32 s{sHASJ}, 0")
        a(f"s_cbranch_scc1 L_team_noinit")
        save = list(a.vm)
        a(f"s_mov_b64 exec, {sr(sMPB,2)}")
        for off in (0, 32768):
            a(f"s_add_u32 s{sPT}, s{sJL}, {off}")
            a(f"buffer_store_dwordx2 {vr(vT0,2)}, v{vPB}, {sr(sWS,4)}, s{sPT} offen")
        a(f"s_mov_b64 exec, -1")
        a.vm = save
        a.label("L_team_noinit")

    def signal(self, dbg_off):
        a = self.a
        a(f"s_cmp_lg_u32 s{sW}, 0")
        a(f"s_cbranch_scc1 L_ta_done")
        a(f"s_mov_b64 exec, 1")
        a(f"v_mov_b32 v{vT0}, {dbg_off}")
        a(f"v_mov_b32 v{vT1}, 1")
        save = list(a.vm)
        a(f"global_atomic_add v{vT0}, v{vT1}, {sr(sDBG,2)} sc1")
        a.vm = save
        a(f"s_mov_b64 exec, -1")
        a.label("L_ta_done")

    def wait_team(self, dbg_off):
        a = self.a
        a(f"v_mov_b32 v{vT0}, {dbg_off}")
        a(f"s_mov_b32 s{sSPIN}, 0")
        a(f"s_mov_b64 exec, 1")
        a.label(f"L_tw_poll")
        a(f"global_load_dwordx2 {vr(vT2,2)}, v{vT0}, {sr(sDBG,2)} sc1")
        a(f"s_add_u32 s{sSPIN}, s{sSPIN}, 1")
        a(f"s_cmp_gt_u32 s{sSPIN}, {SPIN_MAX}")
        a(f"s_cbranch_scc1 L_fail")
        a.wait_vm0()
        a(f"v_readfirstlane_b32 s{sTMP}, v{vT2}")
        a(f"s_cmp_lt_u32 s{sTMP}, 64")
        a(f"s_cbranch_scc1 L_tw_poll")
        a(f"v_readfirstlane_b32 s{sTMP}, v{vT3}")
        a(f"s_cmp_lg_u32 s{sTMP}, 0")
        a(f"s_cbranch_scc1 L_tw_have")
        a(f"s_sleep 8")
        a(f"s_cmp_lt_u32 s{sSPIN}, 40")
        a(f"s_cbranch_scc1 L_tw_poll")
        a(f"v_mov_b32 v{vT2}, 1")
        a(f"v_mov_b32 v{vT3}, 0")
        a(f"global_atomic_cmpswap v{vT1}, v{vT0}, {vr(vT2,2)}, {sr(sDBG,2)} offset:4 sc0 sc1")
        a.wait_vm0()
        a(f"v_readfirstlane_b32 s{sTMP}, v{vT1}")
        a.label("L_tw_have")
        a(f"s_mov_b64 exec, -1")
        a(f"s_lshr_b32 s{sT2}, s{sTMP}, s{sX}")
        a(f"s_and_b32 s{sT2}, s{sT2}, 0x2000")
        a(f"s_add_u32 s{sGR}, s{sGR}, s{sT2}")
        a(f"s_xor_b32 s{sT2}, s{sX}, 1")
        a(f"s_lshr_b32 s{sT2}, s{sTMP}, s{sT2}")
        a(f"s_and_b32 s{sT2}, s{sT2}, 0x2000")
        a(f"s_add_u32 s{sJR}, s{sJR}, s{sT2}")

    def load_weights(self):
        a = self.a
        TA = 40
        OUT = 104
        vW, vWo, vSN, vSO, vPSEL = 112, 113, 114, 115, 116
        vSB = 117
        vAD = [124, 125, 126, 127]
        NB = 5; SZ = 32768
        wf = 'nt' if 'wnt' in self.opts else ''
        a(f"v_lshrrev_b32 v{vT0}, 7, v{vL16}")
        a(f"v_and_b32 v{vT1}, 0x70, v{vL16}")
        a(f"v_lshl_add_u32 v{vW}, v{vT0}, 13, v{vT1}")
        a(f"v_lshrrev_b32 v{vT0}, 8, v{vL16}")
        a(f"v_and_b32 v{vT1}, 0xF0, v{vL16}")
        a(f"s_movk_i32 s{sTMP}, 1280")
        a(f"v_mul_lo_u32 v{vWo}, v{vT0}, s{sTMP}")
        a(f"v_add_u32 v{vWo}, v{vWo}, v{vT1}")
        a(f"v_lshrrev_b32 v{vT2}, 5, v{vT1}")
        a(f"v_lshlrev_b32 v{vSN}, 2, v{vT2}")
        a(f"v_lshrrev_b32 v{vT2}, 1, v{vT0}")
        a(f"v_lshl_add_u32 v{vSN}, v{vT2}, 11, v{vSN}")
        a(f"v_and_b32 v{vT2}, 1, v{vT0}")
        a(f"v_lshl_add_u32 v{vSN}, v{vT2}, 9, v{vSN}")
        a(f"s_lshl_b32 s{sTMP}, s{sW}, 5")
        a(f"v_add_u32 v{vSN}, s{sTMP}, v{vSN}")
        a(f"v_mov_b32 v{vT2}, 0x05040100")
        a(f"v_mov_b32 v{vT3}, 0x07060302")
        a(f"v_and_b32 v{vPSEL}, 16, v{vL16}")
        a(f"v_cmp_eq_u32 vcc, 0, v{vPSEL}")
        a(f"v_cndmask_b32 v{vPSEL}, v{vT3}, v{vT2}, vcc")
        for b in range(4):
            a(f"s_add_u32 s{sTMP}, s{sW}, {b}")
            a(f"s_and_b32 s{sTMP}, s{sTMP}, 3")
            a(f"s_lshl_b32 s{sTMP}, s{sTMP}, 13")
            a(f"v_add_u32 v{vSB+b}, s{sTMP}, v{vSN}")
        a(f"v_lshrrev_b32 v{vT1}, 2, v{vT1}")
        a(f"v_lshl_add_u32 v{vSO}, v{vT0}, 10, v{vT1}")
        a(f"s_lshl_b32 s{sTMP}, s{sW}, 6")
        a(f"v_add_u32 v{vSO}, s{sTMP}, v{vSO}")
        sBQ, sBS, sBO, sLD = sT2, sT3, sT4, sT5
        a(f"s_lshl_b32 s{sBS}, s{sH}, 8")
        a(f"s_lshl_b32 s{sTMP}, s{sU}, 7")
        a(f"s_add_u32 s{sBS}, s{sBS}, s{sTMP}")
        a(f"s_mul_i32 s{sTMP}, s{sW}, {64*8192}")
        a(f"s_add_u32 s{sBQ}, s{sBS}, s{sTMP}")
        a(f"s_mul_i32 s{sTMP}, s{sW}, {32*8192}")
        a(f"s_add_u32 s{sBS}, s{sBS}, s{sTMP}")
        a(f"s_mul_i32 s{sBO}, s{sH}, 163840")
        a(f"s_mul_i32 s{sTMP}, s{sU}, {64*1280}")
        a(f"s_add_u32 s{sBO}, s{sBO}, s{sTMP}")
        a(f"s_mul_i32 s{sTMP}, s{sW}, {16*1280}")
        a(f"s_add_u32 s{sBO}, s{sBO}, s{sTMP}")
        a(f"s_lshl_b32 s{sLD}, s{sW}, 12")
        stages = [(m, i) for m in "qkv" for i in range(3)] + [("o", c) for c in range(5)]
        karg = {"q": 16, "k": 24, "v": 32, "o": 40}
        srds = {"q": 8, "k": 12, "v": 8, "o": 12}
        loaded = set()
        hd = {}
        def dma(n):
            kind, i = stages[n]
            if kind not in loaded:
                self.srd(srds[kind], karg[kind], 5242880); loaded.add(kind)
            buf = (n % NB) * SZ
            hs = []
            big = kind != "o" and i < 2
            for m in range(8 if big else 4):
                if big:
                    a(f"s_lshl_b32 m0, s{sLD}, 1")
                    a(f"s_add_u32 m0, m0, {buf + m*1024}")
                else:
                    a(f"s_add_u32 m0, s{sLD}, {buf + m*1024}")
                if kind == "o":
                    a(f"s_add_u32 s{sTMP}, s{sBO}, {4*m*1280 + i*256}")
                    hs.append(a(f"buffer_load_dwordx4 v{vWo}, {sr(srds[kind],4)}, s{sTMP} offen {wf} lds"))
                elif big:
                    a(f"s_add_u32 s{sTMP}, s{sBQ}, {(256*i + 8*m) * 8192}")
                    hs.append(a(f"buffer_load_dwordx4 v{vW}, {sr(srds[kind],4)}, s{sTMP} offen {wf} lds"))
                else:
                    a(f"s_add_u32 s{sTMP}, s{sBS}, {(512 + 8*m) * 8192}")
                    hs.append(a(f"buffer_load_dwordx4 v{vW}, {sr(srds[kind],4)}, s{sTMP} offen {wf} lds"))
            hd[n] = hs
        def combine(op, lo, hi):
            p = PL[op]
            for r in range(8):
                d = p[1] + r if p[0] == "v" else OUT + r
                a(f"v_perm_b32 v{d}, v{hi+r}, v{lo+r}, v{vPSEL}")
            if p[0] == "a":
                for r in range(8): a(f"v_accvgpr_write_b32 a{p[1]+r}, v{OUT+r}")
        AH = self.opt('ah', NB - 1)
        for n in range(AH): dma(n)
        for n, (kind, i) in enumerate(stages):
            a.wait(hd[n])
            a.wait_lg0()
            a("s_barrier")
            if n + AH < len(stages): dma(n + AH)
            if n == 0 and "lateinit" in self.opts:
                self.init_buffers()
            if n == (5 if "lateinit" in self.opts else 0): self.signal(52)
            buf = (n % NB) * SZ
            if kind in "qkv":
                nb = 4 if i < 2 else 2
                hs = {}
                for b in range(nb):
                    if i < 2: a(f"v_add_u32 v{vAD[b]}, {buf}, v{vSB+b}")
                    else: a(f"v_add_u32 v{vAD[b]}, {buf + b*8192}, v{vSN}")
                for b in range(nb):
                    for hf in range(2):
                        for r in range(8):
                            hs[b] = a(f"ds_read_b32 v{TA + 16*b + 8*hf + r}, v{vAD[b]} offset:{(32*(r>>2) + (r&3) + 8*hf)*128}")
                    if b >= 1:
                        a.wait(hs[b-1])
                        combine((kind, 2*(b-1) + i if i < 2 else 8 + b - 1), TA + 16*(b-1), TA + 16*(b-1) + 8)
                b = nb
                a.wait(hs[b-1])
                combine((kind, 2*(b-1) + i if i < 2 else 8 + b - 1), TA + 16*(b-1), TA + 16*(b-1) + 8)
            else:
                a(f"v_add_u32 v{vAD[0]}, {buf}, v{vSO}")
                for j in range(2):
                    p = PL[("WO", i, j)]
                    for r in range(8):
                        a(f"ds_read_b32 {p[0]}{p[1]+r}, v{vAD[0]} offset:{(32*j + (r&3) + 16*(r>>2))*256}")
        a.wait_all()
        a("s_barrier")

    def kv_ready(self, lab):
        a = self.a
        from engine import blk_of_seg, D_BLK
        a(f"s_min_u32 s{sT2}, s{sKSEG}, 63")
        blk_of_seg(a, sT2, sBL)
        a(f"s_add_u32 s{sKSEG}, s{sKSEG}, 1")
        a(f"s_bitcmp1_b32 s{sRDY}, s{sBL}")
        a(f"s_cbranch_scc1 {lab}_ok")
        a(f"s_mov_b32 s{sSPIN}, 0")
        a.label(lab)
        a(f"global_load_dword v{vBLK}, v{vBA}, {sr(sDBG,2)} sc1")
        a(f"s_add_u32 s{sSPIN}, s{sSPIN}, 1")
        a(f"s_cmp_gt_u32 s{sSPIN}, {SPIN_MAX}")
        a(f"s_cbranch_scc1 L_fail")
        a(f"s_waitcnt vmcnt(0)")
        a(f"v_cmp_le_u32 vcc, 32, v{vBLK}")
        a(f"s_nop 3")
        a(f"s_mov_b32 s{sRDY}, vcc_lo")
        a(f"s_bitcmp1_b32 s{sRDY}, s{sBL}")
        a(f"s_cbranch_scc1 {lab}_ok")
        a(f"s_sleep 4")
        a(f"s_branch {lab}")
        a.label(f"{lab}_ok")
    def kv_check(self):
        a = self.a
        if "full" in self.opts:
            self.nkv = getattr(self, "nkv", 0) + 1
            save = list(a.vm)
            self.kv_ready(f"L_kvr{self.nkv}")
            a.vm = save
    def kv_dma(self):
        a = self.a
        a(f"s_lshl_b32 s{sTMP}, s{sKVM}, 1")
        a(f"s_add_u32 m0, s{sTMP}, s{sKVW}")
        a(f"s_add_u32 s{sKVW}, s{sKVW}, 12288")
        for k in range(4):
            a(f"buffer_load_dwordx4 v{vL16}, {sr(sWS,4)}, s{sKX} offen offset:{k*1024} sc1 lds")
        a(f"s_cmp_eq_u32 s{sKVW}, {L_KV + NKV*12288}")
        a(f"s_cselect_b32 s{sKVW}, {L_KV}, s{sKVW}")
        a(f"s_add_u32 s{sKX}, s{sKX}, {32*8192}")

    def prologue(self):
        a = self.a
        a(f"s_lshl_b32 s{sTMP}, s{sW}, 8")
        a(f"v_add_u32 v{vVW}, s{sTMP}, v{vL4}")
        a(f"s_lshl_b32 s{sKVM}, s{sW}, 11")
        a(f"s_mov_b32 s{sKVW}, {L_KV}")
        a(f"s_mov_b32 s{sKVR}, {L_KV}")
        for _ in range(KVD): self.kv_check()
        a(f"s_cmp_eq_u32 s{sW}, 3")
        a(f"s_cbranch_scc1 L_pro3")
        for _ in range(KVD): self.kv_dma()
        a.label("L_pro3")
        self.srd(sRA, 8, 10240)
        a(f"s_movk_i32 s{sTMP}, 1280")
        a(f"v_bfe_u32 v{vT0}, v{vGG}, 4, 3")
        a(f"v_mul_lo_u32 v{vT0}, v{vT0}, s{sTMP}")
        a(f"v_lshrrev_b32 v{vT1}, 7, v{vGG}")
        a(f"v_lshl_add_u32 v{vT0}, v{vT1}, 4, v{vT0}")
        a(f"buffer_load_dwordx4 {vr(GL,4)}, v{vT0}, {sr(sRA,4)}, 0 offen")
        a(f"buffer_load_dwordx4 {vr(GL+4,4)}, v{vT0}, {sr(sRA,4)}, 0 offen offset:512")
        a(f"v_bfe_u32 v{vT2}, v{vSA}, 4, 3")
        a(f"v_mul_lo_u32 v{vT2}, v{vT2}, s{sTMP}")
        a(f"v_lshrrev_b32 v{vT1}, 7, v{vSA}")
        a(f"v_lshl_add_u32 v{vT2}, v{vT1}, 4, v{vT2}")
        a(f"v_and_b32 v{vT1}, 8, v{vSA}")
        a(f"v_add_u32 v{vT2}, v{vT2}, v{vT1}")
        a(f"buffer_load_dwordx2 {vr(GL+8,2)}, v{vT2}, {sr(sRA,4)}, 0 offen offset:1024")
        for r in range(ZQ, ZQ + 12, 2): a(f"v_mov_b64 {vr(r,2)}, 0")
        for r in range(GB, GB + 10, 2): a(f"v_mov_b64 {vr(r,2)}, 0")
        a.wait_all()
        for i in range(10):
            a(f"v_lshlrev_b32 v{AU+2*i}, 16, v{GL+i}")
            a(f"v_and_b32 v{AU+2*i+1}, 0xFFFF0000, v{GL+i}")
        self.kv_check()

    def poll(self, lab, issue, regs, tag, thr=None, sleep=0):
        a = self.a
        a(f"s_mov_b32 s{sSPIN}, 0")
        a.label(lab)
        issue()
        a(f"s_add_u32 s{sSPIN}, s{sSPIN}, 1")
        a(f"s_cmp_gt_u32 s{sSPIN}, {SPIN_MAX}")
        a(f"s_cbranch_scc1 L_fail")
        a(f"s_waitcnt vmcnt({thr if thr is not None else self.opt('thr', 30)})")
        if sleep: a(f"s_sleep {sleep}")
        for n, r in enumerate(regs): self.ck(r, tag, n == 0)
        a(f"v_and_b32 v{vCK}, 1, v{vCK}")
        a(f"v_cmp_ne_u32 vcc, 0, v{vCK}")
        a(f"s_cbranch_vccnz {lab}")
    def bpoll(self, lab, issue, first, regs, per, tag):
        a = self.a
        a(f"s_mov_b32 s{sSPIN}, 0")
        a(f"s_branch {lab}_c")
        save = list(a.vm)
        a.label(lab)
        issue()
        a.vm = save
        a.label(f"{lab}_c")
        a(f"s_add_u32 s{sSPIN}, s{sSPIN}, 1")
        a(f"s_cmp_gt_u32 s{sSPIN}, {SPIN_MAX}")
        a(f"s_cbranch_scc1 L_fail")
        assert a.vm[-len(first):] == first
        for n, r in enumerate(regs):
            a.wait(first[n // per])
            self.ck(r, tag, n == 0)
        a(f"v_and_b32 v{vCK}, 1, v{vCK}")
        a(f"v_cmp_ne_u32 vcc, 0, v{vCK}")
        a(f"s_cbranch_vccnz {lab}")
    def poison(self, regs, tag):
        self.a(f"s_xor_b32 s{sTMP}, s{tag}, 1")
        for r in regs: self.a(f"v_mov_b32 v{r}, s{sTMP}")
    def ck(self, reg, tag, first):
        if first: self.a(f"v_xor_b32 v{vCK}, s{tag}, v{reg}")
        else: self.a(f"v_bitop3_b32 v{vCK}, v{vCK}, v{reg}, s{tag} bitop3:0xF6")

    def step(self, exit_label):
        a = self.a
        def ex_read():
            return [a(f"ds_read_b128 {vr(EX,4)}, v{vKMW} offset:{L_T + 128}"), a(f"ds_read_b128 {vr(EX+4,4)}, v{vL16} offset:{L_V}")]
        def ex_store():
            if "nokm" not in self.opts:
                a(f"buffer_store_dwordx4 {vr(EX,4)}, v{vL16}, {sr(sWS,4)}, s{sKM} offen sc1")
                a(f"buffer_store_dwordx4 {vr(EX+4,4)}, v{vL16}, {sr(sWS,4)}, s{sVM} offen sc1")
            a(f"s_add_u32 s{sKM}, s{sKM}, {32*2048}")
            a(f"s_add_u32 s{sVM}, s{sVM}, {32*2048}")
        def flag(val):
            a(f"v_mov_b32 v{vBLK}, {val}")
            a(f"s_mov_b64 exec, 1")
            a(f"s_add_u32 s{sTMP}, s{sKF}, s{sKE}")
            a(f"buffer_store_dword v{vBLK}, v{vL4}, {sr(sWS,4)}, s{sTMP} offen sc1")
            a(f"s_mov_b64 exec, -1")
            a(f"s_add_u32 s{sKE}, s{sKE}, 4096")
            a(f"s_cmp_eq_u32 s{sKE}, {6*4096}")
            a(f"s_cselect_b32 s{sKE}, 0, s{sKE}")
        def slow_ops():
            a(f"s_cmp_eq_u32 s{sW}, 3")
            a(f"s_cbranch_scc1 L_so3")
            save = list(a.vm)
            self.kv_dma()
            a.vm = save
            a(f"s_branch L_so_done")
            a.label("L_so3")
            a(f"s_cmp_eq_u32 s{sSTEP}, 0")
            a(f"s_cselect_b32 s{sT2}, {SCR:#x}, s{sKM}")
            a(f"s_cselect_b32 s{sBL}, {SCR:#x}, s{sVM}")
            a(f"s_cselect_b32 s{sTMP}, 0, {32*2048}")
            a(f"buffer_store_dwordx4 {vr(EX,4)}, v{vL16}, {sr(sWS,4)}, s{sT2} offen sc1")
            a(f"buffer_store_dwordx4 {vr(EX+4,4)}, v{vL16}, {sr(sWS,4)}, s{sBL} offen sc1")
            a(f"s_add_u32 s{sKM}, s{sKM}, s{sTMP}")
            a(f"s_add_u32 s{sVM}, s{sVM}, s{sTMP}")
            a(f"s_max_u32 s{sT2}, s{sSTEP}, 1")
            a(f"s_sub_u32 s{sT2}, s{sT2}, 1")
            flag(f"s{sT2}")
            a(f"buffer_load_dword v{vT2}, v{vL4}, {sr(sWS,4)}, s{sTBR} offen sc1")
            a.label("L_so_done")
        def last():
            a.wait_lg0()
            a("s_barrier")
            a(f"s_cmp_lg_u32 s{sW}, 3")
            a(f"s_cbranch_scc1 {exit_label}")
            ex_store()
            a(f"s_nop 4")
            a.wait(ex_read())
            ex_store()
            a.wait_vm0()
            flag(64); flag(64); flag(64)
        self.exports = last
        TREG = [r + 1 for r in [TRQ, TRQ + 2, TRK, TRK + 2, TRQ + 4, TRQ + 6, TRK + 4, TRK + 6]]
        if "tmask" in self.opts: TREG = [r + 1 for r in [TRQ, TRQ + 2, TRQ + 4, TRQ + 6, TRK, TRK + 2, TRK + 4, TRK + 6]]
        RREG = [RL + 2*i + 1 for i in range(8)]
        GREG = [GL + 2*i + 1 for i in range(5)]
        areg = lambda k: GL + 4 * k if k < 2 else AR + 4 * (k - 2)
        self.stamp(0)
        def add(lo, hi):
            for i in range(lo, hi):
                a(f"v_dot2_f32_bf16 v{AU+2*i}, v{GB+i}, v{vS10}, v{AU+2*i}")
                a(f"v_dot2_f32_bf16 v{AU+2*i+1}, v{GB+i}, v{vS01}, v{AU+2*i+1}")
        def pk(lo, hi):
            for i in range(lo, hi): a(f"v_cvt_pk_bf16_f32 v{GL+i}, v{AU+2*i}, v{AU+2*i+1}")
        add(0, 6); pk(0, 4)
        a(f"ds_write_b128 v{vGG}, {vr(GL,4)} offset:{L_IA}")
        add(6, 10)
        self.smf(("q", 0), ZQ, areg(0))
        pk(4, 8)
        a(f"ds_write_b128 v{vGG}, {vr(GL+4,4)} offset:{L_IA+4096}")
        self.smf(("k", 0), ZK, areg(0))
        pk(8, 10)
        a(f"ds_write_b64 v{vSA}, {vr(GL+8,2)} offset:{L_IA+8192}")
        self.smf(("q", 1), ZQ, areg(1))
        self.smf(("k", 1), ZK, areg(1))
        a(f"s_lshl_b32 s{sTMP}, s{sU}, 12")
        a(f"s_add_u32 s{sT2}, s{sTMP}, s{sKVR}")
        a(f"v_add_u32 v{vKL}, s{sT2}, v{vL16}")
        a.wait_lg0()
        a("s_barrier")
        self.stamp("b1")
        ah = {}
        for k in range(2, 10):
            if k < 8: ah[k] = a(f"ds_read_b128 {vr(areg(k),4)}, v{vAG + k//2 - 1} offset:{L_IA + (k%2)*4096}")
            else: ah[k] = a(f"ds_read_b128 {vr(areg(k),4)}, v{vL16} offset:{L_IA + k*1024}")
        self.smf(("v", 0), V, areg(0))
        a(f"s_xor_b32 s{sTMP}, s{sTMP}, 0x1000")
        a(f"s_add_u32 s{sT2}, s{sTMP}, s{sKVR}")
        a(f"v_add_u32 v{vKR}, s{sT2}, v{vL16}")
        self.smf(("v", 1), V, areg(1))
        a(f"s_lshr_b32 s{sTMP}, s{sKVM}, 1")
        a(f"s_add_u32 s{sT2}, s{sTMP}, s{sKVR}")
        a(f"v_add_u32 v{vVX}, s{sT2}, v{vL16}")
        for k in range(2, 10):
            a.wait(ah[k])
            self.smf(("q", k), ZQ, areg(k))
            kk = k - 2
            if kk == 5: a(f"s_waitcnt vmcnt(0)")
            a(f"ds_read_b128 {vr(KXR+4*kk,4)}, v{vKL if kk < 4 else vKR} offset:{(kk%4)*1024}")
            self.smf(("k", k), ZK, areg(k))
            if "tmask" in self.opts: a(f"v_mov_b32 v{TREG[kk]}, s{sTAG0}")
        self.stamp(1)
        vs = {"done": 2}
        def vfill(n):
            for _ in range(n):
                k = vs["done"]
                if k >= 10: return
                self.smf(("v", k), V, areg(k))
                vs["done"] += 1
        vfill(2)
        for r in range(4): a(f"v_permlane32_swap_b32 v{ZQ+r}, v{ZK+r}")
        a(f"v_pk_add_f32 {vr(ZQ,2)}, {vr(ZQ,2)}, {vr(ZK,2)}")
        a(f"v_pk_add_f32 {vr(ZQ+2,2)}, {vr(ZQ+2,2)}, {vr(ZK+2,2)}")
        a(f"v_cvt_pk_bf16_f32 v{TT}, v{ZQ}, v{ZQ+1}")
        a(f"v_cvt_pk_bf16_f32 v{TT+1}, v{ZQ+2}, v{ZQ+3}")
        a(f"ds_read_b128 {vr(VXR,4)}, v{vVX} offset:8192")
        a(f"v_mfma_f32_16x16x16_bf16 {vr(ZK,4)}, {vr(TT,2)}, {vr(vID0,2)}, 0")
        vfill(2)
        a(f"v_cvt_pk_bf16_f32 v{TT+1}, v{ZK+2}, v{ZK+3}")
        a(f"v_cvt_pk_bf16_f32 v{TT+2}, v{ZK}, v{ZK+1}")
        a(f"v_and_or_b32 v{TT+3}, v{TT+1}, -2, s{sTAG0}")
        a(f"buffer_store_dwordx2 {vr(TT+2,2)}, v{vTW}, {sr(sWS,4)}, s{sTBW} offen")
        a(f"v_mov_b32 v{TT}, v{TT+2}")
        a(f"ds_write_b64 v{vTW}, {vr(TT,2)} offset:{L_T}")
        self.stamp("ts")
        vfill(2)
        a.wait_lg0()
        a("s_barrier")
        self.stamp(2)
        hq = [a(f"ds_read_b128 {vr(TLQ+4*k,4)}, v{vTQ} offset:{L_T + k*1024}") for k in range(2)]
        hkk = [a(f"ds_read_b128 {vr(TLK+4*k,4)}, v{vTK} offset:{L_T + k*1024}") for k in range(2)]
        def tissue():
            if "tmask" not in self.opts:
                return [a(f"buffer_load_dwordx4 {vr(TRQ,4)}, v{vTQ}, {sr(sWS,4)}, s{sTBR} offen sc1"),
                        a(f"buffer_load_dwordx4 {vr(TRK,4)}, v{vTK}, {sr(sWS,4)}, s{sTBR} offen sc1"),
                        a(f"buffer_load_dwordx4 {vr(TRQ+4,4)}, v{vTQ}, {sr(sWS,4)}, s{sTBR} offen offset:1024 sc1"),
                        a(f"buffer_load_dwordx4 {vr(TRK+4,4)}, v{vTK}, {sr(sWS,4)}, s{sTBR} offen offset:1024 sc1")]
            a(f"s_mov_b64 exec, {sr(sMLO,2)}")
            h0 = a(f"buffer_load_dwordx4 {vr(TRQ,4)}, v{vTQ}, {sr(sWS,4)}, s{sTBR} offen sc1")
            h2 = a(f"buffer_load_dwordx4 {vr(TRQ+4,4)}, v{vTQ}, {sr(sWS,4)}, s{sTBR} offen offset:1024 sc1")
            a(f"s_mov_b64 exec, {sr(sM40,2)}")
            h1 = a(f"buffer_load_dwordx4 {vr(TRK,4)}, v{vTK}, {sr(sWS,4)}, s{sTBR} offen sc1")
            h3 = a(f"buffer_load_dwordx4 {vr(TRK+4,4)}, v{vTK}, {sr(sWS,4)}, s{sTBR} offen offset:1024 sc1")
            a(f"s_mov_b64 exec, -1")
            return [h0, h2, h1, h3]
        vfill(2)
        if self.opt("t1", 0) == 0: ths = tissue()
        def smm(Q, K, kx, first):
            c = lambda d: "0" if first else vr(d, 4)
            a(f"v_mfma_f32_16x16x32_bf16 {vr(D3,4)}, {vr(kx,4)}, {vr(Q,4)}, {c(D3)}")
            a(f"v_mfma_f32_16x16x32_bf16 {vr(D3+4,4)}, {vr(kx+4,4)}, {vr(Q,4)}, {c(D3+4)}")
            a(f"v_mfma_f32_16x16x32_bf16 {vr(D3+8,4)}, {vr(K,4)}, {vr(Q,4)}, {c(D3+8)}")
        a.wait(hq, hkk)
        smm(TLQ, TLK, KXR, True)
        if self.opt("t1", 0) == 1: ths = tissue()
        if self.opt("so", 0) == 1: slow_ops()
        smm(TLQ + 4, TLK + 4, KXR + 8, False)
        a(f"v_permlane32_swap_b32 v{V}, v{V+2}")
        a(f"v_permlane32_swap_b32 v{V+1}, v{V+3}")
        a(f"v_pk_add_f32 {vr(V,2)}, {vr(V,2)}, {vr(V+2,2)}")
        a(f"v_cvt_pk_bf16_f32 v{VP}, v{V}, v{V+1}")
        a(f"ds_write_b32 v{vVW}, v{VP} offset:{L_V}")
        a(f"s_cmp_eq_u32 s{sSTEP}, 63")
        a(f"s_cbranch_scc1 L_last")
        for c in range(5):
            a(f"v_mov_b64 {vr(ACC[c],2)}, 0")
            a(f"v_mov_b64 {vr(ACC[c]+2,2)}, 0")
        a(f"v_mov_b64 {vr(V,2)}, 0")
        a(f"v_mov_b64 {vr(V+2,2)}, 0")
        for r in range(4): a(f"v_mov_b32 v{vONE+r}, 0x3F803F80")
        a(f"v_mov_b64 {vr(ZQ,2)}, 0")
        a(f"v_mov_b64 {vr(ZQ+2,2)}, 0")
        a(f"v_mov_b64 {vr(ZK,2)}, 0")
        a(f"v_mov_b64 {vr(ZK+2,2)}, 0")
        a(f"s_add_u32 s{sKVR}, s{sKVR}, 12288")
        a(f"s_cmp_eq_u32 s{sKVR}, {L_KV + NKV*12288}")
        a(f"s_cselect_b32 s{sKVR}, {L_KV}, s{sKVR}")
        a(f"s_mov_b32 s{sSPIN}, 1")
        for n, r in enumerate(TREG):
            a.wait(ths[n // 2])
            self.ck(r, sTAG0, n == 0)
        a(f"v_and_b32 v{vCK}, 1, v{vCK}")
        a(f"v_cmp_ne_u32 vcc, 0, v{vCK}")
        a(f"s_cbranch_vccz L_tok")
        save = list(a.vm)
        self.poll("L_tpoll", tissue, TREG, sTAG0, thr=0)
        a.vm = save
        a.label("L_tok")
        if self.stamps: a(f"s_mov_b32 s{sT5}, s{sSPIN}")
        self.stamp(3)
        smm(TRQ, TRK, KXR + 16, False)
        smm(TRQ + 4, TRK + 4, KXR + 24, False)
        if self.opt("so", 0) == 0: slow_ops()
        M, M2 = vT0, vT3
        S = [D3, D3+1, D3+2, D3+3, D3+8]
        for r in range(4):
            a(f"v_mov_b32_dpp v{D3+r}, v{D3+4+r} row_ror:8 row_mask:0xf bank_mask:0xc")
        a(f"v_max3_f32 v{M}, v{S[0]}, v{S[1]}, v{S[2]}")
        a(f"v_mov_b32_dpp v{D3+8}, v{D3+9} row_ror:8 row_mask:0xf bank_mask:0xc")
        a(f"v_max3_f32 v{M}, v{M}, v{S[3]}, v{S[4]}")
        a(f"v_max_f32_dpp v{M}, v{M}, v{M} row_ror:8 row_mask:0xf bank_mask:0xf")
        a(f"v_mov_b32 v{M2}, v{M}")
        a(f"v_permlane16_swap_b32 v{M}, v{M2}")
        a(f"v_max_f32 v{M}, v{M}, v{M2}")
        a(f"v_mov_b32 v{M2}, v{M}")
        a(f"v_permlane32_swap_b32 v{M}, v{M2}")
        a(f"v_max_f32 v{M}, v{M}, v{M2}")
        a(f"v_mul_f32 v{M}, s{sC}, v{M}")
        for s_ in S: a(f"v_fma_f32 v{s_}, v{s_}, s{sC}, -v{M}")
        for s_ in S: a(f"v_exp_f32 v{s_}, v{s_}")
        P = PP; PM = PP + 4
        Ls = vT0
        a(f"v_cvt_pk_bf16_f32 v{P}, v{S[0]}, v{S[1]}")
        a(f"v_cvt_pk_bf16_f32 v{P+1}, v{S[2]}, v{S[3]}")
        a(f"v_mov_b32_dpp v{vT2}, v{S[4]} row_ror:8 row_mask:0xf bank_mask:0xf")
        a(f"v_mov_b32_dpp v{P+2}, v{P} row_ror:8 row_mask:0xf bank_mask:0xf")
        a(f"v_mov_b32_dpp v{P+3}, v{P+1} row_ror:8 row_mask:0xf bank_mask:0xf")
        a(f"v_cvt_pk_bf16_f32 v{PM}, v{S[4]}, v{vT2}")
        a(f"s_nop 0")
        a(f"v_mfma_f32_16x16x32_bf16 {vr(D3,4)}, {vr(vONE,4)}, {vr(P,4)}, 0")
        a(f"v_mfma_f32_16x16x16_bf16 {vr(D3+8,4)}, {vr(vONE,2)}, {vr(PM,2)}, 0")
        a(f"v_mfma_f32_16x16x32_bf16 {vr(DO,4)}, {vr(VXR,4)}, {vr(P,4)}, 0")
        a(f"v_mfma_f32_16x16x16_bf16 {vr(D3+4,4)}, {vr(VP,2)}, {vr(PM,2)}, 0")
        self.stamp(4)
        a(f"v_add_f32 v{Ls}, v{D3}, v{D3+8}")
        a(f"v_rcp_f32 v{Ls}, v{Ls}")
        a(f"v_pk_add_f32 {vr(DO,2)}, {vr(DO,2)}, {vr(D3+4,2)}")
        a(f"v_pk_add_f32 {vr(DO+2,2)}, {vr(DO+2,2)}, {vr(D3+6,2)}")
        a(f"s_mov_b64 exec, {sr(sMLO,2)}")
        a(f"v_pk_mul_f32 {vr(DO,2)}, {vr(DO,2)}, {vr(Ls,2)} op_sel_hi:[1,0]")
        a(f"v_pk_mul_f32 {vr(DO+2,2)}, {vr(DO+2,2)}, {vr(Ls,2)} op_sel_hi:[1,0]")
        a(f"v_cvt_pk_bf16_f32 v{DO}, v{DO}, v{DO+1}")
        a(f"v_cvt_pk_bf16_f32 v{DO+1}, v{DO+2}, v{DO+3}")
        a(f"ds_write_b64 v{vOW}, {vr(DO,2)} offset:{L_O}")
        a(f"s_mov_b64 exec, -1")
        self.stamp("pb3")
        a.wait_lg0()
        a("s_barrier")
        self.stamp("b3")
        oh = [a(f"ds_read_b128 {vr(AO+4*j,4)}, v{vA} offset:{L_O + j*512}") for j in range(2)]
        def publish(c):
            A_ = ACC[c]
            a(f"v_cvt_pk_bf16_f32 v{A_}, v{A_}, v{A_+1}")
            a(f"v_cvt_pk_bf16_f32 v{A_+1}, v{A_+2}, v{A_+3}")
            a(f"v_and_or_b32 v{A_+1}, v{A_+1}, -2, s{sTAG0}")
            a(f"buffer_store_dwordx2 {vr(A_,2)}, v{vPS}, {sr(sWS,4)}, s{sPB0} offen offset:{c*512}")
        for c in range(5):
            for j in range(2):
                a.wait(oh[j])
                self.smf(("WO", c, j), ACC[c], AO + 4 * j)
            if c >= 1: publish(c - 1)
        publish(4)
        self.stamp(5)
        a(f"s_cmp_eq_u32 s{sHASJ}, 0")
        a(f"s_cbranch_scc1 L_red_skip")
        D = D3; DB = D3 + 4
        def rissue():
            return [a(f"buffer_load_dwordx2 {vr(RL+2*i,2)}, v{vRD}, {sr(sWS,4)}, s{sRD+i} offen sc1") for i in range(8)]
        a(f"s_cmp_eq_u32 s{sW}, 2")
        a(f"s_cbranch_scc1 L_rs_done")
        if self.opt("rs1", 2): a(f"s_sleep {self.opt('rs1', 2)}")
        a(f"s_cmp_eq_u32 s{sW}, 1")
        a(f"s_cbranch_scc1 L_rs_done")
        if self.opt("rs0", 2): a(f"s_sleep {self.opt('rs0', 2)}")
        a.label("L_rs_done")
        if self.opt("rs2", 0): a(f"s_sleep {self.opt('rs2', 0)}")
        a(f"s_mov_b32 s{sSPIN}, 0")
        self.stamp("r0")
        a.label("L_red")
        hs = rissue()
        self.stamp("r1")
        a(f"s_add_u32 s{sSPIN}, s{sSPIN}, 1")
        a(f"s_cmp_gt_u32 s{sSPIN}, {SPIN_MAX}")
        a(f"s_cbranch_scc1 L_fail")
        for i in range(4):
            a.wait(hs[2*i+1])
            if i == 0: self.stamp("r2")
            if i == 3: self.stamp("r3")
            self.ck(RL + 4*i + 1, sTAG0, i == 0)
            self.ck(RL + 4*i + 3, sTAG0, False)
            a(f"v_mfma_f32_16x16x32_bf16 {vr(D,4)}, {vr(RL+4*i,4)}, {vr(vSEL4,4)}, {vr(D,4) if i else 0}")
        a(f"v_and_b32 v{vCK}, 1, v{vCK}")
        a(f"v_cmp_ne_u32 vcc, 0, v{vCK}")
        a(f"s_cbranch_vccnz L_red")
        if self.stamps: a(f"s_mov_b32 s{sT4}, s{sSPIN}")
        a(f"v_cvt_pk_bf16_f32 v{D}, v{D}, v{D+1}")
        a(f"v_cvt_pk_bf16_f32 v{D+1}, v{D+2}, v{D+3}")
        if "nobp" in self.opts:
            a(f"v_and_or_b32 v{D+1}, v{D+1}, -2, s{sTAG1}")
            a(f"s_mov_b64 exec, {sr(sMPB,2)}")
            a(f"buffer_store_dwordx2 {vr(D,2)}, v{vPB}, {sr(sWS,4)}, s{sJR} offen sc1")
            a(f"buffer_store_dwordx2 {vr(D,2)}, v{vPB}, {sr(sWS,4)}, s{sJL} offen")
            a(f"s_mov_b64 exec, -1")
        else:
            a(f"ds_bpermute_b32 v{DB}, v{vBP}, v{D}")
            a(f"v_and_or_b32 v{D+1}, v{D+1}, -2, s{sTAG1}")
            a(f"ds_bpermute_b32 v{DB+1}, v{vBP}, v{D+1}")
            a(f"s_mov_b64 exec, 0xFFFF")
            a.wait_lg0()
            a(f"buffer_store_dwordx2 {vr(DB,2)}, v{vXA}, {sr(sWS,4)}, s{sJR} offen sc1")
            a(f"buffer_store_dwordx2 {vr(DB,2)}, v{vXA}, {sr(sWS,4)}, s{sJL} offen")
            a(f"s_mov_b64 exec, -1")
        a.label("L_red_skip")
        a(f"s_cmp_lg_u32 s{sW}, 3")
        a(f"s_cbranch_scc1 L_nex")
        ex_read()
        a.wait_lg0()
        a.label("L_nex")
        self.stamp(6)
        a("s_barrier")
        self.stamp("b0")
        GREGB = [GB + 2*i + 1 for i in range(5)]
        def gissue(R, sb):
            return lambda: [a(f"buffer_load_dwordx4 {vr(R,4)}, v{vG0}, {sr(sWS,4)}, s{sb} offen sc1"),
                    a(f"buffer_load_dwordx4 {vr(R+4,4)}, v{vG1}, {sr(sWS,4)}, s{sb} offen sc1"),
                    a(f"buffer_load_dwordx2 {vr(R+8,2)}, v{vG2}, {sr(sWS,4)}, s{sb} offen sc1")]
        self.poison(GREG + GREGB, sTAG1)
        self.kv_check()
        if self.opt("ad", 4): a(f"s_sleep {self.opt('ad', 4)}")
        gissue(GL, sGL)()
        if self.opt("bd", 3): a(f"s_sleep {self.opt('bd', 3)}")
        def both():
            gissue(GB, sGR)()
        gissue(GB, sGR)()
        a(f"s_waitcnt vmcnt(3)")
        for n, r in enumerate(GREG): self.ck(r, sTAG1, n == 0)
        a(f"v_and_b32 v{vCK}, 1, v{vCK}")
        a(f"v_cmp_ne_u32 vcc, 0, v{vCK}")
        a(f"s_mov_b32 s{sSPIN}, 0")
        a(f"s_cbranch_vccz L_ga_ok")
        self.poll("L_ga", gissue(GL, sGL), GREG, sTAG1, thr=0)
        a.label("L_ga_ok")
        if self.stamps: a(f"s_mov_b32 s{sT3}, s{sSPIN}")
        self.stamp("ga")
        x2 = self.opt("x2", 1)
        if x2: gissue(GB, sGR)()
        for i in range(10):
            a(f"v_lshlrev_b32 v{AU+2*i}, 16, v{GL+i}")
            a(f"v_and_b32 v{AU+2*i+1}, 0xFFFF0000, v{GL+i}")
        a(f"s_waitcnt vmcnt({3 if x2 else 0})")
        for n, r in enumerate(GREGB): self.ck(r, sTAG1, n == 0)
        a(f"v_and_b32 v{vCK}, 1, v{vCK}")
        a(f"v_cmp_ne_u32 vcc, 0, v{vCK}")
        a(f"s_mov_b32 s{sSPIN}, 0")
        a(f"s_cbranch_vccz L_gb_ok")
        self.poll("L_gb", gissue(GB, sGR), GREGB, sTAG1, thr=self.opt("gthr", 0))
        a.label("L_gb_ok")
        self.stamp("gb")
        self.stamp(7)
        a(f"s_add_u32 s{sSTEP}, s{sSTEP}, 1")
        a(f"s_and_b32 s{sTAG0}, s{sSTEP}, 1")
        a(f"s_bfe_u32 s{sTAG1}, s{sSTEP}, 0x10001")
        for r in (sJL, sGL): a(f"s_add_u32 s{r}, s{r}, s{sSLOT}")
        for r in (sJR, sGR): a(f"s_add_u32 s{r}, s{r}, 32768")
        a(f"s_sub_u32 s{sSLOT}, 0, s{sSLOT}")
        if self.stamps:
            a.wait_lg0()
            for i in range(8):
                a(f"v_mov_b32 v{TLQ+i}, s{sTM+2*i}")
            for i, r in enumerate([sT5, sT4, sT3, sSPIN]):
                a(f"v_mov_b32 v{TLQ+8+i}, s{r}")
            a(f"v_mov_b32 v{vT1}, 0")
            a(f"s_mov_b64 exec, 1")
            for i in range(3):
                a(f"buffer_store_dwordx4 {vr(TLQ+4*i,4)}, v{vT1}, {sr(sWS,4)}, s{sSTAMP} offen offset:{16*i}")
            a(f"s_mov_b64 exec, -1")
            a(f"s_add_u32 s{sSTAMP}, s{sSTAMP}, 128")

def team_code(a, stamps, opts, exit_label="L_end"):
    t = Team(a, stamps, opts)
    t.setup()
    if "lateinit" not in opts: t.init_buffers()
    if "full" not in opts:
        a(f"s_or_b32 s{sTMP}, s{sX}, s{sR}")
        a(f"s_or_b32 s{sTMP}, s{sTMP}, s{sW}")
        a(f"s_cmp_lg_u32 s{sTMP}, 0")
        a(f"s_cbranch_scc1 L_noprobe")
        probe(a, vT0, opts)
        a.label("L_noprobe")
    if stamps: a(f"s_memtime {sr(sTM+16,2)}")
    t.load_weights()
    t.wait_team(52)
    if stamps:
        a(f"s_memtime {sr(sTM,2)}")
        a.wait_lg0()
        a(f"s_sub_u32 s{sTMP}, s{sTM}, s{sTM+16}")
        a(f"v_mov_b32 v{vT0}, s{sTMP}")
        a(f"v_mov_b32 v{vT1}, 0")
        a(f"buffer_store_dword v{vT0}, v{vT1}, {sr(sWS,4)}, s{sSTAMP} offen offset:64")
        a.wait_vm0()
    if "rt" in opts:
        import gen_full
        gen_full.mark(a, 5, True, 40, 41)
    if "dbgt" in opts: a("s_memrealtime s[92:93]")
    t.prologue()
    if "dbgt" in opts: a("s_memrealtime s[94:95]")
    if "rt" in opts: gen_full.mark(a, 1, True, 60, 61)
    a.label("L_loop")
    t.step(exit_label)
    a("s_branch L_loop")
    a.label("L_last")
    t.exports()
    a(f"s_branch {exit_label}")

def election(a):
    a("s_cmp_ge_u32 s2, 256")
    a("s_cbranch_scc1 L_end")
    a(f"s_load_dwordx2 {sr(sDBG,2)}, s[0:1], 64")
    a(f"s_load_dwordx2 {sr(sWS,2)}, s[0:1], 72")
    a(f"s_getreg_b32 s{sXCC}, hwreg(HW_REG_XCC_ID)")
    a(f"s_and_b32 s{sXCC}, s{sXCC}, 7")
    a(f"v_lshrrev_b32 v1, 6, v0")
    a(f"v_readfirstlane_b32 s{sW}, v1")
    a("s_waitcnt lgkmcnt(0)")
    a(f"s_and_b32 s{sWS+1}, s{sWS+1}, 0xffff")
    a(f"s_mov_b32 s{sWS+2}, {WS_BYTES}")
    a(f"s_mov_b32 s{sWS+3}, 0x00020000")
    a(f"v_mov_b32 v5, 0")
    a(f"s_cmp_lg_u32 s{sW}, 0")
    a("s_cbranch_scc1 L_el_done")
    a("s_mov_b64 exec, 1")
    a(f"s_lshl_b32 s{sTMP}, s{sXCC}, 2")
    a(f"v_mov_b32 v1, s{sTMP}")
    a(f"v_mov_b32 v2, 1")
    a(f"global_atomic_add v3, v1, v2, {sr(sDBG,2)} sc0 sc1")
    a.wait_vm0()
    a(f"v_readfirstlane_b32 s{sR}, v3")
    a(f"s_lshr_b32 s{sT2}, s{sXCC}, 1")
    a(f"s_cmp_lg_u32 s{sR}, 31")
    a("s_cbranch_scc1 L_el_poll0")
    a(f"s_lshl_b32 s{sTMP}, s{sT2}, 2")
    a(f"s_add_u32 s{sTMP}, s{sTMP}, 36")
    a(f"v_mov_b32 v1, s{sTMP}")
    a(f"global_atomic_add v3, v1, v2, {sr(sDBG,2)} sc0 sc1")
    a.wait_vm0()
    a(f"v_readfirstlane_b32 s{sTMP}, v3")
    a(f"s_cmp_lg_u32 s{sTMP}, 1")
    a("s_cbranch_scc1 L_el_poll0")
    a(f"s_add_u32 s{sTMP}, s{sT2}, 1")
    a(f"v_mov_b32 v1, 32")
    a(f"v_mov_b32 v2, s{sTMP}")
    a(f"v_mov_b32 v3, 0")
    a(f"global_atomic_cmpswap v1, v[2:3], {sr(sDBG,2)} sc1")
    a.label("L_el_poll0")
    a(f"v_mov_b32 v1, 32")
    a(f"s_mov_b32 s{sSPIN}, 0")
    a.label("L_el_poll")
    a(f"global_load_dword v2, v1, {sr(sDBG,2)} sc1")
    a(f"s_add_u32 s{sSPIN}, s{sSPIN}, 1")
    a(f"s_mov_b32 s{sTMP}, 0")
    a(f"s_cmp_gt_u32 s{sSPIN}, {SPIN_MAX}")
    a("s_cbranch_scc1 L_el_got")
    a.wait_vm0()
    a(f"v_readfirstlane_b32 s{sTMP}, v2")
    a(f"s_cmp_eq_u32 s{sTMP}, 0")
    a("s_cbranch_scc1 L_el_poll")
    a.label("L_el_got")
    a.wait_vm0()
    a(f"s_add_u32 s{sT2}, s{sT2}, 1")
    a(f"s_cmp_eq_u32 s{sTMP}, s{sT2}")
    a(f"s_cselect_b32 s{sR}, s{sR}, 255")
    a(f"s_min_u32 s{sR}, s{sR}, 255")
    a(f"v_mov_b32 v2, s{sR}")
    a(f"ds_write_b32 v5, v2")
    a.wait_lg0()
    a("s_mov_b64 exec, -1")
    a.label("L_el_done")
    a("s_barrier")
    a(f"ds_read_b32 v2, v5")
    a.wait_lg0()
    a(f"v_readfirstlane_b32 s{sR}, v2")
    a("s_barrier")
    a(f"s_and_b32 s{sX}, s{sXCC}, 1")
    a(f"s_cmp_ge_u32 s{sR}, 32")
    a("s_cbranch_scc1 L_end")

def probe(a, v0, opts=()):
    a(f"s_mov_b64 exec, 1")
    a(f"s_sub_u32 s{sT5}, 0, s{sWS}")
    a(f"s_and_b32 s{sT5}, s{sT5}, 0x1FFFFF")
    a(f"s_lshl_b32 s{sTMP}, s{sXCC}, 15")
    a(f"s_add_u32 s{sT5}, s{sT5}, s{sTMP}")
    a(f"s_mov_b32 s{sTM+4}, 1")
    ad = lambda blk, hf, rep: IMGR + blk*0x400000 + 0x5000 + hf*8192 + rep*256
    for blk in range(2):
        for rep in range(3):
            for hf in range(2):
                a(f"v_mov_b32 v{v0}, {ad(blk, hf, rep):#x}")
                a(f"buffer_store_dword v{v0}, v{v0}, {sr(sWS,4)}, s{sT5} offen sc1")
    a.wait_vm0()
    for blk in range(2):
        a(f"s_mov_b32 s{sT2}, -1")
        a(f"s_mov_b32 s{sT3}, -1")
        for rep in range(3):
            for hf in range(2):
                a(f"v_mov_b32 v{v0}, {ad(blk, hf, rep):#x}")
                a(f"s_memtime {sr(sTM,2)}")
                a(f"s_waitcnt lgkmcnt(0)")
                a(f"buffer_load_dword v{v0+1}, v{v0}, {sr(sWS,4)}, s{sT5} offen sc1")
                a.wait_vm0()
                a(f"s_memtime {sr(sTM+2,2)}")
                a(f"s_waitcnt lgkmcnt(0)")
                a(f"s_sub_u32 s{sTMP}, s{sTM+2}, s{sTM}")
                a(f"s_min_u32 s{sT2+hf}, s{sT2+hf}, s{sTMP}")
        a(f"s_cmp_lt_u32 s{sT3}, s{sT2}")
        a(f"s_cselect_b32 s{sTMP}, {0x2000 << blk:#x}, 0")
        a(f"s_or_b32 s{sTM+4}, s{sTM+4}, s{sTMP}")
    if "far" in opts: a(f"s_xor_b32 s{sTM+4}, s{sTM+4}, 0x6000")
    a(f"v_mov_b32 v{v0}, 56")
    a(f"v_mov_b32 v{v0+2}, s{sTM+4}")
    a(f"v_mov_b32 v{v0+3}, 0")
    a(f"global_atomic_cmpswap v{v0}, {vr(v0+2,2)}, {sr(sDBG,2)} sc1")
    a.wait_vm0()
    a(f"s_mov_b64 exec, -1")
```
